```python
import torch

def _softmax(x, axis=-1):
    return torch.softmax(x, dim=axis)
def _gelu(x):
    return torch.nn.functional.gelu(x, approximate="tanh")
def _silu(x):
    return torch.nn.functional.silu(x)
def _sigmoid(x):
    return torch.sigmoid(x)
def _layernorm(x, axis=-1, eps=1e-5):
    m = x.mean(dim=axis, keepdim=True)
    v = x.var(dim=axis, keepdim=True, unbiased=False)
    return (x - m) / torch.sqrt(v + eps)
def _scatter_add(tgt, idx, src, axis=0):
    return tgt.clone().index_add_(axis, idx, src)
def _segment_sum(src, seg, n):
    out = torch.zeros((n,) + src.shape[1:], dtype=src.dtype)
    return out.index_add_(0, seg, src)
def _pad(x, pw):
    flat = tuple(v for pair in reversed(pw) for v in pair)
    return torch.nn.functional.pad(x, flat)

kernel_name = 'interleave_layers__ssm_conv_s4d__linear_kernel_hedgehog__prompt'

def setup_inputs():

    _w = (lambda a: (lambda t: t.to(torch.bfloat16) if t.is_floating_point() else t)(torch.as_tensor(a)))
    def _A_setup():
        Bsz, L, D, N = 1, 2048, 512, 128
        return {
            "u": _w((lambda *s: torch.randn(*s, dtype=torch.bfloat16) * 0.05)(Bsz, L, D)),
            "log_A_real": _w((lambda *s: torch.randn(*s, dtype=torch.bfloat16) * 3.2)(D, N) * 0.5),
            "A_imag": _w((lambda *s: torch.randn(*s, dtype=torch.bfloat16) * 0.05)(D, N) * 3.14),
            "C_real": _w((lambda *s: torch.randn(*s, dtype=torch.bfloat16) * 0.05)(D, N) / N ** 0.5),
            "C_imag": _w((lambda *s: torch.randn(*s, dtype=torch.bfloat16) * 0.05)(D, N) / N ** 0.5),
            "log_dt": _w((lambda *s: torch.randn(*s, dtype=torch.bfloat16) * 0.05)(D) * 0.5 - 4.0),
            "D_skip": _w((lambda *s: torch.randn(*s, dtype=torch.bfloat16) * 0.05)(D)),
        }
    _A_in = _A_setup()

    def _B_setup():
        B, S, D, H = 1, 2048, 512, 32
        Dh = D // H
        return {
            "x": _w((lambda *s: torch.randn(*s, dtype=torch.bfloat16) * 0.05)(B, S, D)),
            "wqkv": _w((lambda *s: torch.randn(*s, dtype=torch.bfloat16) * 0.4)(D, 3 * D)),
            "w_phi": _w((lambda *s: torch.randn(*s, dtype=torch.bfloat16) * 0.4)(H, Dh, Dh) * (Dh ** -0.5)),
            "wo": _w((lambda *s: torch.randn(*s, dtype=torch.bfloat16) * 0.05)(D, D)),
        }
    _B_in = _B_setup()

    return {
        "A_u": _A_in["u"],
        "A_log_A_real": _A_in["log_A_real"],
        "A_A_imag": _A_in["A_imag"],
        "A_C_real": _A_in["C_real"],
        "A_C_imag": _A_in["C_imag"],
        "A_log_dt": _A_in["log_dt"],
        "A_D_skip": _A_in["D_skip"],
        "B_x": _B_in["x"],
        "B_wqkv": _B_in["wqkv"],
        "B_w_phi": _B_in["w_phi"],
        "B_wo": _B_in["wo"],
    }

def reference(A_u, A_log_A_real, A_A_imag, A_C_real, A_C_imag, A_log_dt, A_D_skip, B_x, B_wqkv, B_w_phi, B_wo):
    def _A_ref(u, log_A_real, A_imag, C_real, C_imag, log_dt, D_skip):
        L = u.shape[1]
        dt = torch.exp(log_dt)
        A = -torch.exp(log_A_real) + 1j * A_imag
        C = (C_real + 1j * C_imag) * dt[:, None]
        pos = (lambda x, dt: x.to(dt))(torch.arange(L), log_dt.dtype)
        P = torch.exp((A * dt[:, None])[:, :, None] * pos[None, None, :])
        K = 2.0 * torch.einsum("dn,dnl->dl", C, P).real
        L2 = 2 * L
        u_t = (lambda x, *d: x.permute(*d))(u, 0, 2, 1)
        Kf = (lambda x, *a, **k: torch.fft.rfft(x.float(), *a, **k))(K, L2)
        Uf = (lambda x, *a, **k: torch.fft.rfft(x.float(), *a, **k))(u_t, L2)
        y = (lambda x, *a, **k: torch.fft.irfft(x, *a, **k).to(torch.bfloat16))(Uf * Kf[None, :, :], L2)[:, :, :L]
        y = (lambda x, *d: x.permute(*d))(y, 0, 2, 1)
        return y + u * D_skip[None, None, :]

    def _B_ref(x, wqkv, w_phi, wo):
        B, S, D = x.shape
        H = 32; Dh = D // H
        qkv = (lambda x, *d: x.permute(*d))((x @ wqkv).reshape(B, S, 3, H, Dh), 2, 0, 3, 1, 4)
        q, k, v = qkv[0], qkv[1], qkv[2]
        pq = torch.einsum("bhsd,hdf->bhsf", q, w_phi)
        pk = torch.einsum("bhsd,hdf->bhsf", k, w_phi)
        phi_q = torch.concatenate([_softmax(pq, axis=-1), _softmax(-pq, axis=-1)], axis=-1)
        phi_k = torch.concatenate([_softmax(pk, axis=-1), _softmax(-pk, axis=-1)], axis=-1)
        kv = torch.einsum("bhsf,bhsd->bhfd", phi_k, v)
        z  = torch.einsum("bhsf->bhf", phi_k)
        num = torch.einsum("bhqf,bhfd->bhqd", phi_q, kv)
        den = torch.einsum("bhqf,bhf->bhq", phi_q, z)[..., None] + 1e-6
        o = num / den
        return (lambda x, *d: x.permute(*d))(o, 0, 2, 1, 3).reshape(B, S, D) @ wo

    x = A_u
    x = x + _A_ref(_layernorm(x, axis=-1), A_log_A_real, A_A_imag, A_C_real, A_C_imag, A_log_dt, A_D_skip)
    x = x + _B_ref(_layernorm(x, axis=-1), B_wqkv, B_w_phi, B_wo)
    x = x + _A_ref(_layernorm(x, axis=-1), A_log_A_real, A_A_imag, A_C_real, A_C_imag, A_log_dt, A_D_skip)
    x = x + _B_ref(_layernorm(x, axis=-1), B_wqkv, B_w_phi, B_wo)
    return x
```

```python
import re

def vr(a, n=1, p="v"):
    return f"{p}{a}" if n == 1 else f"{p}[{a}:{a+n-1}]"
def ar(a, n=1): return vr(a, n, "a")
def sr(a, n=1): return vr(a, n, "s")

_reg = re.compile(r"^(-|\|)?(?:abs\()?([vas])(?:(\d+)|\[(\d+):(\d+)\])\)?\|?$")
def regs_of(tok):
    tok = tok.strip()
    if tok == "vcc": return [("s", "vcc")]
    if tok == "exec": return [("s", "exec")]
    if tok == "m0": return [("s", "m0")]
    m = _reg.match(tok)
    if not m: return []
    k = m.group(2)
    if m.group(3) is not None: return [(k, int(m.group(3)))]
    return [(k, i) for i in range(int(m.group(4)), int(m.group(5)) + 1)]

TRANS = ("v_exp_f32", "v_log_f32", "v_rcp_f32", "v_rsq_f32", "v_sqrt_f32", "v_sin_f32", "v_cos_f32")
def passes(op):
    if "32x32x16" in op or "32x32x8" in op: return 8
    if "16x16x32" in op or "16x16x16" in op: return 4
    raise ValueError(op)

class Ins:
    def __init__(self, text):
        self.text = text
        t = text.split(";")[0].strip()
        self.op = t.split()[0] if t else ""
        rest = t[len(self.op):].strip()
        ops = [o.strip() for o in rest.split(",")] if rest else []
        self.mods = ""
        if ops:
            joined = ", ".join(ops)
            m = re.search(r"\s(op_sel|op_sel_hi|neg_lo|neg_hi|offset|offen|offset0|offset1|lds|sc0|sc1|nt|quad_perm|row_|wave_|bank_mask|bound_ctrl|clamp|dst_sel|src0_sel|src1_sel|dst_unused|cbsz|abid|blgp|mul:|div:)", " " + joined)
            if m:
                self.mods = joined[m.start():]
                joined = joined[:m.start()]
            ops = [o.strip() for o in joined.split(",")]
        self.ops = ops
        op = self.op
        self.kind = "other"; self.w = []; self.r = []; self.srcC = []; self.ab = []
        R = lambda i: regs_of(ops[i]) if i < len(ops) else []
        if op.startswith("v_mfma"):
            self.kind = "mfma"; self.w = R(0); self.ab = R(1) + R(2); self.srcC = R(3); self.r = self.ab + self.srcC
        elif op.startswith("v_"):
            self.kind = "valu"
            self.w = R(0); self.r = sum((R(i) for i in range(1, len(ops))), [])
            if op.startswith(("v_fmac", "v_dot2c", "v_pk_fmac")): self.r += R(0)
            if "permlane" in op and "swap" in op: self.w = R(0) + R(1); self.r = R(0) + R(1)
            if op.startswith(("v_add_co", "v_sub_co", "v_addc_co", "v_subb_co")): self.w = R(0) + R(1); self.r = sum((R(i) for i in range(2, len(ops))), [])
            if "dpp" in op or "row_" in self.mods or "quad_perm" in self.mods or "wave_" in self.mods:
                self.dpp = True; self.r += R(0)
        elif op.startswith("ds_read") or op.startswith("ds_bpermute") or op.startswith("ds_swizzle"):
            self.kind = "ds"; self.w = R(0); self.r = sum((R(i) for i in range(1, len(ops))), [])
            if "d16" in op: self.r += R(0)
        elif op.startswith("ds_"):
            self.kind = "ds"; self.r = sum((R(i) for i in range(len(ops))), [])
        elif op.startswith("buffer_load"):
            self.kind = "vmem"
            if " lds" in (" " + self.mods):
                self.r = sum((R(i) for i in range(len(ops))), []) + [("s", "m0")]; self.ldsdma = True
            else:
                self.w = R(0); self.r = sum((R(i) for i in range(1, len(ops))), [])
        elif op.startswith(("buffer_store", "buffer_atomic")):
            self.kind = "vmem"; self.r = sum((R(i) for i in range(len(ops))), [])
            self.data = R(0)
            if op.startswith("buffer_atomic") and "sc0" in self.mods: self.w = R(0)
        elif op.startswith("global_load"):
            self.kind = "vmem"; self.w = R(0); self.r = sum((R(i) for i in range(1, len(ops))), [])
        elif op.startswith(("global_store", "global_atomic")):
            self.kind = "vmem"; self.r = sum((R(i) for i in range(len(ops))), []); self.data = R(1)
        elif op.startswith("s_"):
            self.kind = "salu"
            if op.startswith(("s_cmp", "s_cbranch", "s_branch", "s_waitcnt", "s_barrier", "s_nop", "s_endpgm", "s_setprio", "s_sleep", "s_bitcmp")):
                self.r = sum((R(i) for i in range(len(ops))), [])
            else:
                self.w = R(0); self.r = sum((R(i) for i in range(1, len(ops))), [])
                if "saveexec" in op: self.w += [("s", "exec")]
    def states(self):
        if self.op == "s_nop": return int(self.ops[0], 0) + 1
        return 1

def need(prev, cur):
    n = 0
    pw = set(prev.w); cr = set(cur.r); cw = set(cur.w)
    vw = {x for x in pw if x[0] in "va"}; sw = {x for x in pw if x[0] == "s"}
    if prev.kind == "valu":
        if cur.kind == "mfma" and vw & cr: n = max(n, 2)
        if prev.op.startswith(TRANS) and vw & cr: n = max(n, 1)
        if prev.op.startswith("v_dot") and cur.kind in ("valu", "mfma", "ds", "vmem") and (vw & (cr | cw)):
            same_c = cur.op == prev.op and not (vw & set(sum((regs_of(o) for o in cur.ops[1:3]), [])))
            if not same_c: n = max(n, 3)
        if cur.kind == "valu":
            if cur.op.startswith(("v_readfirstlane", "v_readlane")) and vw & cr: n = max(n, 1)
            if "permlane" in cur.op and vw & cr: n = max(n, 2)
            if getattr(cur, "dpp", False) and vw & cr: n = max(n, 2)
            if sw & cr: n = max(n, 2)
            if cur.op.startswith("v_cndmask") and len(cur.ops) == 3 and ("s", "vcc") in sw: n = max(n, 2)
            if cur.op.startswith(("v_readlane", "v_writelane")) and sw & cr: n = max(n, 4)
        if cur.kind == "vmem" and sw & cr: n = max(n, 5)
        if cur.kind == "salu" and sw & cr: n = max(n, 1)
    if prev.kind == "mfma":
        p = passes(prev.op); full = {4: 8, 8: 12}[p]
        if cur.kind == "mfma":
            if pw & set(cur.ab): n = max(n, full)
            if pw & set(cur.srcC):
                if not (prev.w == cur.srcC and passes(cur.op) == p): n = max(n, {4: 6, 8: 10}[p])
            elif pw & cw: n = max(n, full)
        elif cur.kind in ("valu", "ds", "vmem"):
            if pw & (cr | cw): n = max(n, full)
            if cur.kind == "valu" and set(prev.srcC) & cw: n = max(n, {4: 3, 8: 7}[p])
    if prev.kind == "salu" and ("s", "m0") in pw and getattr(cur, "ldsdma", False): n = max(n, 1)
    if prev.kind == "vmem" and hasattr(prev, "data") and len(prev.data) >= 3:
        if set(prev.data) & cw: n = max(n, 2)
    return n

class Asm:
    def __init__(self):
        self.items = []
    def __call__(self, text):
        for line in text.split("\n"):
            line = line.strip()
            if line: self.items.append(("i", line))
    def label(self, l): self.items.append(("l", l))
    def raw(self, t): self.items.append(("x", t))
    def c(self, t): self.items.append(("x", "    ; " + t))
    def render(self):
        out = []; hist = []
        nops = 0
        for kind, t in self.items:
            if kind == "l": out.append(t + ":"); continue
            if kind == "x": out.append(t); continue
            ins = Ins(t)
            dist = 0; req = 0
            for p in reversed(hist):
                if dist >= 20: break
                nd = need(p, ins)
                if nd > dist: req = max(req, nd - dist)
                dist += p.states()
            while req > 0:
                k = min(req, 16)
                nop = Ins(f"s_nop {k-1}"); hist.append(nop); out.append(f"    s_nop {k-1}"); req -= k; nops += 1
            hist.append(ins); hist = hist[-24:]
            out.append("    " + t)
            if ins.op == "s_endpgm": hist = []
        return "\n".join(out) + "\n"

def kernel_header(name):
    return f".globl {name}\n.p2align 8\n.type {name},@function\n{name}:"
def kernel_desc(name, vgpr, agpr=0, sgpr=102):
    acc = max(4, (vgpr + 3) // 4 * 4)
    nfv = acc + agpr if agpr else vgpr
    return f""".section .rodata,"a"
.p2align 6
.amdhsa_kernel {name}
  .amdhsa_next_free_vgpr {nfv}
  .amdhsa_next_free_sgpr {sgpr}
  .amdhsa_accum_offset {acc}
  .amdhsa_group_segment_fixed_size 0
  .amdhsa_kernarg_size 112
  .amdhsa_user_sgpr_count 2
  .amdhsa_user_sgpr_kernarg_segment_ptr 1
  .amdhsa_system_sgpr_workgroup_id_x 1
.end_amdhsa_kernel
.text"""
```

```python
import sys
from asmlib import *

NAME = "interleave_layers__ssm_conv_s4d__linear_kernel_hedgehog__prompt"
XT = [0x0000000, 0x0200000, 0x0400000, 0x0600000]
XT_SZ = 0x200000
KG = 0x0800000; KROW = 4224; KPRE = 128; KG_SZ = 512 * KROW
WF = 0x0B00000; WF_SZ = 0x180000
WO = 0x0C80000; WO_SZ = 0x80000
PHIQ = 0x0D00000; PHIQ_SZ = 0x400000
ZERO = 0x1100000; ZERO_SZ = 155648
KV = [ZERO, ZERO + 69632]; KV_SZ = 69632
ST3 = ZERO + 2 * 69632; ST_SZ = 16384
ST1 = 0x1130000
LOG2E = 0x3fb8aa3b; INV2PI = 0x3e22f983
def f32(x):
    import struct; return "0x%08x" % struct.unpack("<I", struct.pack("<f", x))[0]

def srd(a, d, base, off, size):
    if off:
        a(f"s_add_u32 s{d}, s{base}, {hex(off)}"); a(f"s_addc_u32 s{d+1}, s{base+1}, 0")
    else:
        a(f"s_mov_b32 s{d}, s{base}"); a(f"s_mov_b32 s{d+1}, s{base+1}")
    a(f"s_mov_b32 s{d+2}, {hex(size)}"); a(f"s_mov_b32 s{d+3}, 0x20000")

def unpack(a, lo, hi, src):
    a(f"v_lshlrev_b32 v{lo}, 16, v{src}"); a(f"v_and_b32 v{hi}, 0xffff0000, v{src}")

def rnd_pairs(a, regs, tmp):
    n = len(regs)
    for i in range(0, n, 2): a(f"v_cvt_pk_bf16_f32 v{tmp[i//2]}, v{regs[i]}, v{regs[i+1]}")
    for i in range(0, n, 2): unpack(a, regs[i], regs[i+1], tmp[i//2])

def cmul(a, d, z, e, t):
    a(f"v_pk_mul_f32 v[{t}:{t+1}], v[{z}:{z+1}], v[{e}:{e+1}] op_sel:[0,0] op_sel_hi:[1,0]")
    a(f"v_pk_fma_f32 v[{d}:{d+1}], v[{z}:{z+1}], v[{e}:{e+1}], v[{t}:{t+1}] op_sel:[1,1,0] op_sel_hi:[0,1,1] neg_lo:[1,0,0]")

def gen_prep(name):
    a = Asm(); a.raw(kernel_header(name))
    a("s_cmp_ge_u32 s2, 256"); a(f"s_cbranch_scc1 L_{name}_end")
    a("s_load_dwordx4 s[4:7], s[0:1], 0")
    a("s_load_dwordx4 s[8:11], s[0:1], 16")
    a("s_load_dwordx4 s[12:15], s[0:1], 32")
    a("s_load_dwordx4 s[16:19], s[0:1], 64")
    a("s_load_dwordx2 s[20:21], s[0:1], 80")
    a("s_load_dwordx2 s[22:23], s[0:1], 104")
    W = 24
    a("v_lshrrev_b32 v2, 6, v0"); a("v_and_b32 v1, 63, v0"); a(f"v_readfirstlane_b32 s{W}, v2")
    a("v_and_b32 v3, 15, v0")
    a("v_bfe_u32 v4, v0, 4, 2")
    a("s_lshl_b32 s25, s2, 9"); a("v_lshl_add_u32 v5, v0, 1, s25")
    a(f"s_lshr_b32 s26, s{W}, 1"); a("s_lshl_b32 s27, s2, 1"); a("s_add_u32 s27, s27, s26"); a("s_lshl_b32 s27, s27, 1")
    a("v_mov_b32 v6, s27")
    a("s_and_b32 s28, s2, 7"); a("s_lshl_b32 s28, s28, 5"); a("s_lshr_b32 s29, s2, 3"); a("s_add_u32 s28, s28, s29")
    a("s_lshl_b32 s29, s28, 13")
    a("v_lshl_add_u32 v7, v0, 2, s29")
    a("v_add_u32 v8, 0x1000, v7")
    a(f"s_lshl_b32 s30, s{W}, 11"); a("s_add_u32 s30, s30, s29"); a("v_lshl_add_u32 v9, v1, 4, s30")
    a("s_waitcnt lgkmcnt(0)")
    a("global_load_ushort v10, v5, s[6:7]"); a("global_load_ushort v11, v5, s[8:9]")
    a("global_load_ushort v12, v5, s[10:11]"); a("global_load_ushort v13, v5, s[12:13]")
    a("global_load_ushort v14, v6, s[14:15]")
    a("global_load_dwordx4 v[16:19], v9, s[4:5]"); a("global_load_dwordx4 v[20:23], v9, s[4:5] offset:1024")
    for i in range(8):
        a(f"global_load_dword v{24+i}, v{7 if i < 4 else 8}, s[4:5] offset:{(i%4)*1024}")
    a("s_cmp_ge_u32 s2, 128"); a(f"s_cbranch_scc1 L_{name}_skipc1")
    a("s_cmp_lt_u32 s2, 96")
    a("s_cselect_b32 s31, 3, 1"); a("s_cselect_b32 s32, s16, s20"); a("s_cselect_b32 s33, s17, s21")
    a("s_cselect_b32 s35, 0, 96"); a("s_lshl_b32 s31, s31, 10"); a("s_sub_u32 s34, s2, s35"); a("s_lshl_b32 s34, s34, 5")
    a("v_lshrrev_b32 v52, 2, v3"); a("v_lshlrev_b32 v52, 3, v52"); a("v_and_b32 v53, 3, v3"); a("v_add_u32 v52, v52, v53")
    a(f"s_lshl_b32 s36, s{W}, 7"); a("v_add_u32 v52, s36, v52")
    a("v_mul_lo_u32 v52, v52, s31"); a("v_lshl_add_u32 v52, v4, 3, v52"); a("v_add_u32 v52, s34, v52")
    a("s_lshl_b32 s36, s31, 2"); a("s_mul_i32 s37, s31, 28")
    for b in range(4):
        for h in range(2):
            a(f"global_load_dwordx2 v[{32+4*b+2*h}:{33+4*b+2*h}], v52, s[32:33]")
            if not (b == 3 and h == 1): a(f"v_add_u32 v52, s{36 if h == 0 else 37}, v52")
    a("s_and_b32 s36, s2, 31"); a("s_lshl_b32 s36, s36, 9")
    a("v_lshlrev_b32 v53, 7, v4"); a("v_lshl_add_u32 v53, v3, 1, v53"); a("v_add_u32 v53, s36, v53")
    for i in range(4): a(f"global_load_ushort v{48+i}, v53, s[18:19] offset:{32*i}")
    a.label(f"L_{name}_skipc1")
    srd(a, 40, 22, ZERO, ZERO_SZ); srd(a, 44, 22, KG, KG_SZ); srd(a, 48, 22, XT[0], XT_SZ); srd(a, 52, 22, ST1, ST_SZ)
    for r in range(56, 60): a(f"v_mov_b32 v{r}, 0")
    a("v_lshlrev_b32 v54, 1, v5")
    a("buffer_store_dword v56, v54, s[40:43], 0 offen")
    a("v_and_b32 v54, 1, v0"); a(f"v_mul_u32_u24 v54, {KROW}, v54"); a(f"s_mul_i32 s38, s2, {2*KROW}")
    a("s_mov_b64 s[56:57], exec"); a("s_mov_b64 exec, 3")
    a(f"buffer_store_dwordx4 v[56:59], v54, s[44:47], s38 offen offset:{KPRE-16}")
    a("s_mov_b64 exec, s[56:57]")
    TB = 73728
    a("v_lshlrev_b32 v54, 3, v0")
    for j in range(8): a(f"v_add_u32 v{60+j}, {j}, v54")
    for j in range(8): a(f"v_cvt_f32_u32 v{60+j}, v{60+j}")
    rnd_pairs(a, list(range(60, 68)), [68, 69, 70, 71])
    for j in range(8): a(f"v_cvt_u32_f32 v{60+j}, v{60+j}")
    a(f"s_mov_b32 s39, {TB}")
    for j in range(8): a(f"v_lshl_add_u32 v{60+j}, v{60+j}, 1, s39")
    a("v_lshrrev_b32 v54, 5, v0"); a("v_mul_u32_u24 v54, 9216, v54"); a("v_and_b32 v55, 31, v0"); a("v_lshl_add_u32 v54, v55, 2, v54")
    a("s_cmp_ge_u32 s2, 128"); a(f"s_cbranch_scc1 L_{name}_w1")
    a("s_waitcnt vmcnt(24)"); a(f"s_branch L_{name}_w2")
    a.label(f"L_{name}_w1"); a("s_waitcnt vmcnt(12)")
    a.label(f"L_{name}_w2")
    for r in range(10, 15): a(f"v_lshlrev_b32 v{r}, 16, v{r}")
    a(f"v_mul_f32 v10, {hex(LOG2E)}, v10"); a(f"v_mul_f32 v14, {hex(LOG2E)}, v14")
    a("v_exp_f32 v10, v10"); a("v_exp_f32 v14, v14")
    a("v_cvt_pk_bf16_f32 v15, v10, v14"); unpack(a, 10, 14, 15)
    a("v_mul_f32 v10, v10, v14"); a("v_mul_f32 v11, v11, v14")
    a(f"v_mul_f32 v10, {hex(LOG2E | 0x80000000)}, v10"); a(f"v_mul_f32 v11, {hex(INV2PI)}, v11")
    E = {1: 72, 8: 74, 128: 76}
    for s_, e in E.items():
        t = 78
        a(f"v_mul_f32 v{t}, {f32(s_)}, v10"); a(f"v_mul_f32 v{t+1}, {f32(s_)}, v11")
        a(f"v_exp_f32 v{t}, v{t}"); a(f"v_fract_f32 v{t+1}, v{t+1}")
        a(f"v_cos_f32 v{e}, v{t+1}"); a(f"v_sin_f32 v{e+1}, v{t+1}")
        a(f"v_pk_mul_f32 v[{e}:{e+1}], v[{e}:{e+1}], v[{t}:{t+1}] op_sel:[0,0] op_sel_hi:[1,0]")
    X = [80 + 2*j for j in range(8)]; Y = 96
    pk = [100, 101, 102, 103]; pki = [0]
    def emit(row, z, neg):
        p = pk[pki[0] % 4]; pki[0] += 1
        a(f"v_cvt_pk_bf16_f32 v{p}, v{z}, {'-' if neg else ''}v{z+1}")
        a(f"ds_write_b32 v54, v{p} offset:{row*144}")
    a(f"v_mov_b32 v{X[0]}, v12"); a(f"v_mov_b32 v{X[0]+1}, v13")
    a(f"v_mov_b32 v{Y}, 1.0"); a(f"v_mov_b32 v{Y+1}, 0")
    yops = []
    for b in range(16):
        yops.append(("e", 48 + b, Y, False))
        if b < 15: yops.append(("m", Y, Y, E[8], 98))
    xops = [("e", 0, X[0], True)]
    for j in range(1, 8): xops += [("m", X[j], X[j-1], E[1], 104), ("e", j, X[j], True)]
    def blk(js, rows):
        o = []
        for k, j in enumerate(js): o.append(("m", X[j], X[j], E[128], 104 + 2*(k % 2)))
        for j, r in zip(js, rows): o.append(("e", r, X[j], True))
        return o
    xops += blk(range(8), range(8, 16))
    xops += blk([0, 2, 4, 6], range(16, 20)); xops += blk([0, 2, 4, 6], range(20, 24))
    for q in range(4): xops += blk([0, 4], [24 + 2*q, 25 + 2*q])
    for q in range(9): xops += blk([0], [32 + q])
    order = []
    yi = 0
    for i, o in enumerate(xops):
        order.append(o)
        serial = i < 15 or i >= len(xops) - 18
        if serial and yi < len(yops): order.append(yops[yi]); yi += 1
    order += yops[yi:]
    for o in order:
        if o[0] == "e": emit(o[1], o[2], o[3])
        else: cmul(a, o[1], o[2], o[3], o[4])
    a("s_waitcnt vmcnt(2)")
    a("s_mov_b32 s58, 0x05040100"); a("s_mov_b32 s59, 0x07060302"); a("s_mov_b32 s60, 0x3f803f80")
    for j in range(4):
        a(f"v_perm_b32 v{108+j}, v{25+2*j}, v{24+2*j}, s58"); a(f"v_perm_b32 v{112+j}, v{25+2*j}, v{24+2*j}, s59")
    a("v_lshlrev_b32 v55, 13, v0"); a("s_lshl_b32 s61, s28, 4"); a("s_add_u32 s62, s61, 4096")
    a("buffer_store_dwordx4 v[108:111], v55, s[48:51], s61 offen"); a("buffer_store_dwordx4 v[112:115], v55, s[48:51], s62 offen")
    for j in range(4):
        for r in range(2):
            src = 16 + 4*r + j
            a(f"v_dot2_f32_bf16 v{24+r}, v{src}, s60, {'0' if j == 0 else 'v%d' % (24+r)}")
            a(f"v_dot2_f32_bf16 v{26+r}, v{src}, v{src}, {'0' if j == 0 else 'v%d' % (26+r)}")
    for m in ["row_shr:1", "row_shr:2", "row_shr:4", "row_shr:8"]:
        for r in range(24, 28): a(f"v_add_f32_dpp v{r}, v{r}, v{r} {m} row_mask:0xf bank_mask:0xf bound_ctrl:1")
    for r in range(24, 28): a(f"v_add_f32_dpp v{r}, v{r}, v{r} row_bcast:15 row_mask:0xa bank_mask:0xf")
    for r in range(24, 28): a(f"v_add_f32_dpp v{r}, v{r}, v{r} row_bcast:31 row_mask:0xc bank_mask:0xf")
    a("s_lshl_b32 s61, s28, 5"); a(f"s_lshl_b32 s62, s{W}, 3"); a("s_add_u32 s61, s61, s62"); a("s_add_u32 s62, s61, 8192")
    a("v_mov_b32 v55, 0")
    a("s_mov_b32 exec_lo, 0"); a("s_mov_b32 exec_hi, 0x80000000")
    a("buffer_store_dwordx2 v[24:25], v55, s[52:55], s61 offen"); a("buffer_store_dwordx2 v[26:27], v55, s[52:55], s62 offen")
    a("s_mov_b64 exec, s[56:57]")
    CS = 86016
    a("s_cmp_ge_u32 s2, 128"); a(f"s_cbranch_scc1 L_{name}_skipc2")
    a("v_lshl_or_b32 v48, v49, 16, v48"); a("v_lshl_or_b32 v49, v51, 16, v50")
    a("s_cmp_lt_u32 s2, 64"); a(f"s_cbranch_scc1 L_{name}_fold")
    a("v_lshlrev_b32 v50, 2, v4"); a("v_sub_u32 v50, v3, v50")
    a("v_mov_b32 v51, 0x3f80"); a("v_mov_b32 v52, 0x3f800000"); a("v_mov_b32 v48, 0"); a("v_mov_b32 v49, 0")
    for t, (d, srcv) in enumerate([(48, 51), (48, 52), (49, 51), (49, 52)]):
        a(f"v_cmp_eq_u32 vcc, {t}, v50"); a(f"v_cndmask_b32 v{d}, v{d}, v{srcv}, vcc")
    a.label(f"L_{name}_fold")
    a("s_nop 1")
    D0 = 116
    for i in range(8): a(f"v_mfma_f32_16x16x16_bf16 v[{D0+4*i}:{D0+4*i+3}], v[{32+2*i}:{33+2*i}], v[48:49], 0")
    a(f"v_pk_add_f32 v[50:51], v[{D0}:{D0+1}], v[{D0+2}:{D0+3}]")
    for i in range(2, 16): a(f"v_pk_add_f32 v[50:51], v[50:51], v[{D0+2*i}:{D0+2*i+1}]")
    a("v_add_f32 v50, v50, v51")
    a("v_mov_b32 v51, v50"); a("v_permlane32_swap_b32 v50, v51"); a("v_add_f32 v50, v50, v51")
    a("v_mov_b32 v51, v50"); a("v_permlane16_swap_b32 v50, v51"); a("v_add_f32 v50, v50, v51")
    a(f"s_lshl_b32 s36, s{W}, 2"); a(f"s_add_u32 s36, s36, {CS}"); a("v_lshl_add_u32 v52, v3, 4, s36")
    a("ds_write_b32 v52, v50")
    a.label(f"L_{name}_skipc2")
    a("s_waitcnt lgkmcnt(0)"); a("s_barrier")
    a(f"s_and_b32 s63, s{W}, 1")
    a("s_mul_i32 s64, s26, 36864"); a("v_mul_u32_u24 v54, 9216, v4"); a("v_mul_u32_u24 v55, 144, v3")
    a("v_add3_u32 v54, v54, v55, s64")
    a(f"s_mul_i32 s65, s63, {32*144}"); a("v_add_u32 v55, s65, v54")
    FY, FX0, FX1 = 148, 180, 212
    for s_ in range(8):
        a(f"ds_read_b128 v[{FY+4*s_}:{FY+4*s_+3}], v54 offset:{48*144+16*s_}")
        a(f"ds_read_b128 v[{FX0+4*s_}:{FX0+4*s_+3}], v55 offset:{16*s_}")
        a(f"ds_read_b128 v[{FX1+4*s_}:{FX1+4*s_+3}], v55 offset:{16*144+16*s_}")
        if s_ == 3: a("s_waitcnt lgkmcnt(8)")
    a("v_and_b32 v24, 7, v3"); a("v_lshrrev_b32 v25, 3, v3"); a("v_lshl_add_u32 v24, v25, 7, v24")
    a("v_lshlrev_b32 v26, 7, v3"); a("v_add_u32 v26, 1024, v26")
    a("s_cmp_eq_u32 s63, 0"); a("s_cselect_b64 vcc, -1, 0"); a("v_cndmask_b32 v24, v26, v24, vcc")
    a("v_lshrrev_b32 v25, 2, v3"); a("v_lshlrev_b32 v25, 7, v25"); a("v_and_b32 v26, 3, v3"); a("v_lshl_add_u32 v25, v26, 1, v25"); a("v_add_u32 v25, 256, v25")
    a("v_lshrrev_b32 v26, 1, v3"); a("v_lshlrev_b32 v26, 7, v26"); a("v_and_b32 v27, 1, v3"); a("v_lshl_add_u32 v26, v27, 2, v26")
    a("v_cmp_gt_u32 vcc, 8, v3"); a("v_cndmask_b32 v25, v26, v25, vcc")
    a(f"s_mul_i32 s64, s26, 6144"); a(f"s_add_u32 s64, s64, {TB}"); a("v_lshl_add_u32 v26, v4, 6, s64")
    a("v_lshl_add_u32 v24, v24, 1, v26"); a("v_lshl_add_u32 v25, v25, 1, v26")
    a("v_add_f32 v14, v14, v14")
    a("s_waitcnt lgkmcnt(0)")
    for s_ in range(8):
        c0 = "0" if s_ == 0 else "v[28:31]"; c1 = "0" if s_ == 0 else "v[16:19]"
        a(f"v_mfma_f32_16x16x32_bf16 v[28:31], v[{FY+4*s_}:{FY+4*s_+3}], v[{FX0+4*s_}:{FX0+4*s_+3}], {c0}")
        a(f"v_mfma_f32_16x16x32_bf16 v[16:19], v[{FY+4*s_}:{FY+4*s_+3}], v[{FX1+4*s_}:{FX1+4*s_+3}], {c1}")
    def twrite(acc, addr):
        for i in range(4): a(f"v_mul_f32 v{acc+i}, v{acc+i}, v14")
        a(f"v_cvt_pk_bf16_f32 v{acc}, v{acc}, v{acc+1}"); a(f"v_cvt_pk_bf16_f32 v{acc+2}, v{acc+2}, v{acc+3}")
        a(f"ds_write_b16 v{addr}, v{acc}"); a(f"ds_write_b16_d16_hi v{addr}, v{acc} offset:16")
        a(f"ds_write_b16 v{addr}, v{acc+2} offset:32"); a(f"ds_write_b16_d16_hi v{addr}, v{acc+2} offset:48")
    twrite(28, 24)
    a("s_cmp_eq_u32 s63, 0"); a(f"s_cbranch_scc0 L_{name}_t1")
    a("s_nop 7")
    twrite(16, 25)
    a.label(f"L_{name}_t1")
    a("s_cmp_ge_u32 s2, 128"); a(f"s_cbranch_scc1 L_{name}_skipc3")
    a(f"v_lshlrev_b32 v52, 4, v3"); a(f"v_add_u32 v52, {CS}, v52")
    a("ds_read_b128 v[32:35], v52")
    srd(a, 64, 22, WF, WF_SZ + WO_SZ)
    a("s_cmp_lt_u32 s2, 96"); a(f"s_cbranch_scc0 L_{name}_wo")
    a("s_lshr_b32 s36, s2, 5"); a("s_bfe_u32 s37, s2, 0x40001"); a("s_mul_i32 s37, s37, 98304"); a("s_lshl_b32 s36, s36, 10"); a("s_add_u32 s36, s36, s37")
    a("s_and_b32 s37, s2, 1"); a("s_lshl_b32 s37, s37, 6"); a("s_add_u32 s36, s36, s37")
    a(f"s_mul_i32 s37, s{W}, {8*3072}"); a("s_add_u32 s36, s36, s37")
    a("s_mov_b32 s68, 3072"); a(f"s_mov_b32 s69, {f32(1/512)}")
    a("v_lshrrev_b32 v52, 2, v3"); a("v_lshlrev_b32 v52, 7, v52"); a("v_and_b32 v53, 3, v3"); a("v_lshl_add_u32 v52, v53, 4, v52")
    a(f"s_branch L_{name}_wj")
    a.label(f"L_{name}_wo")
    a("s_sub_u32 s36, s2, 96"); a("s_lshr_b32 s37, s36, 1"); a("s_lshl_b32 s37, s37, 15"); a("s_and_b32 s36, s36, 1"); a("s_lshl_b32 s36, s36, 8")
    a("s_add_u32 s36, s36, s37"); a(f"s_add_u32 s36, s36, {WF_SZ}")
    a(f"s_lshl_b32 s37, s{W}, 13"); a("s_add_u32 s36, s36, s37")
    a("s_mov_b32 s68, 1024"); a("s_mov_b32 s69, 0")
    a("v_lshlrev_b32 v52, 4, v3")
    a.label(f"L_{name}_wj")
    a("v_and_b32 v53, 1, v4"); a("v_lshl_add_u32 v52, v53, 9, v52")
    a("v_lshrrev_b32 v53, 1, v4"); a("v_mul_lo_u32 v53, v53, s68"); a("v_add_u32 v52, v52, v53")
    a("s_lshl_b32 s68, s68, 1")
    a("s_waitcnt lgkmcnt(0)")
    a("v_add_f32 v32, v32, v33"); a("v_add_f32 v34, v34, v35"); a("v_add_f32 v32, v32, v34"); a("v_mul_f32 v32, s69, v32"); a("v_mov_b32 v33, v32")
    for i in range(16): a(f"v_pk_add_f32 v[{D0+2*i}:{D0+2*i+1}], v[{D0+2*i}:{D0+2*i+1}], v[32:33] neg_lo:[0,1] neg_hi:[0,1]")
    for b in range(4):
        o = 36 + 4*b
        for i in range(4): a(f"v_cvt_pk_bf16_f32 v{o+i}, v{D0+8*b+2*i}, v{D0+8*b+2*i+1}")
        a(f"buffer_store_dwordx4 v[{o}:{o+3}], v52, s[64:67], s36 offen")
        if b < 3: a("s_add_u32 s36, s36, s68")
    a.label(f"L_{name}_skipc3")
    a("s_waitcnt lgkmcnt(0)"); a("s_barrier")
    for c in range(2):
        for j in range(8): a(f"ds_read_u16 v{72+8*c+j}, v{60+j} offset:{6144*c}")
    a("v_lshlrev_b32 v54, 4, v0"); a(f"s_add_u32 s39, s38, {KROW}")
    for c in range(2):
        a(f"s_waitcnt lgkmcnt({8 if c == 0 else 0})")
        for j in range(4): a(f"v_lshl_or_b32 v{88+4*c+j}, v{72+8*c+2*j+1}, 16, v{72+8*c+2*j}")
        a(f"buffer_store_dwordx4 v[{88+4*c}:{91+4*c}], v54, s[44:47], s{38+c} offen offset:{KPRE}")
    a.label(f"L_{name}_end"); a("s_endpgm")
    return a.render() + kernel_desc(name, 244) + "\n", 86272

def ln_row_stats(a, s1, s2, n, tmp, mean_needed=True):
    a(f"s_mov_b32 s70, {f32(1/512)}"); a("s_mov_b32 s71, s70"); a(f"s_mov_b32 s72, {f32(1e-5)}"); a("s_mov_b32 s73, s72")
    if n >= 2:
        for i in range(0, n, 2): a(f"v_pk_mul_f32 v[{s1+i}:{s1+i+1}], v[{s1+i}:{s1+i+1}], s[70:71]")
        for i in range(0, n, 2): a(f"v_pk_mul_f32 v[{s2+i}:{s2+i+1}], v[{s2+i}:{s2+i+1}], s[70:71]")
        for i in range(0, n, 2): a(f"v_pk_fma_f32 v[{s2+i}:{s2+i+1}], v[{s1+i}:{s1+i+1}], v[{s1+i}:{s1+i+1}], v[{s2+i}:{s2+i+1}] neg_lo:[1,0,0] neg_hi:[1,0,0]")
        for i in range(n): a(f"v_max_f32 v{s2+i}, 0, v{s2+i}")
        if mean_needed: rnd_pairs(a, list(range(s1, s1+n)), tmp)
        rnd_pairs(a, list(range(s2, s2+n)), tmp)
        for i in range(0, n, 2): a(f"v_pk_add_f32 v[{s2+i}:{s2+i+1}], v[{s2+i}:{s2+i+1}], s[72:73]")
        rnd_pairs(a, list(range(s2, s2+n)), tmp)
        for i in range(n): a(f"v_sqrt_f32 v{s2+i}, v{s2+i}")
        rnd_pairs(a, list(range(s2, s2+n)), tmp)
        for i in range(n): a(f"v_rcp_f32 v{s2+i}, v{s2+i}")
    else:
        def r1(r): a(f"v_cvt_pk_bf16_f32 v{r}, v{r}, v{r}"); a(f"v_lshlrev_b32 v{r}, 16, v{r}")
        a(f"v_mul_f32 v{s1}, s70, v{s1}"); a(f"v_mul_f32 v{s2}, s70, v{s2}")
        a(f"v_fma_f32 v{s2}, -v{s1}, v{s1}, v{s2}"); a(f"v_max_f32 v{s2}, 0, v{s2}")
        r1(s2); a(f"v_add_f32 v{s2}, s72, v{s2}"); r1(s2); a(f"v_sqrt_f32 v{s2}, v{s2}"); r1(s2); a(f"v_rcp_f32 v{s2}, v{s2}")

def gen_conv(name, xin, xout, st):
    a = Asm(); a.raw(kernel_header(name))
    a("s_cmp_ge_u32 s2, 256"); a(f"s_cbranch_scc1 L_{name}_end")
    a("s_load_dwordx2 s[4:5], s[0:1], 48")
    a("s_load_dwordx2 s[22:23], s[0:1], 104")
    W = 24
    a("v_lshrrev_b32 v2, 6, v0"); a("v_and_b32 v1, 63, v0"); a(f"v_readfirstlane_b32 s{W}, v2")
    a("v_and_b32 v3, 15, v0"); a("v_bfe_u32 v4, v0, 4, 2")
    UB = 33280; XB = 42496
    a(f"s_lshr_b32 s25, s{W}, 1"); a(f"s_and_b32 s26, s{W}, 1")
    a("s_lshl_b32 s27, s2, 1"); a("s_add_u32 s28, s27, s25")
    a("v_lshlrev_b32 v5, 5, v0"); a("v_lshlrev_b32 v6, 4, v0"); a("v_lshlrev_b32 v7, 4, v1")
    a("v_lshlrev_b32 v8, 5, v3"); a("v_lshl_add_u32 v8, v4, 3, v8")
    a("s_lshl_b32 s29, s27, 12"); a("s_add_u32 s30, s29, 4096")
    a(f"s_mul_i32 s31, s28, {KROW}"); a("s_lshl_b32 s32, s26, 2"); a("s_sub_u32 s31, s31, s32"); a(f"s_add_u32 s31, s31, {KPRE}")
    a("s_sub_u32 s32, s31, 2")
    a(f"s_mul_i32 s33, s{W}, {2*4160}"); a("s_add_u32 s33, s33, 32"); a("s_add_u32 s34, s33, 4160")
    a("s_lshl_b32 s35, s28, 12"); a("s_lshl_b32 s36, s26, 11"); a("s_add_u32 s35, s35, s36")
    a("s_lshl_b32 s36, s28, 1"); a("v_mov_b32 v9, s36")
    a("s_movk_i32 s37, 0x2000")
    a("s_waitcnt lgkmcnt(0)")
    srd(a, 40, 22, st, ST_SZ); srd(a, 44, 22, xin, XT_SZ); srd(a, 48, 22, KG, KG_SZ); srd(a, 52, 22, xout, XT_SZ)
    S1, S2, XA = 16, 24, 32
    a(f"buffer_load_dwordx4 v[{S1}:{S1+3}], v5, s[40:43], 0 offen"); a(f"buffer_load_dwordx4 v[{S1+4}:{S1+7}], v5, s[40:43], 0 offen offset:16")
    a(f"buffer_load_dwordx4 v[{S2}:{S2+3}], v5, s[40:43], s37 offen"); a(f"buffer_load_dwordx4 v[{S2+4}:{S2+7}], v5, s[40:43], s37 offen offset:16")
    a(f"buffer_load_dwordx4 v[{XA}:{XA+3}], v6, s[44:47], s29 offen"); a(f"buffer_load_dwordx4 v[{XA+4}:{XA+7}], v6, s[44:47], s30 offen")
    for e in range(2):
        a(f"s_mov_b32 m0, s{33+e}")
        for i in range(4): a(f"buffer_load_dwordx4 v7, s[48:51], s{31+e} offen offset:{1024*i} lds")
    RES = 200
    for i in range(4): a(f"buffer_load_dwordx2 v[{RES+2*i}:{RES+2*i+1}], v8, s[44:47], s35 offen offset:{512*i}")
    a("global_load_ushort v10, v9, s[4:5]")
    for r in range(12, 16): a(f"v_mov_b32 v{r}, 0")
    a("v_lshrrev_b32 v9, 1, v3"); a("v_mul_u32_u24 v9, 4160, v9"); a("v_and_b32 v11, 1, v0"); a("v_lshl_add_u32 v9, v11, 4, v9")
    a("ds_write_b128 v9, v[12:15]")
    a("v_lshrrev_b32 v9, 5, v1"); a("v_mul_u32_u24 v9, 4608, v9"); a("v_and_b32 v11, 31, v0"); a("v_lshl_add_u32 v9, v11, 4, v9")
    a(f"ds_write_b128 v9, v[12:15] offset:{UB}")
    VA, VB = 9, 11
    a("v_lshrrev_b32 v9, 2, v3"); a("v_mul_u32_u24 v9, 4160, v9"); a("v_and_b32 v11, 3, v0"); a("v_lshl_add_u32 v9, v11, 3, v9")
    a("v_lshlrev_b32 v11, 4, v4"); a("v_sub_u32 v9, v9, v11")
    a("s_mul_i32 s36, s25, 16640"); a("s_lshl_b32 s38, s26, 8"); a("s_add_u32 s36, s36, s38"); a("s_add_u32 s36, s36, 56")
    a("v_add_u32 v9, s36, v9")
    a("v_lshl_add_u32 v11, v3, 5, v11")
    a("s_mul_i32 s36, s25, 4608"); a(f"s_add_u32 s39, s36, {UB + 512}"); a("s_sub_u32 s36, s36, s38"); a(f"s_add_u32 s36, s36, {UB + 480 - 192}")
    a("v_add_u32 v11, s36, v11")
    a("s_waitcnt vmcnt(15)")
    ln_row_stats(a, S1, S2, 8, [40, 41, 42, 43])
    a("s_waitcnt vmcnt(13)")
    for c in range(2):
        x = 44
        for j in range(4): unpack(a, x+2*j, x+2*j+1, XA+4*c+j)
        for j in range(4): a(f"v_pk_add_f32 v[{x+2*j}:{x+2*j+1}], v[{x+2*j}:{x+2*j+1}], v[{S1+2*j}:{S1+2*j+1}] neg_lo:[0,1] neg_hi:[0,1]")
        rnd_pairs(a, list(range(x, x+8)), [40, 41, 42, 43])
        for j in range(4): a(f"v_pk_mul_f32 v[{x+2*j}:{x+2*j+1}], v[{x+2*j}:{x+2*j+1}], v[{S2+2*j}:{S2+2*j+1}]")
        for j in range(4): a(f"v_cvt_pk_bf16_f32 v{52+4*c+j}, v{x+2*j}, v{x+2*j+1}")
        a(f"ds_write_b128 v6, v[{52+4*c}:{55+4*c}] offset:{UB + 4608*c + 512}")
    a("s_waitcnt vmcnt(5) lgkmcnt(0)"); a("s_barrier")
    ACC = 16; FA = [64, 128]; FB = [96, 160]
    def reads(rr):
        b = rr % 2; L = []
        def ra(q): return [f"ds_read_b64_tr_b16 v[{FA[b]+4*q}:{FA[b]+4*q+1}], v{VA} offset:{8+512*q+64*rr}",
                           f"ds_read_b64_tr_b16 v[{FA[b]+4*q+2}:{FA[b]+4*q+3}], v{VA} offset:{512*q+64*rr}"]
        def rb(j): return [f"ds_read_b128 v[{FB[b]+4*j}:{FB[b]+4*j+3}], v{VB} offset:{512*j+64*(3-rr)}"]
        L += ra(0)
        for j in range(8): L += rb(j)
        for q in range(1, 8): L += ra(q)
        return L
    for t in reads(0): a(t)
    for rr in range(4):
        b = rr % 2
        nxt = reads(rr+1) if rr < 3 else []
        a("s_waitcnt lgkmcnt(0)")
        k = 0
        for q in range(8):
            for jt in range(q, 8):
                cin = "0" if (rr == 0 and q == 0) else f"v[{ACC+4*jt}:{ACC+4*jt+3}]"
                a(f"v_mfma_f32_16x16x32_bf16 v[{ACC+4*jt}:{ACC+4*jt+3}], v[{FA[b]+4*q}:{FA[b]+4*q+3}], v[{FB[b]+4*(jt-q)}:{FB[b]+4*(jt-q)+3}], {cin}")
                if k < len(nxt): a(nxt[k])
                k += 1
    a(f"s_lshl_b32 s36, s{W}, 12"); a(f"s_add_u32 s36, s36, {XB}"); a("v_add_u32 v5, s36, v7")
    a(f"s_xor_b32 s38, s{W}, 1"); a("s_lshl_b32 s38, s38, 12"); a(f"s_add_u32 s38, s38, {XB}"); a("v_add_u32 v6, s38, v7")
    a("s_lshl_b32 s38, s26, 11"); a("s_add_u32 s39, s39, s38"); a("v_add_u32 v12, s39, v8")
    for i in range(4): a(f"ds_read_b64 v[{64+2*i}:{65+2*i}], v12 offset:{512*i}")
    a("s_cmp_eq_u32 s26, 0"); a(f"s_cbranch_scc0 L_{name}_x1")
    a("s_nop 7")
    for i in range(4): a(f"ds_write_b128 v5, v[{ACC+16+4*i}:{ACC+19+4*i}] offset:{1024*i}")
    a(f"s_branch L_{name}_x2")
    a.label(f"L_{name}_x1")
    a("s_nop 7")
    for i in range(4): a(f"ds_write_b128 v5, v[{ACC+4*i}:{ACC+3+4*i}] offset:{1024*i}")
    a("s_nop 1")
    for i in range(16): a(f"v_mov_b32 v{ACC+i}, v{ACC+16+i}")
    a.label(f"L_{name}_x2")
    a("s_waitcnt vmcnt(0) lgkmcnt(0)"); a("s_barrier")
    for i in range(4): a(f"ds_read_b128 v[{72+4*i}:{75+4*i}], v6 offset:{1024*i}")
    a("v_lshlrev_b32 v10, 16, v10"); a("v_mov_b32 v11, v10")
    U = 96; XR = 112
    for i in range(8): unpack(a, U+2*i, U+2*i+1, 64+i)
    for i in range(8): a(f"v_pk_mul_f32 v[{U+2*i}:{U+2*i+1}], v[{U+2*i}:{U+2*i+1}], v[10:11]")
    T8 = list(range(128, 136))
    rnd_pairs(a, list(range(U, U+16)), T8)
    for i in range(8): unpack(a, XR+2*i, XR+2*i+1, RES+i)
    a("s_waitcnt lgkmcnt(0)")
    for i in range(8): a(f"v_pk_add_f32 v[{ACC+2*i}:{ACC+2*i+1}], v[{ACC+2*i}:{ACC+2*i+1}], v[{72+2*i}:{73+2*i}]")
    rnd_pairs(a, list(range(ACC, ACC+16)), T8)
    for i in range(8): a(f"v_pk_add_f32 v[{ACC+2*i}:{ACC+2*i+1}], v[{ACC+2*i}:{ACC+2*i+1}], v[{U+2*i}:{U+2*i+1}]")
    rnd_pairs(a, list(range(ACC, ACC+16)), T8)
    for i in range(8): a(f"v_pk_add_f32 v[{ACC+2*i}:{ACC+2*i+1}], v[{ACC+2*i}:{ACC+2*i+1}], v[{XR+2*i}:{XR+2*i+1}]")
    for i in range(8): a(f"v_cvt_pk_bf16_f32 v{T8[i]}, v{ACC+2*i}, v{ACC+2*i+1}")
    for i in range(4): a(f"buffer_store_dwordx2 v[{T8[2*i]}:{T8[2*i]+1}], v8, s[52:55], s35 offen offset:{512*i}")
    a.label(f"L_{name}_end"); a("s_endpgm")
    return a.render() + kernel_desc(name, 208) + "\n", XB + 16384

def softmax_pair(a, acc, P, M, c, t):
    mx, mn = t, t + 2
    a(f"v_max3_f32 v{mx}, v{acc}, v{acc+1}, v{acc+2}"); a(f"v_min3_f32 v{mn}, v{acc}, v{acc+1}, v{acc+2}")
    for i in range(3, 15, 2):
        a(f"v_max3_f32 v{mx}, v{mx}, v{acc+i}, v{acc+i+1}"); a(f"v_min3_f32 v{mn}, v{mn}, v{acc+i}, v{acc+i+1}")
    a(f"v_max_f32 v{mx}, v{mx}, v{acc+15}"); a(f"v_min_f32 v{mn}, v{mn}, v{acc+15}")
    a(f"v_mul_f32 v{mx}, v{mx}, v{c}"); a(f"v_mul_f32 v{mn}, v{mn}, v{c}")
    for i in range(0, 16, 2):
        a(f"v_pk_fma_f32 v[{P+i}:{P+i+1}], v[{acc+i}:{acc+i+1}], v[{c}:{c+1}], v[{mx}:{mx+1}] op_sel_hi:[1,1,0] neg_lo:[0,0,1] neg_hi:[0,0,1]")
        a(f"v_pk_fma_f32 v[{M+i}:{M+i+1}], v[{acc+i}:{acc+i+1}], v[{c}:{c+1}], v[{mn}:{mn+1}] op_sel_hi:[1,1,0] neg_lo:[1,0,0] neg_hi:[1,0,0]")
    for i in range(16): a(f"v_exp_f32 v{P+i}, v{P+i}")
    for i in range(16): a(f"v_exp_f32 v{M+i}, v{M+i}")
    sp, sm = t, t + 2
    a(f"v_pk_add_f32 v[{sp}:{sp+1}], v[{P}:{P+1}], v[{P+2}:{P+3}]"); a(f"v_pk_add_f32 v[{sm}:{sm+1}], v[{M}:{M+1}], v[{M+2}:{M+3}]")
    for i in range(4, 16, 2):
        a(f"v_pk_add_f32 v[{sp}:{sp+1}], v[{sp}:{sp+1}], v[{P+i}:{P+i+1}]"); a(f"v_pk_add_f32 v[{sm}:{sm+1}], v[{sm}:{sm+1}], v[{M+i}:{M+i+1}]")
    a(f"v_add_f32 v{sp}, v{sp}, v{sp+1}"); a(f"v_add_f32 v{sm}, v{sm}, v{sm+1}")
    a(f"v_rcp_f32 v{sp}, v{sp}"); a(f"v_rcp_f32 v{sm}, v{sm}")
    for i in range(0, 16, 2):
        a(f"v_pk_mul_f32 v[{P+i}:{P+i+1}], v[{P+i}:{P+i+1}], v[{sp}:{sp+1}] op_sel_hi:[1,0]")
        a(f"v_pk_mul_f32 v[{M+i}:{M+i+1}], v[{M+i}:{M+i+1}], v[{sm}:{sm+1}] op_sel_hi:[1,0]")

def gen_qkv(name, xin, kv):
    a = Asm(); a.raw(kernel_header(name))
    a("s_cmp_ge_u32 s2, 256"); a(f"s_cbranch_scc1 L_{name}_end")
    a("s_load_dwordx2 s[22:23], s[0:1], 104")
    W = 24; SLOT = 28672; NS = 4; IMG = NS * SLOT; RS = 224
    a("v_lshrrev_b32 v2, 6, v0"); a("v_and_b32 v1, 63, v0"); a(f"v_readfirstlane_b32 s{W}, v2")
    a("v_and_b32 v3, 15, v0"); a("v_bfe_u32 v4, v0, 4, 2")
    a("s_and_b32 s25, s2, 7"); a("s_lshl_b32 s25, s25, 1"); a("s_bfe_u32 s26, s2, 0x10003"); a("s_add_u32 s25, s25, s26")
    a("s_lshr_b32 s26, s2, 4")
    a("v_bfe_u32 v5, v0, 2, 2"); a("v_xor_b32 v5, v5, v4"); a("v_lshlrev_b32 v5, 6, v5"); a("v_lshl_add_u32 v5, v4, 12, v5")
    a("v_and_b32 v6, 3, v0"); a("v_lshl_add_u32 v5, v6, 4, v5")
    a("v_lshlrev_b32 v7, 4, v1")
    a(f"s_lshl_b32 s28, s{W}, 16"); a("s_lshl_b32 s27, s25, 8"); a("s_add_u32 s28, s28, s27")
    for i in range(1, 4): a(f"s_add_u32 s{28+i}, s28, {i*(16384-1024)}")
    a("s_mul_i32 s32, s26, 98304"); a(f"s_mul_i32 s27, s{W}, 3072"); a("s_add_u32 s32, s32, s27")
    a(f"s_lshl_b32 s33, s{W}, 12"); a("s_add_u32 s34, s27, 16384")
    a("s_waitcnt lgkmcnt(0)")
    srd(a, 40, 22, xin, XT_SZ); srd(a, 44, 22, WF, WF_SZ)
    def dma(c):
        sl = (c % NS) * SLOT
        a(f"s_add_u32 m0, s33, {sl}")
        for i in range(4): a(f"buffer_load_dwordx4 v5, s[40:43], s{28+i} offen offset:{1024*i} lds")
        a(f"s_add_u32 m0, s34, {sl}")
        for i in range(3): a(f"buffer_load_dwordx4 v7, s[44:47], s32 offen offset:{1024*i} lds")
        if c < 7:
            for i in range(4): a(f"s_add_u32 s{28+i}, s{28+i}, {64*4096}")
            a("s_add_u32 s32, s32, 12288")
    dma(0); dma(1)
    srd(a, 48, 22, PHIQ, PHIQ_SZ); srd(a, 52, 22, kv, KV_SZ)
    VX, VX2, VW, VW2 = 8, 9, 10, 11
    a("v_bfe_u32 v8, v0, 2, 2")
    a(f"v_xor_b32 v9, s{W}, v8"); a("v_lshlrev_b32 v9, 6, v9"); a("v_lshl_add_u32 v8, v8, 8, v9")
    a("v_lshl_add_u32 v8, v6, 3, v8")
    a("v_and_b32 v9, 1, v4"); a("v_lshl_add_u32 v8, v9, 5, v8")
    a("v_lshrrev_b32 v9, 1, v4"); a("v_lshl_add_u32 v8, v9, 11, v8")
    a(f"v_add_u32 v9, {2*SLOT}, v8")
    a("v_add_u32 v10, 16384, v7"); a(f"v_add_u32 v11, {2*SLOT}, v10")
    SEL = 12
    a("v_lshrrev_b32 v12, 2, v3"); a("v_xor_b32 v12, v12, v4"); a("v_and_b32 v12, 1, v12"); a("v_cmp_eq_u32 vcc, 0, v12")
    a("v_mov_b32 v13, 0x3f803f80"); a("v_cndmask_b32 v12, 0, v13, vcc")
    for r in (13, 14, 15): a(f"v_mov_b32 v{r}, v12")
    ACC = [16, 32, 48]; AS2 = 64; AS1 = 80
    FX = [84, 88]; FW = [[92, 96, 100], [104, 108, 112]]
    def reads(c, s_):
        b = (c*4 + s_) % 2; sl = c % NS
        vx = VX if sl < 2 else VX2; vw = VW if sl < 2 else VW2; o = (sl % 2) * SLOT
        L = [f"ds_read_b64_tr_b16 v[{FX[b]}:{FX[b]+1}], v{vx} offset:{o + 4096*s_}",
             f"ds_read_b64_tr_b16 v[{FX[b]+2}:{FX[b]+3}], v{vx} offset:{o + 4096*s_ + 1024}"]
        for j in range(3): L.append(f"ds_read_b128 v[{FW[b][j]}:{FW[b][j]+3}], v{vw} offset:{o + (3*s_+j)*1024}")
        return L
    for c in range(8):
        if c + 2 < 8: dma(c + 2)
        a(f"s_waitcnt vmcnt({14 if c < 6 else (7 if c == 6 else 0)})"); a("s_barrier")
        for t in reads(c, 0): a(t)
        for s_ in range(4):
            b = (c*4 + s_) % 2; first = (c == 0 and s_ == 0)
            nxt = reads(c, s_+1) if s_ < 3 else []
            a("s_waitcnt lgkmcnt(0)")
            x = f"v[{FX[b]}:{FX[b]+3}]"
            M = [f"v_mfma_f32_32x32x16_bf16 v[{ACC[j]}:{ACC[j]+15}], v[{FW[b][j]}:{FW[b][j]+3}], {x}, " + ("0" if first else f"v[{ACC[j]}:{ACC[j]+15}]") for j in range(3)]
            M.append(f"v_mfma_f32_32x32x16_bf16 v[{AS2}:{AS2+15}], {x}, {x}, " + ("0" if first else f"v[{AS2}:{AS2+15}]"))
            M.append(f"v_mfma_f32_16x16x32_bf16 v[{AS1}:{AS1+3}], v[{SEL}:{SEL+3}], {x}, " + ("0" if first else f"v[{AS1}:{AS1+3}]"))
            a(M[0])
            for t in nxt[:2]: a(t)
            a(M[1])
            for t in nxt[2:4]: a(t)
            a(M[2])
            for t in nxt[4:]: a(t)
            a(M[3]); a(M[4])
    masks = {16: 0xffff0000, 8: 0xff00ff00, 2: 0xcccccccc, 1: 0xaaaaaaaa, 4: 0xf0f0f0f0}
    for k, (bit, m) in enumerate(masks.items()):
        a(f"s_mov_b32 s{56+2*k}, {hex(m)}"); a(f"s_mov_b32 s{57+2*k}, {hex(m)}")
    for i in range(8): a(f"v_cndmask_b32 v{AS2+i}, v{AS2+i}, v{AS2+8+i}, s[56:57]")
    for i in range(4): a(f"v_cndmask_b32 v{AS2+i}, v{AS2+i}, v{AS2+4+i}, s[58:59]")
    for i in range(2): a(f"v_cndmask_b32 v{AS2+i}, v{AS2+i}, v{AS2+2+i}, s[60:61]")
    a(f"v_cndmask_b32 v{AS2}, v{AS2}, v{AS2+1}, s[62:63]")
    a(f"v_mov_b32 v{AS2+1}, v{AS2}"); a(f"v_permlane32_swap_b32 v{AS2}, v{AS2+1}")
    a(f"v_cndmask_b32 v{AS2}, v{AS2}, v{AS2+1}, s[64:65]")
    ln_row_stats(a, AS1, AS2, 1, None)
    R = 66; C = 68
    a(f"v_mov_b32 v{R}, v{AS2}"); a(f"v_mov_b32 v{R+1}, v{AS2}")
    a(f"v_mul_f32 v{C}, {hex(LOG2E)}, v{AS2}"); a(f"v_mov_b32 v{C+1}, v{C}")
    P, M_ = 84, 100; T = 70; O = 116
    softmax_pair(a, ACC[1], P, M_, C, T)
    for i in range(8): a(f"v_cvt_pk_bf16_f32 v{O+i}, v{P+2*i}, v{P+2*i+1}")
    for i in range(8): a(f"v_cvt_pk_bf16_f32 v{O+8+i}, v{M_+2*i}, v{M_+2*i+1}")
    a("v_and_b32 v5, 31, v0"); a(f"s_lshl_b32 s27, s{W}, 5"); a("v_add_u32 v5, s27, v5"); a(f"v_mul_u32_u24 v5, {RS}, v5"); a(f"v_add_u32 v5, {IMG}, v5")
    a("v_lshrrev_b32 v6, 5, v1"); a("v_lshl_add_u32 v8, v6, 6, v5"); a("v_lshl_add_u32 v9, v6, 5, v5")
    for i in range(4): a(f"ds_write_b128 v8, v[{O+4*i}:{O+4*i+3}] offset:{16*i}")
    for i in range(8): a(f"v_pk_mul_f32 v[{ACC[2]+2*i}:{ACC[2]+2*i+1}], v[{ACC[2]+2*i}:{ACC[2]+2*i+1}], v[{R}:{R+1}]")
    for i in range(8): a(f"v_cvt_pk_bf16_f32 v{132+i}, v{ACC[2]+2*i}, v{ACC[2]+2*i+1}")
    for i in range(2): a(f"ds_write_b128 v9, v[{132+4*i}:{135+4*i}] offset:{128+16*i}")
    a("s_waitcnt lgkmcnt(0)"); a("s_barrier")
    a(f"s_and_b32 s27, s{W}, 1"); a(f"s_lshr_b32 s28, s{W}, 1")
    a("v_bfe_u32 v5, v0, 2, 2"); a("v_lshl_add_u32 v5, v4, 2, v5"); a(f"v_mul_u32_u24 v5, {RS}, v5"); a("v_and_b32 v6, 3, v0"); a("v_lshl_add_u32 v5, v6, 3, v5")
    a("s_lshl_b32 s29, s27, 5"); a(f"s_add_u32 s29, s29, {IMG + 128}"); a("v_add_u32 v8, s29, v5")
    a("s_lshl_b32 s29, s27, 6"); a("s_lshl_b32 s30, s28, 5"); a("s_add_u32 s29, s29, s30"); a(f"s_add_u32 s29, s29, {IMG}"); a("v_add_u32 v9, s29, v5")
    FV, FP = 140, 156
    for ks in range(4):
        for hf in range(2):
            a(f"ds_read_b64_tr_b16 v[{FV+4*ks+2*hf}:{FV+4*ks+2*hf+1}], v8 offset:{(32*ks+16*hf)*RS}")
            a(f"ds_read_b64_tr_b16 v[{FP+4*ks+2*hf}:{FP+4*ks+2*hf+1}], v9 offset:{(32*ks+16*hf)*RS}")
    for r in range(12, 16): a(f"v_mov_b32 v{r}, 0x3f803f80")
    a("s_lshl_b32 s29, s26, 1"); a("s_add_u32 s29, s29, s27"); a("s_lshl_b32 s29, s29, 1"); a("s_add_u32 s29, s29, s28")
    a("s_lshl_b32 s30, s29, 10"); a("s_lshl_b32 s31, s29, 6"); a("s_add_u32 s31, s31, 65536")
    a("v_lshlrev_b32 v10, 2, v3"); a("v_lshl_add_u32 v11, v4, 8, v10")
    for ks in range(4):
        a(f"s_waitcnt lgkmcnt({12 - 4*ks})")
        a(f"v_mfma_f32_16x16x32_bf16 v[172:175], v[{FV+4*ks}:{FV+4*ks+3}], v[{FP+4*ks}:{FP+4*ks+3}], " + ("0" if ks == 0 else "v[172:175]"))
        a(f"v_mfma_f32_16x16x32_bf16 v[176:179], v[12:15], v[{FP+4*ks}:{FP+4*ks+3}], " + ("0" if ks == 0 else "v[176:179]"))
    for i in range(4): a(f"buffer_atomic_add_f32 v{172+i}, v11, s[52:55], s30 offen offset:{64*i}")
    a("s_mov_b64 exec, 0xffff")
    a("buffer_atomic_add_f32 v176, v10, s[52:55], s31 offen")
    a("s_mov_b64 exec, -1")
    softmax_pair(a, ACC[0], P, M_, C, T)
    for g in range(4):
        a(f"v_cvt_pk_bf16_f32 v{O+4*g}, v{P+4*g}, v{P+4*g+1}"); a(f"v_cvt_pk_bf16_f32 v{O+4*g+1}, v{P+4*g+2}, v{P+4*g+3}")
        a(f"v_cvt_pk_bf16_f32 v{O+4*g+2}, v{M_+4*g}, v{M_+4*g+1}"); a(f"v_cvt_pk_bf16_f32 v{O+4*g+3}, v{M_+4*g+2}, v{M_+4*g+3}")
    a(f"s_lshl_b32 s29, s25, 2"); a(f"s_add_u32 s29, s29, s{W}"); a("s_lshl_b32 s29, s29, 16"); a("s_lshl_b32 s30, s26, 12"); a("s_add_u32 s29, s29, s30")
    a("v_and_b32 v5, 31, v0"); a("v_lshlrev_b32 v5, 4, v5"); a("v_lshrrev_b32 v6, 5, v1"); a("v_lshl_add_u32 v5, v6, 11, v5")
    for g in range(4): a(f"buffer_store_dwordx4 v[{O+4*g}:{O+4*g+3}], v5, s[48:51], s29 offen offset:{512*g}")
    a.label(f"L_{name}_end"); a("s_endpgm")
    return a.render() + kernel_desc(name, 180) + "\n", IMG + 128 * RS

def gen_out(name, xin, kv, xout, final):
    a = Asm(); a.raw(kernel_header(name))
    a("s_cmp_ge_u32 s2, 256"); a(f"s_cbranch_scc1 L_{name}_end")
    a("s_load_dwordx2 s[22:23], s[0:1], 104")
    if final: a("s_load_dwordx2 s[20:21], s[0:1], 88")
    W = 24; ORS = 1040; RB = 32 * ORS; TB = RB + 4 * 2048; TRS = 72
    a("v_lshrrev_b32 v2, 6, v0"); a("v_and_b32 v1, 63, v0"); a(f"v_readfirstlane_b32 s{W}, v2")
    a("v_and_b32 v3, 15, v0"); a("v_bfe_u32 v4, v0, 4, 2")
    a("s_and_b32 s25, s2, 7"); a("s_lshl_b32 s25, s25, 3"); a("s_lshr_b32 s26, s2, 5"); a("s_add_u32 s25, s25, s26")
    a("s_bfe_u32 s26, s2, 0x20003"); a("s_lshl_b32 s26, s26, 2"); a(f"s_add_u32 s26, s26, s{W}")
    a("v_and_b32 v5, 3, v0"); a("v_lshlrev_b32 v5, 7, v5"); a("v_lshl_add_u32 v5, v4, 4, v5")
    a("v_lshlrev_b32 v6, 6, v3"); a("v_lshl_add_u32 v6, v4, 4, v6")
    a("v_lshlrev_b32 v7, 4, v3"); a("v_lshl_add_u32 v7, v4, 9, v7")
    a("v_lshlrev_b32 v8, 4, v1")
    a("v_lshrrev_b32 v9, 2, v1"); a("v_lshlrev_b32 v9, 12, v9"); a("v_and_b32 v10, 3, v0"); a("v_lshl_add_u32 v9, v10, 4, v9")
    a(f"s_lshl_b32 s27, s{W}, 10"); a("s_add_u32 s27, s27, 65536")
    a(f"s_lshl_b32 s28, s{W}, 14")
    a("s_lshl_b32 s29, s25, 16"); a("s_add_u32 s29, s29, s28")
    a("s_lshl_b32 s30, s26, 17"); a("s_lshl_b32 s31, s25, 6"); a("s_add_u32 s30, s30, s31")
    a(f"s_add_u32 s31, s30, {16*4096 - 1024}")
    a("s_lshl_b32 s32, s26, 15")
    a(f"s_lshl_b32 s33, s{W}, 11"); a(f"s_add_u32 s33, s33, {RB}")
    a("s_waitcnt lgkmcnt(0)")
    srd(a, 40, 22, kv, KV_SZ); srd(a, 44, 22, PHIQ, PHIQ_SZ); srd(a, 48, 22, WO, WO_SZ); srd(a, 52, 22, xin, XT_SZ)
    Z = 16; KVR = 32; PQ = 96
    for grp in range(2):
        for j in range(2): a(f"buffer_load_dwordx4 v[{Z+8*grp+4*j}:{Z+8*grp+4*j+3}], v5, s[40:43], s27 offen offset:{512*grp+64*j}")
    for h in range(8):
        for j in range(2): a(f"buffer_load_dwordx4 v[{KVR+8*h+4*j}:{KVR+8*h+4*j+3}], v6, s[40:43], s28 offen offset:{2048*(h%2)+1024*j}")
        for t in range(2): a(f"buffer_load_dwordx4 v[{PQ+8*h+4*t}:{PQ+8*h+4*t+3}], v7, s[44:47], s29 offen offset:{2048*(h%2)+256*t}")
        if h % 2 == 1 and h < 7: a("s_add_u32 s28, s28, 4096"); a("s_add_u32 s29, s29, 4096")
    a("s_mov_b32 m0, s33")
    a("buffer_load_dwordx4 v9, s[52:55], s30 offen lds"); a("buffer_load_dwordx4 v9, s[52:55], s31 offen offset:1024 lds")
    wo_issued = [0]
    def wo_load(n):
        for _ in range(n):
            s_ = wo_issued[0]
            if s_ >= 32: return
            a(f"buffer_load_dwordx4 a[{4*s_}:{4*s_+3}], v8, s[48:51], s32 offen offset:{1024*(s_%4)}")
            if s_ % 4 == 3 and s_ < 31: a("s_add_u32 s32, s32, 4096")
            wo_issued[0] += 1
    wo_load(8)
    if final: srd(a, 56, 20, 0, XT_SZ)
    else: srd(a, 56, 22, xout, XT_SZ); srd(a, 60, 22, ST3, ST_SZ)
    a(f"v_mul_u32_u24 v10, {ORS}, v3"); a("v_lshl_add_u32 v10, v4, 3, v10"); a(f"s_lshl_b32 s34, s{W}, 8"); a("v_add_u32 v10, s34, v10")
    a(f"s_mov_b32 s35, {f32(1e-6)}")
    ZF = 160; KF = 168; NUM = 176; DEN = 184; TMP = 192
    total = lambda: 4 + 32 + 2 + wo_issued[0]
    a(f"s_waitcnt vmcnt({total() - 4})")
    for grp in range(2):
        for i in range(4): a(f"v_cvt_pk_bf16_f32 v{ZF+4*grp+i}, v{Z+8*grp+2*i}, v{Z+8*grp+2*i+1}")
    for h in range(8):
        a(f"s_waitcnt vmcnt({total() - 4 - 4*(h+1)})")
        kf = KF + 4*(h % 2)
        for i in range(4): a(f"v_cvt_pk_bf16_f32 v{kf+i}, v{KVR+8*h+2*i}, v{KVR+8*h+2*i+1}")
        for t in range(2):
            a(f"v_mfma_f32_16x16x32_bf16 v[{DEN+4*t}:{DEN+4*t+3}], v[{ZF+4*(h//4)}:{ZF+4*(h//4)+3}], v[{PQ+8*h+4*t}:{PQ+8*h+4*t+3}], 0")
        for t in range(2):
            a(f"v_mfma_f32_16x16x32_bf16 v[{NUM+4*t}:{NUM+4*t+3}], v[{kf}:{kf+3}], v[{PQ+8*h+4*t}:{PQ+8*h+4*t+3}], 0")
        wo_load(3)
        for t in range(2): a(f"v_add_f32 v{TMP+2*t}, s35, v{DEN+4*t+(h%4)}")
        for t in range(2): a(f"v_rcp_f32 v{TMP+2*t}, v{TMP+2*t}")
        for t in range(2):
            for i in range(2): a(f"v_pk_mul_f32 v[{NUM+4*t+2*i}:{NUM+4*t+2*i+1}], v[{NUM+4*t+2*i}:{NUM+4*t+2*i+1}], v[{TMP+2*t}:{TMP+2*t+1}] op_sel_hi:[1,0]")
        for t in range(2):
            o = TMP + 4 + 4*(h % 2) + 2*t
            for i in range(2): a(f"v_cvt_pk_bf16_f32 v{o+i}, v{NUM+4*t+2*i}, v{NUM+4*t+2*i+1}")
            a(f"ds_write_b64 v10, v[{o}:{o+1}] offset:{16*ORS*t + 32*h}")
    assert wo_issued[0] == 32
    a("v_and_b32 v5, 31, v0"); a(f"v_mul_u32_u24 v6, {ORS}, v5"); a("v_lshrrev_b32 v7, 5, v1"); a("v_lshl_add_u32 v6, v7, 4, v6")
    a("s_waitcnt lgkmcnt(0)"); a("s_barrier")
    FB = 32; ACC = 16
    for s_ in range(12): a(f"ds_read_b128 v[{FB+4*s_}:{FB+4*s_+3}], v6 offset:{32*s_}")
    for s_ in range(32):
        if s_ + 12 < 32: pend = 11
        else: pend = 31 - s_
        a(f"s_waitcnt vmcnt({31 - s_}) lgkmcnt({pend})")
        a(f"v_mfma_f32_32x32x16_bf16 v[{ACC}:{ACC+15}], a[{4*s_}:{4*s_+3}], v[{FB+4*s_}:{FB+4*s_+3}], " + ("0" if s_ == 0 else f"v[{ACC}:{ACC+15}]"))
        if s_ + 12 < 32: a(f"ds_read_b128 v[{FB+4*(s_+12)}:{FB+4*(s_+12)+3}], v6 offset:{32*(s_+12)}")
    RR = 160
    a("v_bfe_u32 v8, v0, 2, 2"); a("v_lshlrev_b32 v8, 6, v8"); a("v_lshl_add_u32 v8, v7, 8, v8"); a("v_and_b32 v9, 1, v4"); a("v_lshl_add_u32 v8, v9, 5, v8")
    a("v_and_b32 v9, 3, v0"); a("v_lshl_add_u32 v8, v9, 3, v8"); a("v_add_u32 v8, s33, v8")
    for i in range(4): a(f"ds_read_b64_tr_b16 v[{RR+2*i}:{RR+2*i+1}], v8 offset:{512*i}")
    T8 = list(range(168, 176)); XR = 176
    rnd_pairs(a, list(range(ACC, ACC+16)), T8)
    a("s_waitcnt lgkmcnt(0)")
    for i in range(8): unpack(a, XR+2*i, XR+2*i+1, RR+i)
    for i in range(8): a(f"v_pk_add_f32 v[{ACC+2*i}:{ACC+2*i+1}], v[{ACC+2*i}:{ACC+2*i+1}], v[{XR+2*i}:{XR+2*i+1}]")
    for i in range(8): a(f"v_cvt_pk_bf16_f32 v{T8[i]}, v{ACC+2*i}, v{ACC+2*i+1}")
    if final:
        for p in range(2):
            o = T8[4*p]
            a(f"v_permlane32_swap_b32 v{o}, v{o+2}"); a(f"v_permlane32_swap_b32 v{o+1}, v{o+3}")
        a("v_lshlrev_b32 v5, 10, v5"); a("v_lshl_add_u32 v5, v7, 4, v5")
        a("s_lshl_b32 s27, s25, 15"); a("s_lshl_b32 s28, s26, 6"); a("s_add_u32 s27, s27, s28")
        for p in range(2): a(f"buffer_store_dwordx4 v[{T8[4*p]}:{T8[4*p]+3}], v5, s[56:59], s27 offen offset:{32*p}")
    else:
        a(f"s_mul_i32 s27, s{W}, {32*TRS}"); a(f"s_add_u32 s27, s27, {TB}")
        a(f"v_mul_u32_u24 v8, {TRS}, v5"); a("v_lshl_add_u32 v8, v7, 3, v8"); a("v_add_u32 v8, s27, v8")
        for i in range(4): a(f"ds_write_b64 v8, v[{T8[2*i]}:{T8[2*i]+1}] offset:{16*i}")
        for i in range(8): unpack(a, XR+2*i, XR+2*i+1, T8[i])
        a(f"v_pk_add_f32 v[12:13], v[{XR}:{XR+1}], v[{XR+2}:{XR+3}]"); a(f"v_pk_mul_f32 v[14:15], v[{XR}:{XR+1}], v[{XR}:{XR+1}]")
        a(f"v_pk_fma_f32 v[14:15], v[{XR+2}:{XR+3}], v[{XR+2}:{XR+3}], v[14:15]")
        for i in range(2, 8):
            a(f"v_pk_add_f32 v[12:13], v[12:13], v[{XR+2*i}:{XR+2*i+1}]"); a(f"v_pk_fma_f32 v[14:15], v[{XR+2*i}:{XR+2*i+1}], v[{XR+2*i}:{XR+2*i+1}], v[14:15]")
        a("v_add_f32 v12, v12, v13"); a("v_add_f32 v14, v14, v15")
        a("v_permlane32_swap_b32 v12, v14"); a("v_add_f32 v12, v12, v14")
        a("v_lshlrev_b32 v13, 2, v5"); a("v_lshl_add_u32 v13, v7, 13, v13"); a("s_lshl_b32 s28, s25, 7")
        a("buffer_atomic_add_f32 v12, v13, s[60:63], s28 offen")
        a("v_bfe_u32 v8, v0, 2, 2"); a("v_lshl_add_u32 v8, v4, 3, v8"); a(f"v_mul_u32_u24 v8, {TRS}, v8"); a("v_lshl_add_u32 v8, v9, 3, v8"); a("v_add_u32 v8, s27, v8")
        a("s_waitcnt lgkmcnt(0)")
        for p in range(2):
            for hf in range(2): a(f"ds_read_b64_tr_b16 v[{RR+4*p+2*hf}:{RR+4*p+2*hf+1}], v8 offset:{32*p + 4*TRS*hf}")
        a("v_lshlrev_b32 v5, 12, v3"); a("v_lshl_add_u32 v5, v4, 4, v5")
        a(f"s_add_u32 s31, s30, {16*4096}")
        a("s_waitcnt lgkmcnt(2)"); a(f"buffer_store_dwordx4 v[{RR}:{RR+3}], v5, s[56:59], s30 offen")
        a("s_waitcnt lgkmcnt(0)"); a(f"buffer_store_dwordx4 v[{RR+4}:{RR+7}], v5, s[56:59], s31 offen")
    a.label(f"L_{name}_end"); a("s_endpgm")
    return a.render() + kernel_desc(name, 204, 128) + "\n", TB + 4 * 32 * TRS

def main(out):
    ks = [("prep_kernel", gen_prep("prep_kernel")),
          ("conv1_kernel", gen_conv("conv1_kernel", XT[0], XT[1], ST1)),
          ("qkv1_kernel", gen_qkv("qkv1_kernel", XT[1], KV[0])),
          ("out1_kernel", gen_out("out1_kernel", XT[1], KV[0], XT[2], False)),
          ("conv2_kernel", gen_conv("conv2_kernel", XT[2], XT[3], ST3)),
          ("qkv2_kernel", gen_qkv("qkv2_kernel", XT[3], KV[1])),
          ("out2_kernel", gen_out("out2_kernel", XT[3], KV[1], None, True))]
    s = "; S4D conv / Hedgehog linear attention interleaved stack -- generated by work/gen.py (hand-written generator)\n"
    for n, (_, lds) in ks: s += f"; @launch kernel={n} grid=(256,1,1) block=(256,1,1) lds={lds}\n"
    s += '.amdgcn_target "amdgcn-amd-amdhsa--gfx950"\n.text\n'
    for n, (t, _) in ks: s += t
    open(out, "w").write(s)
if __name__ == "__main__":
    main(sys.argv[1] if len(sys.argv) > 1 else f"cdna_kernels/{NAME}.s")
```

```python
import sys, struct, json
from asmlib import *

NAME = "interleave_layers__ssm_conv_s4d__linear_kernel_hedgehog__prompt"
X0B = 0x000000; XT1 = 0x200000; X2B = 0x400000; XT3 = 0x600000
WF = 0x800000; WO = 0x980000
PHIQ = [0xA00000, 0xE00000]
ZERO = 0x1200000; ZERO_SZ = 155648
KV = [ZERO, ZERO + 69632]
ST3 = ZERO + 2 * 69632
ST1 = 0x1230000
BAR = 0x1240000; GS = 256; GOFF = BAR + 0x1000
STAMP = 0x1250000
WS_USED = 0x1290000
LOG2E = 0x3fb8aa3b; INV2PI = 0x3e22f983
PA = 33280
W = 24
MEMB = 191
PV = 190
SPIN = 400000
PROF = False
OPT = dict(mimic=True)
def f32(x): return "0x%08x" % struct.unpack("<I", struct.pack("<f", x))[0]

class K:
    def __init__(self):
        self.a = Asm(); self.vm = []; self.names = []
    def __call__(self, t): self.a(t)
    def v(self, text, tag=None):
        self.a(text); self.vm.append(tag)
    def wait(self, tag, lgkm=None):
        idx = max(i for i, t in enumerate(self.vm) if t == tag)
        n = len(self.vm) - 1 - idx
        assert n <= 63, n
        self.a(f"s_waitcnt vmcnt({n})" + (f" lgkmcnt({lgkm})" if lgkm is not None else ""))
    def drained(self): self.vm = []
    def stamp(self, name):
        if not PROF: return
        i = len(self.names); assert i < 60
        self.a("s_memtime s[98:99]"); self.a("s_waitcnt lgkmcnt(0)"); self.a(f"v_writelane_b32 v{PV}, s98, {i}")
        self.names.append(name)

def unpack(a, lo, hi, src):
    a(f"v_lshlrev_b32 v{lo}, 16, v{src}"); a(f"v_and_b32 v{hi}, 0xffff0000, v{src}")
def rnd_pairs(a, regs, tmp):
    n = len(regs)
    for i in range(0, n, 2): a(f"v_cvt_pk_bf16_f32 v{tmp[i//2]}, v{regs[i]}, v{regs[i+1]}")
    for i in range(0, n, 2): unpack(a, regs[i], regs[i+1], tmp[i//2])
def cmul(a, d, z, e, t):
    a(f"v_pk_mul_f32 v[{t}:{t+1}], v[{z}:{z+1}], v[{e}:{e+1}] op_sel:[0,0] op_sel_hi:[1,0]")
    a(f"v_pk_fma_f32 v[{d}:{d+1}], v[{z}:{z+1}], v[{e}:{e+1}], v[{t}:{t+1}] op_sel:[1,1,0] op_sel_hi:[0,1,1] neg_lo:[1,0,0]")
def wo_reg(s_):
    return f"a[{192+4*s_}:{195+4*s_}]" if s_ < 16 else f"v[{192+4*(s_-16)}:{195+4*(s_-16)}]"

def bar_signal(k, e):
    a = k.a
    a(f"s_cmp_eq_u32 s{W}, 1"); a(f"s_cbranch_scc0 L_bs{e}")
    a(f"v_mov_b32 v2, {(2 << e) - 1}"); a("v_mov_b32 v5, 0")
    a("s_mov_b64 exec, 1"); a("buffer_store_byte v2, v5, s[4:7], s38 offen"); a("s_mov_b64 exec, -1")
    a.label(f"L_bs{e}")
def bar_leader(k, e):
    a = k.a
    a(f"s_cmp_eq_u32 s33, 1"); a(f"s_cbranch_scc0 L_bl{e}")
    a(f"v_lshlrev_b32 v5, {e}, v{MEMB}"); a("v_lshlrev_b32 v6, 2, v1"); a("s_mov_b32 s27, 0")
    a.label(f"L_blp{e}")
    a("buffer_load_dword v2, v6, s[4:7], s39 offen sc1"); a("s_add_u32 s27, s27, 1"); a(f"s_cmp_gt_u32 s27, {SPIN}"); a(f"s_cbranch_scc1 L_blq{e}")
    a("s_waitcnt vmcnt(0)"); a("v_and_b32 v2, v2, v5"); a("v_cmp_ne_u32 vcc, v2, v5"); a("s_nop 4"); a(f"s_cbranch_vccnz L_blp{e}")
    a.label(f"L_blq{e}")
    a("s_waitcnt vmcnt(0)")
    a(f"v_mov_b32 v2, {e + 1}"); a(f"v_mul_u32_u24 v6, {8*GS}, v1")
    a("s_mov_b64 exec, s[36:37]"); a("buffer_store_dword v2, v6, s[4:7], s40 offen sc1"); a("s_mov_b64 exec, -1")
    a.label(f"L_bl{e}")
def bar_wait(k, e):
    a = k.a
    a(f"s_cmp_eq_u32 s{W}, 2"); a(f"s_cbranch_scc0 L_bw{e}")
    a(f"v_mul_u32_u24 v6, {GS}, v1"); a("s_mov_b32 s27, 0"); a("s_mov_b64 exec, s[36:37]")
    a.label(f"L_bwp{e}")
    a("buffer_load_dword v2, v6, s[4:7], s41 offen sc1"); a("s_add_u32 s27, s27, 1"); a(f"s_cmp_gt_u32 s27, {SPIN}"); a(f"s_cbranch_scc1 L_bwq{e}")
    a("s_waitcnt vmcnt(0)"); a(f"v_cmp_gt_u32 vcc, {e + 1}, v2"); a("s_nop 4"); a("s_and_b64 exec, exec, vcc"); a(f"s_cbranch_execnz L_bwp{e}")
    a.label(f"L_bwq{e}")
    a("s_waitcnt vmcnt(0)"); a("s_mov_b64 exec, -1")
    a.label(f"L_bw{e}")
    a("s_barrier")
def grid_barrier(k, e):
    k.stamp(f"b{e}_issued")
    k("s_waitcnt vmcnt(0) lgkmcnt(0)"); k.drained(); k("s_barrier")
    k.stamp(f"b{e}_arr")
    bar_signal(k, e); bar_leader(k, e); bar_wait(k, e)
    k.stamp(f"b{e}_rel")

def phase0(k):
    a = k.a
    a("s_load_dwordx4 s[44:47], s[0:1], 0")
    a("s_load_dwordx4 s[48:51], s[0:1], 16")
    a("s_load_dwordx4 s[52:55], s[0:1], 32")
    a("s_load_dwordx2 s[16:17], s[0:1], 48")
    a("s_load_dwordx4 s[56:59], s[0:1], 64")
    a("s_load_dwordx4 s[60:63], s[0:1], 80")
    a("s_load_dwordx4 s[64:67], s[0:1], 96")
    a("v_lshrrev_b32 v2, 6, v0"); a("v_and_b32 v1, 63, v0"); a(f"v_readfirstlane_b32 s{W}, v2")
    a("v_and_b32 v3, 15, v0"); a("v_bfe_u32 v4, v0, 4, 2")
    a("s_getreg_b32 s32, hwreg(HW_REG_XCC_ID, 0, 4)"); a("s_and_b32 s32, s32, 7")
    a("s_and_b32 s18, s2, 7"); a("s_lshl_b32 s18, s18, 5"); a("s_lshr_b32 s25, s2, 3"); a("s_add_u32 s18, s18, s25")
    a("s_lshl_b32 s39, s32, 8"); a(f"s_add_u32 s39, s39, {BAR}"); a("s_add_u32 s38, s39, s2")
    a(f"s_mul_i32 s40, s32, {GS}"); a(f"s_add_u32 s40, s40, {GOFF}"); a(f"s_mul_i32 s41, s32, {8*GS}"); a(f"s_add_u32 s41, s41, {GOFF}")
    a("s_lshl_b32 s25, s18, 9"); a("v_lshl_add_u32 v5, v0, 1, s25")
    a(f"s_lshr_b32 s26, s{W}, 1"); a("s_lshl_b32 s27, s18, 1"); a("s_add_u32 s27, s27, s26"); a("s_lshl_b32 s27, s27, 1"); a("v_mov_b32 v6, s27")
    a("s_lshl_b32 s29, s2, 13"); a("v_lshl_add_u32 v7, v0, 2, s29"); a("v_add_u32 v8, 0x1000, v7")
    a(f"s_lshl_b32 s30, s{W}, 11"); a("s_add_u32 s30, s30, s29"); a("v_lshl_add_u32 v9, v1, 4, s30")
    for r in range(56, 60): a(f"v_mov_b32 v{r}, 0")
    a(f"v_mov_b32 v{MEMB}, 0")
    a("s_waitcnt lgkmcnt(0)")
    k.stamp("karg")
    a("s_mov_b32 s4, s66"); a("s_mov_b32 s5, s67"); a(f"s_mov_b32 s6, {hex(WS_USED)}"); a("s_mov_b32 s7, 0x20000")
    a("s_mov_b32 s8, s62"); a("s_mov_b32 s9, s63"); a("s_mov_b32 s10, 0x200000"); a("s_mov_b32 s11, 0x20000")
    a("s_mov_b32 s12, s64"); a("s_mov_b32 s13, s65"); a("s_mov_b32 s14, 256"); a("s_mov_b32 s15, 0x20000")
    a(f"s_cmp_eq_u32 s{W}, 3"); a("s_cbranch_scc0 L_p0a")
    a("s_mov_b64 exec, 1")
    a("buffer_store_byte v56, v56, s[4:7], s38 offen")
    a("s_and_b32 s27, s2, 63"); a(f"s_mul_i32 s27, s27, {GS}"); a(f"s_add_u32 s27, s27, {GOFF}")
    a("s_cmp_lt_u32 s2, 64"); a("s_cbranch_scc0 L_p0b")
    a("buffer_store_dword v56, v56, s[4:7], s27 offen sc1")
    a.label("L_p0b")
    a("s_mov_b64 exec, -1")
    a.label("L_p0a")
    for i in range(8): k.v(f"global_load_dword v{24+i}, v{7 if i < 4 else 8}, s[44:45] offset:{(i%4)*1024}", "x")
    k.v("global_load_dwordx4 v[16:19], v9, s[44:45]", "x"); k.v("global_load_dwordx4 v[20:23], v9, s[44:45] offset:1024", "x")
    a("s_and_b32 s19, s2, 127"); a("s_cmp_lt_u32 s19, 96")
    a("s_cselect_b32 s31, 3, 1"); a("s_cselect_b32 s34, s56, s60"); a("s_cselect_b32 s35, s57, s61")
    a("s_cselect_b32 s27, 0, 96"); a("s_lshl_b32 s31, s31, 10"); a("s_sub_u32 s27, s19, s27"); a("s_lshl_b32 s27, s27, 5")
    a("s_cmp_ge_u32 s2, 128"); a("s_cbranch_scc1 L_p0c")
    a(f"s_lshl_b32 s28, s{W}, 7"); a("v_add_u32 v52, s28, v3")
    a("v_mul_lo_u32 v52, v52, s31"); a("v_lshl_add_u32 v52, v4, 3, v52"); a("v_add_u32 v52, s27, v52")
    a("s_lshl_b32 s28, s31, 4")
    for i in range(8):
        a(f"global_load_dwordx2 v[{32+2*i}:{33+2*i}], v52, s[34:35]")
        if i < 7: a("v_add_u32 v52, s28, v52")
    a("s_and_b32 s28, s2, 31"); a("s_lshl_b32 s28, s28, 9")
    a("v_lshlrev_b32 v53, 7, v4"); a("v_add_u32 v53, s28, v53"); a("v_lshl_add_u32 v54, v3, 1, v53")
    for i in range(4): a(f"global_load_ushort v{48+i}, v54, s[58:59] offset:{32*i}")
    for i in range(4): a(f"global_load_ushort v{68+i}, v53, s[58:59] offset:{32*i}")
    a.label("L_p0c")
    for i, sp in enumerate([46, 48, 50, 52]): k.v(f"global_load_ushort v{10+i}, v5, s[{sp}:{sp+1}]", "ssm")
    k.v("global_load_ushort v14, v6, s[54:55]", "ssm")
    a("s_lshl_b32 s27, s2, 10"); a("v_lshl_add_u32 v54, v0, 2, s27"); a(f"v_cmp_gt_u32 vcc, {ZERO_SZ}, v54"); a(f"s_mov_b32 s27, {ZERO}")
    a("s_and_saveexec_b64 s[28:29], vcc"); a("s_cbranch_execz L_p0d")
    a("buffer_store_dword v56, v54, s[4:7], s27 offen sc1")
    a.label("L_p0d"); a("s_mov_b64 exec, -1")
    TB = PA + 73728; GA = 108
    a("v_lshlrev_b32 v54, 3, v0")
    for j in range(12): a(f"v_add_u32 v{GA+j}, {j-3}, v54")
    for j in range(12): a(f"v_cvt_f32_i32 v{GA+j}, v{GA+j}")
    rnd_pairs(a, list(range(GA, GA+12)), list(range(120, 126)))
    for j in range(11): a(f"v_cvt_i32_f32 v{GA+j}, v{GA+j}")
    for j in range(3): a(f"v_min_u32 v{GA+j}, 3071, v{GA+j}")
    a(f"s_mov_b32 s27, {TB}")
    for j in range(11): a(f"v_lshl_add_u32 v{GA+j}, v{GA+j}, 1, s27")
    a(f"s_cmp_eq_u32 s{W}, 3"); a("s_cbranch_scc0 L_p0g")
    a("s_lshl_b32 s27, s32, 5"); a("s_lshr_b32 s28, s2, 5"); a("s_lshl_b32 s28, s28, 2"); a("s_add_u32 s27, s27, s28")
    a("s_and_b32 s28, s2, 31"); a("s_lshl_b32 s28, 1, s28"); a("v_mov_b32 v55, s28")
    a("s_cmp_ge_u32 s2, 128"); a("s_cbranch_scc1 L_p0m")
    a("s_waitcnt vmcnt(32)"); a("s_branch L_p0n")
    a.label("L_p0m"); a("s_waitcnt vmcnt(15)")
    a.label("L_p0n")
    a("s_mov_b64 exec, 1"); a("buffer_atomic_or v55, v56, s[12:15], s27 offen"); a("s_mov_b64 exec, -1")
    a.label("L_p0g")
    a("s_cmp_ge_u32 s2, 128"); a("s_cbranch_scc1 L_p0e")
    a("s_waitcnt vmcnt(22)"); a("s_branch L_p0f")
    a.label("L_p0e"); a("s_waitcnt vmcnt(5)")
    a.label("L_p0f")
    k.stamp("x_in")
    a("s_mov_b32 s68, 0x05040100"); a("s_mov_b32 s69, 0x07060302"); a("s_mov_b32 s70, 0x3f803f80")
    for j in range(4):
        a(f"v_perm_b32 v{60+j}, v{25+2*j}, v{24+2*j}, s68"); a(f"v_perm_b32 v{64+j}, v{25+2*j}, v{24+2*j}, s69")
    a("v_lshlrev_b32 v55, 5, v0"); a("s_lshl_b32 s29, s2, 13")
    a("buffer_store_dwordx4 v[60:63], v55, s[4:7], s29 offen sc1"); a("buffer_store_dwordx4 v[64:67], v55, s[4:7], s29 offen offset:16 sc1")
    for j in range(4):
        for r in range(2):
            src = 16 + 4*r + j
            a(f"v_dot2_f32_bf16 v{24+r}, v{src}, s70, {'0' if j == 0 else 'v%d' % (24+r)}")
            a(f"v_dot2_f32_bf16 v{26+r}, v{src}, v{src}, {'0' if j == 0 else 'v%d' % (26+r)}")
    for m in ["row_shr:1", "row_shr:2", "row_shr:4", "row_shr:8"]:
        for r in range(24, 28): a(f"v_add_f32_dpp v{r}, v{r}, v{r} {m} row_mask:0xf bank_mask:0xf bound_ctrl:1")
    for r in range(24, 28): a(f"v_add_f32_dpp v{r}, v{r}, v{r} row_bcast:15 row_mask:0xa bank_mask:0xf")
    for r in range(24, 28): a(f"v_add_f32_dpp v{r}, v{r}, v{r} row_bcast:31 row_mask:0xc bank_mask:0xf")
    a("s_lshl_b32 s27, s2, 5"); a(f"s_lshl_b32 s28, s{W}, 3"); a("s_add_u32 s27, s27, s28"); a(f"s_add_u32 s27, s27, {ST1}"); a("s_add_u32 s28, s27, 8192")
    a("s_mov_b32 exec_lo, 0"); a("s_mov_b32 exec_hi, 0x80000000")
    a("buffer_store_dwordx2 v[24:25], v56, s[4:7], s27 offen sc1"); a("buffer_store_dwordx2 v[26:27], v56, s[4:7], s28 offen sc1")
    a("s_mov_b64 exec, -1")
    CS = PA + 86016; D0 = 128
    a(f"s_cmp_eq_u32 s{W}, 3"); a("s_cbranch_scc1 L_p0o")
    a("s_waitcnt vmcnt(4)")
    a.label("L_p0o"); a("s_waitcnt vmcnt(5)")
    a("s_cmp_ge_u32 s2, 128"); a("s_cbranch_scc1 L_p0h")
    a("v_lshl_or_b32 v48, v49, 16, v48"); a("v_lshl_or_b32 v49, v51, 16, v50")
    a("v_lshl_or_b32 v68, v69, 16, v68"); a("v_lshl_or_b32 v69, v71, 16, v70")
    a("v_xor_b32 v68, 0x80008000, v68"); a("v_xor_b32 v69, 0x80008000, v69")
    a("s_cmp_lt_u32 s2, 32"); a("s_cbranch_scc1 L_p0i")
    a("v_mov_b32 v68, 0"); a("v_mov_b32 v69, 0")
    a("s_cmp_lt_u32 s2, 64"); a("s_cbranch_scc1 L_p0i")
    a("v_lshlrev_b32 v50, 2, v4"); a("v_sub_u32 v50, v3, v50")
    a("v_mov_b32 v51, 0x3f80"); a("v_mov_b32 v52, 0x3f800000"); a("v_mov_b32 v48, 0"); a("v_mov_b32 v49, 0")
    for t, (d, srcv) in enumerate([(48, 51), (48, 52), (49, 51), (49, 52)]):
        a(f"v_cmp_eq_u32 vcc, {t}, v50"); a(f"v_cndmask_b32 v{d}, v{d}, v{srcv}, vcc")
    a.label("L_p0i")
    a("s_nop 1")
    for i in range(8): a(f"v_mfma_f32_16x16x16_bf16 v[{D0+4*i}:{D0+4*i+3}], v[{32+2*i}:{33+2*i}], v[48:49], 0")
    for i in range(8): a(f"v_mfma_f32_16x16x16_bf16 v[{D0+4*i}:{D0+4*i+3}], v[{32+2*i}:{33+2*i}], v[68:69], v[{D0+4*i}:{D0+4*i+3}]")
    a(f"v_pk_add_f32 v[50:51], v[{D0}:{D0+1}], v[{D0+2}:{D0+3}]")
    for i in range(2, 16): a(f"v_pk_add_f32 v[50:51], v[50:51], v[{D0+2*i}:{D0+2*i+1}]")
    a("v_add_f32 v50, v50, v51")
    a("v_mov_b32 v51, v50"); a("v_permlane32_swap_b32 v50, v51"); a("v_add_f32 v50, v50, v51")
    a("v_mov_b32 v51, v50"); a("v_permlane16_swap_b32 v50, v51"); a("v_add_f32 v50, v50, v51")
    a(f"s_lshl_b32 s27, s{W}, 2"); a(f"s_add_u32 s27, s27, {CS}"); a("v_lshl_add_u32 v52, v3, 4, s27")
    a("ds_write_b32 v52, v50")
    a(f"v_lshlrev_b32 v52, 4, v3"); a(f"v_add_u32 v52, {CS}, v52")
    a("s_waitcnt lgkmcnt(0)"); a("s_barrier")
    a("ds_read_b128 v[32:35], v52")
    a("s_cmp_lt_u32 s2, 96"); a("s_cbranch_scc0 L_p0j")
    a("s_lshr_b32 s27, s2, 5"); a("s_and_b32 s28, s2, 31"); a("s_mul_i32 s28, s28, 49152"); a("s_lshl_b32 s27, s27, 10"); a("s_add_u32 s27, s27, s28")
    a(f"s_mul_i32 s28, s{W}, {4*3072}"); a("s_add_u32 s27, s27, s28"); a(f"s_add_u32 s27, s27, {WF}")
    a("s_mov_b32 s28, 3072"); a(f"s_mov_b32 s29, {f32(1/512)}")
    a("v_lshlrev_b32 v52, 4, v1")
    a("s_branch L_p0k")
    a.label("L_p0j")
    a("s_sub_u32 s27, s2, 96"); a("s_lshr_b32 s28, s27, 1"); a("s_lshl_b32 s28, s28, 15"); a("s_and_b32 s27, s27, 1"); a("s_lshl_b32 s27, s27, 8")
    a("s_add_u32 s27, s27, s28"); a(f"s_add_u32 s27, s27, {WO}")
    a(f"s_lshl_b32 s28, s{W}, 13"); a("s_add_u32 s27, s27, s28")
    a("s_mov_b32 s28, 2048"); a("s_mov_b32 s29, 0")
    a("v_lshlrev_b32 v52, 4, v3"); a("v_lshl_add_u32 v52, v4, 9, v52")
    a.label("L_p0k")
    a("s_cmp_lt_u32 s2, 32"); a("s_cselect_b32 s30, 0x00010001, 0"); a("s_mov_b32 s31, s30")
    a("v_mov_b32 v53, 0x3f803f80")
    a("s_waitcnt lgkmcnt(0)")
    a("v_add_f32 v32, v32, v33"); a("v_add_f32 v34, v34, v35"); a("v_add_f32 v32, v32, v34"); a("v_mul_f32 v32, s29, v32")
    for i in range(16): a(f"v_pk_add_f32 v[{D0+2*i}:{D0+2*i+1}], v[{D0+2*i}:{D0+2*i+1}], v[32:33] op_sel_hi:[1,0] neg_lo:[0,1] neg_hi:[0,1]")
    for b in range(4):
        o = 36 + 4*b
        for i in range(4): a(f"v_cvt_pk_bf16_f32 v{o+i}, v{D0+8*b+2*i}, v{D0+8*b+2*i+1}")
        for i in range(4): a(f"v_cndmask_b32 v{o+i}, v{o+i}, v53, s[30:31]")
        a(f"buffer_store_dwordx4 v[{o}:{o+3}], v52, s[4:7], s27 offen sc1")
        if b < 3: a("s_add_u32 s27, s27, s28")
    a.label("L_p0h")
    k.stamp("pub")
    a("v_lshrrev_b32 v54, 5, v0"); a("v_mul_u32_u24 v54, 9216, v54"); a("v_and_b32 v55, 31, v0"); a("v_lshl_add_u32 v54, v55, 2, v54"); a(f"v_add_u32 v54, {PA}, v54")
    for r in range(10, 15): a(f"v_lshlrev_b32 v{r}, 16, v{r}")
    a(f"v_mul_f32 v10, {hex(LOG2E)}, v10"); a(f"v_mul_f32 v14, {hex(LOG2E)}, v14")
    a("v_exp_f32 v10, v10"); a("v_exp_f32 v14, v14")
    a("v_cvt_pk_bf16_f32 v15, v10, v14"); unpack(a, 10, 14, 15)
    a("v_mul_f32 v10, v10, v14"); a("v_mul_f32 v11, v11, v14")
    a(f"v_mul_f32 v10, {hex(LOG2E | 0x80000000)}, v10"); a(f"v_mul_f32 v11, {hex(INV2PI)}, v11")
    E = {1: 72, 8: 74, 128: 76}
    for s_, e in E.items():
        t = 78
        a(f"v_mul_f32 v{t}, {f32(s_)}, v10"); a(f"v_mul_f32 v{t+1}, {f32(s_)}, v11")
        a(f"v_exp_f32 v{t}, v{t}"); a(f"v_fract_f32 v{t+1}, v{t+1}")
        a(f"v_cos_f32 v{e}, v{t+1}"); a(f"v_sin_f32 v{e+1}, v{t+1}")
        a(f"v_pk_mul_f32 v[{e}:{e+1}], v[{e}:{e+1}], v[{t}:{t+1}] op_sel:[0,0] op_sel_hi:[1,0]")
    X = [80 + 2*j for j in range(8)]; Y = 96
    pk = [100, 101, 102, 103]; pki = [0]
    def emit(row, z, neg):
        p = pk[pki[0] % 4]; pki[0] += 1
        a(f"v_cvt_pk_bf16_f32 v{p}, v{z}, {'-' if neg else ''}v{z+1}")
        a(f"ds_write_b32 v54, v{p} offset:{row*144}")
    a(f"v_mov_b32 v{X[0]}, v12"); a(f"v_mov_b32 v{X[0]+1}, v13")
    a(f"v_mov_b32 v{Y}, 1.0"); a(f"v_mov_b32 v{Y+1}, 0")
    yops = []
    for b in range(16):
        yops.append(("e", 48 + b, Y, False))
        if b < 15: yops.append(("m", Y, Y, E[8], 98))
    xops = [("e", 0, X[0], True)]
    for j in range(1, 8): xops += [("m", X[j], X[j-1], E[1], 104), ("e", j, X[j], True)]
    def blk(js, rows):
        o = []
        for kk, j in enumerate(js): o.append(("m", X[j], X[j], E[128], 104 + 2*(kk % 2)))
        for j, r in zip(js, rows): o.append(("e", r, X[j], True))
        return o
    xops += blk(range(8), range(8, 16))
    xops += blk([0, 2, 4, 6], range(16, 20)); xops += blk([0, 2, 4, 6], range(20, 24))
    for q in range(4): xops += blk([0, 4], [24 + 2*q, 25 + 2*q])
    for q in range(9): xops += blk([0], [32 + q])
    order = []; yi = 0
    for i, o in enumerate(xops):
        order.append(o)
        if (i < 15 or i >= len(xops) - 18) and yi < len(yops): order.append(yops[yi]); yi += 1
    order += yops[yi:]
    for o in order:
        if o[0] == "e": emit(o[1], o[2], o[3])
        else: cmul(a, o[1], o[2], o[3], o[4])
    a(f"v_and_b32 v55, 1, v0"); a("v_mul_u32_u24 v55, 6144, v55"); a(f"v_add_u32 v55, {TB + 6140}, v55"); a("ds_write_b32 v55, v56")
    a("v_lshrrev_b32 v55, 1, v3"); a("v_mul_u32_u24 v55, 4160, v55"); a("v_and_b32 v53, 1, v0"); a("v_lshl_add_u32 v55, v53, 4, v55"); a("ds_write_b128 v55, v[56:59]")
    k.stamp("st1")
    a("s_waitcnt vmcnt(0) lgkmcnt(0)"); a("s_barrier"); k.drained()
    k.stamp("b0_arr")
    bar_signal(k, 0)
    a("v_lshlrev_b32 v9, 2, v1")
    a("buffer_load_dword v8, v9, s[12:15], 0 offen sc1")
    a(f"s_and_b32 s25, s{W}, 1")
    a("s_mul_i32 s27, s26, 36864"); a(f"s_add_u32 s27, s27, {PA}"); a("v_mul_u32_u24 v54, 9216, v4"); a("v_mul_u32_u24 v55, 144, v3")
    a("v_add3_u32 v54, v54, v55, s27")
    a(f"s_mul_i32 s27, s25, {32*144}"); a("v_add_u32 v55, s27, v54")
    FY, FX0, FX1 = 128, 192, 224
    for s_ in range(8):
        a(f"ds_read_b128 v[{FY+4*s_}:{FY+4*s_+3}], v54 offset:{48*144+16*s_}")
        a(f"ds_read_b128 v[{FX0+4*s_}:{FX0+4*s_+3}], v55 offset:{16*s_}")
        a(f"ds_read_b128 v[{FX1+4*s_}:{FX1+4*s_+3}], v55 offset:{16*144+16*s_}")
    a("v_and_b32 v24, 7, v3"); a("v_lshrrev_b32 v25, 3, v3"); a("v_lshl_add_u32 v24, v25, 7, v24")
    a("v_lshlrev_b32 v26, 7, v3"); a("v_add_u32 v26, 1024, v26")
    a("s_cmp_eq_u32 s25, 0"); a("s_cselect_b64 vcc, -1, 0"); a("v_cndmask_b32 v24, v26, v24, vcc")
    a("v_lshrrev_b32 v25, 2, v3"); a("v_lshlrev_b32 v25, 7, v25"); a("v_and_b32 v26, 3, v3"); a("v_lshl_add_u32 v25, v26, 1, v25"); a("v_add_u32 v25, 256, v25")
    a("v_lshrrev_b32 v26, 1, v3"); a("v_lshlrev_b32 v26, 7, v26"); a("v_and_b32 v27, 1, v3"); a("v_lshl_add_u32 v26, v27, 2, v26")
    a("v_cmp_gt_u32 vcc, 8, v3"); a("v_cndmask_b32 v25, v26, v25, vcc")
    a(f"s_mul_i32 s27, s26, 6144"); a(f"s_add_u32 s27, s27, {TB}"); a("v_lshl_add_u32 v26, v4, 6, s27")
    a("v_lshl_add_u32 v24, v24, 1, v26"); a("v_lshl_add_u32 v25, v25, 1, v26")
    a("v_add_f32 v14, v14, v14")
    for s_ in range(8):
        a(f"s_waitcnt lgkmcnt({min(15, 21 - 3*s_)})")
        c0 = "0" if s_ == 0 else "v[28:31]"; c1 = "0" if s_ == 0 else "v[16:19]"
        a(f"v_mfma_f32_16x16x32_bf16 v[28:31], v[{FY+4*s_}:{FY+4*s_+3}], v[{FX0+4*s_}:{FX0+4*s_+3}], {c0}")
        a(f"v_mfma_f32_16x16x32_bf16 v[16:19], v[{FY+4*s_}:{FY+4*s_+3}], v[{FX1+4*s_}:{FX1+4*s_+3}], {c1}")
    def twrite(acc, addr):
        for i in range(4): a(f"v_mul_f32 v{acc+i}, v{acc+i}, v14")
        a(f"v_cvt_pk_bf16_f32 v{acc}, v{acc}, v{acc+1}"); a(f"v_cvt_pk_bf16_f32 v{acc+2}, v{acc+2}, v{acc+3}")
        a(f"ds_write_b16 v{addr}, v{acc}"); a(f"ds_write_b16_d16_hi v{addr}, v{acc} offset:16")
        a(f"ds_write_b16 v{addr}, v{acc+2} offset:32"); a(f"ds_write_b16_d16_hi v{addr}, v{acc+2} offset:48")
    twrite(28, 24)
    a("s_cmp_eq_u32 s25, 0"); a("s_cbranch_scc0 L_p0l")
    a("s_nop 7")
    twrite(16, 25)
    a.label("L_p0l")
    k.stamp("st2")
    a("s_mov_b32 s27, 0")
    a.label("L_reg")
    a("s_waitcnt vmcnt(0)")
    a("v_bcnt_u32_b32 v12, v8, 0")
    for m in ["row_shr:1", "row_shr:2", "row_shr:4", "row_shr:8"]: a(f"v_add_u32_dpp v12, v12, v12 {m} row_mask:0xf bank_mask:0xf bound_ctrl:1")
    a("v_add_u32_dpp v12, v12, v12 row_bcast:15 row_mask:0xa bank_mask:0xf"); a("v_add_u32_dpp v12, v12, v12 row_bcast:31 row_mask:0xc bank_mask:0xf")
    a("v_readlane_b32 s28, v12, 63"); a("s_cmp_eq_u32 s28, 256"); a("s_cbranch_scc1 L_regq")
    a("s_sleep 4")
    a("buffer_load_dword v8, v9, s[12:15], 0 offen sc1")
    a("s_add_u32 s27, s27, 1"); a(f"s_cmp_gt_u32 s27, {SPIN}"); a("s_cbranch_scc0 L_reg")
    a("s_waitcnt vmcnt(0)")
    a.label("L_regq")
    a("v_cmp_ne_u32 vcc, 0, v8"); a("s_mov_b64 s[28:29], vcc")
    a("v_lshlrev_b32 v12, 3, v1"); a("v_lshrrev_b64 v[10:11], v12, s[28:29]"); a("v_and_b32 v10, 0xff, v10")
    a("v_cmp_ne_u32 vcc, 0, v10"); a("s_nop 1"); a("s_and_b32 s36, vcc_lo, 0xff"); a("s_mov_b32 s37, 0")
    a("s_lshl_b32 s28, s32, 3"); a("v_lshrrev_b32 v12, 3, v1"); a("v_add_u32 v12, s28, v12"); a("v_lshlrev_b32 v12, 2, v12")
    a("ds_bpermute_b32 v13, v12, v8"); a("v_and_b32 v12, 7, v1"); a("v_lshlrev_b32 v12, 2, v12"); a("s_waitcnt lgkmcnt(0)")
    a("v_lshrrev_b32 v13, v12, v13"); a("v_and_b32 v13, 15, v13")
    a("v_cmp_ne_u32 vcc, 0, v13"); a("s_nop 1"); a("s_ff1_i32_b64 s28, vcc"); a("s_and_b32 s28, s28, 63")
    a("s_nop 3"); a("v_readlane_b32 s29, v13, s28"); a("s_nop 1"); a("s_ff1_i32_b32 s29, s29"); a("s_lshl_b32 s28, s28, 2"); a("s_add_u32 s28, s28, s29")
    a("s_cmp_eq_u32 s28, s2"); a("s_cselect_b32 s33, 1, 0"); a(f"s_cmp_eq_u32 s{W}, 0"); a("s_cselect_b32 s33, s33, 0")
    a("s_mov_b32 s28, 0x00204081"); a("v_mul_lo_u32 v13, v13, s28"); a(f"v_and_b32 v{MEMB}, 0x01010101, v13")
    k.stamp("reg")
    bar_leader(k, 0)
    a("s_waitcnt lgkmcnt(0)"); a("s_barrier")
    for c in range(2):
        for j in range(11): a(f"ds_read_u16 v{16+12*c+j}, v{GA+j} offset:{6144*c}")
    a("v_lshlrev_b32 v72, 4, v0")
    for c in range(2):
        a(f"s_waitcnt lgkmcnt({11 if c == 0 else 4})")
        for e in range(4):
            o = 40 + 16*c + 4*e
            for j in range(4):
                lo = 16 + 12*c + 3 - e + 2*j
                a(f"v_lshl_or_b32 v{o+j}, v{lo+1}, 16, v{lo}")
            a(f"ds_write_b128 v72, v[{o}:{o+3}] offset:{(4*c+e)*4160 + 32}")
    k.stamp("st3")
    a("s_waitcnt lgkmcnt(0)")
    bar_wait(k, 0)
    k.stamp("b0_rel")

def ln_row_stats(a, s1, s2, n, tmp):
    a(f"s_mov_b32 s70, {f32(1/512)}"); a("s_mov_b32 s71, s70"); a(f"s_mov_b32 s72, {f32(1e-5)}"); a("s_mov_b32 s73, s72")
    if n >= 2:
        for i in range(0, n, 2): a(f"v_pk_mul_f32 v[{s1+i}:{s1+i+1}], v[{s1+i}:{s1+i+1}], s[70:71]")
        for i in range(0, n, 2): a(f"v_pk_mul_f32 v[{s2+i}:{s2+i+1}], v[{s2+i}:{s2+i+1}], s[70:71]")
        for i in range(0, n, 2): a(f"v_pk_fma_f32 v[{s2+i}:{s2+i+1}], v[{s1+i}:{s1+i+1}], v[{s1+i}:{s1+i+1}], v[{s2+i}:{s2+i+1}] neg_lo:[1,0,0] neg_hi:[1,0,0]")
        for i in range(n): a(f"v_max_f32 v{s2+i}, 0, v{s2+i}")
        rnd_pairs(a, list(range(s1, s1+n)), tmp)
        rnd_pairs(a, list(range(s2, s2+n)), tmp)
        for i in range(0, n, 2): a(f"v_pk_add_f32 v[{s2+i}:{s2+i+1}], v[{s2+i}:{s2+i+1}], s[72:73]")
        rnd_pairs(a, list(range(s2, s2+n)), tmp)
        for i in range(n): a(f"v_sqrt_f32 v{s2+i}, v{s2+i}")
        rnd_pairs(a, list(range(s2, s2+n)), tmp)
        for i in range(n): a(f"v_rcp_f32 v{s2+i}, v{s2+i}")
    else:
        def r1(r): a(f"v_cvt_pk_bf16_f32 v{r}, v{r}, v{r}"); a(f"v_lshlrev_b32 v{r}, 16, v{r}")
        a(f"v_mul_f32 v{s1}, s70, v{s1}"); a(f"v_mul_f32 v{s2}, s70, v{s2}")
        a(f"v_fma_f32 v{s2}, -v{s1}, v{s1}, v{s2}"); a(f"v_max_f32 v{s2}, 0, v{s2}")
        r1(s2); a(f"v_add_f32 v{s2}, s72, v{s2}"); r1(s2); a(f"v_sqrt_f32 v{s2}, v{s2}"); r1(s2); a(f"v_rcp_f32 v{s2}, v{s2}")

def conv(k, L):
    a = k.a
    xin, st, xout = (X0B, ST1, XT1) if L == 0 else (X2B, ST3, XT3)
    UB = PA; RAWB = PA + 9216; XB = RAWB + 8192
    a(f"s_lshr_b32 s25, s{W}, 1"); a(f"s_and_b32 s26, s{W}, 1")
    a("s_lshl_b32 s28, s18, 1"); a("s_add_u32 s28, s28, s25")
    a("v_lshlrev_b32 v5, 5, v0"); a(f"s_mov_b32 s29, {st}"); a(f"s_mov_b32 s30, {st + 8192}")
    S1, S2, XA = 16, 24, 32
    k.v(f"buffer_load_dwordx4 v[{S1}:{S1+3}], v5, s[4:7], s29 offen sc1", "st"); k.v(f"buffer_load_dwordx4 v[{S1+4}:{S1+7}], v5, s[4:7], s29 offen offset:16 sc1", "st")
    k.v(f"buffer_load_dwordx4 v[{S2}:{S2+3}], v5, s[4:7], s30 offen sc1", "st"); k.v(f"buffer_load_dwordx4 v[{S2+4}:{S2+7}], v5, s[4:7], s30 offen offset:16 sc1", "st")
    if L == 0:
        a("v_lshlrev_b32 v6, 13, v0"); a("s_lshl_b32 s31, s18, 5"); co = 16
    else:
        a("v_lshrrev_b32 v6, 2, v0"); a("v_lshlrev_b32 v6, 15, v6"); a("v_and_b32 v7, 3, v0"); a("v_lshl_add_u32 v6, v7, 4, v6")
        a("s_lshl_b32 s31, s18, 7"); a(f"s_add_u32 s31, s31, {xin}"); co = 64
    k.v(f"buffer_load_dwordx4 v[{XA}:{XA+3}], v6, s[4:7], s31 offen sc1", "x"); k.v(f"buffer_load_dwordx4 v[{XA+4}:{XA+7}], v6, s[4:7], s31 offen offset:{co} sc1", "x")
    a("s_lshl_b32 s34, s28, 1"); a("v_mov_b32 v9, s34")
    k.v("global_load_ushort v10, v9, s[16:17]", "d")
    a("v_lshlrev_b32 v7, 4, v1")
    wq = [0]
    if L == 0:
        a("s_lshr_b32 s35, s2, 4"); a("s_lshl_b32 s35, s35, 1"); a("s_add_u32 s35, s35, s26"); a("s_mul_i32 s35, s35, 49152"); a(f"s_add_u32 s35, s35, {WF}")
    def wq_load(n=1):
        if L != 0: return
        for _ in range(n):
            i = wq[0]
            if i >= 48: return
            k.v(f"buffer_load_dwordx4 a[{4*i}:{4*i+3}], v7, s[4:7], s35 offen offset:{1024*(i%4)}", "wq")
            if i % 4 == 3 and i < 47: a("s_add_u32 s35, s35, 4096")
            wq[0] += 1
    wq_load(OPT.get("wq_pre", 6))
    for r in range(12, 16): a(f"v_mov_b32 v{r}, 0")
    a("v_lshrrev_b32 v9, 5, v1"); a("v_mul_u32_u24 v9, 4608, v9"); a("v_and_b32 v11, 31, v0"); a("v_lshl_add_u32 v9, v11, 4, v9")
    a(f"ds_write_b128 v9, v[12:15] offset:{UB}")
    VA, VB = 9, 11
    a("v_lshrrev_b32 v9, 2, v3"); a("v_mul_u32_u24 v9, 4160, v9"); a("v_and_b32 v11, 3, v0"); a("v_lshl_add_u32 v9, v11, 3, v9")
    a("v_lshlrev_b32 v11, 4, v4"); a("v_sub_u32 v9, v9, v11")
    a("s_mul_i32 s29, s25, 16640"); a("s_lshl_b32 s30, s26, 8"); a("s_add_u32 s29, s29, s30"); a("s_add_u32 s29, s29, 56")
    a("v_add_u32 v9, s29, v9")
    a("v_lshl_add_u32 v11, v3, 5, v11")
    a("s_mul_i32 s29, s25, 4608"); a("s_sub_u32 s29, s29, s30"); a(f"s_add_u32 s29, s29, {UB + 480 - 192}")
    a("v_add_u32 v11, s29, v11")
    a("v_lshlrev_b32 v6, 4, v0")
    a("v_lshlrev_b32 v8, 5, v3"); a("v_lshl_add_u32 v8, v4, 3, v8")
    k.wait("st")
    k.stamp(f"c{L}_st")
    ln_row_stats(a, S1, S2, 8, [40, 41, 42, 43])
    k.wait("x")
    for c in range(2):
        x = 44
        a(f"ds_write_b128 v6, v[{XA+4*c}:{XA+4*c+3}] offset:{RAWB + 4096*c}")
        for j in range(4): unpack(a, x+2*j, x+2*j+1, XA+4*c+j)
        for j in range(4): a(f"v_pk_add_f32 v[{x+2*j}:{x+2*j+1}], v[{x+2*j}:{x+2*j+1}], v[{S1+2*j}:{S1+2*j+1}] neg_lo:[0,1] neg_hi:[0,1]")
        rnd_pairs(a, list(range(x, x+8)), [40, 41, 42, 43])
        for j in range(4): a(f"v_pk_mul_f32 v[{x+2*j}:{x+2*j+1}], v[{x+2*j}:{x+2*j+1}], v[{S2+2*j}:{S2+2*j+1}]")
        for j in range(4): a(f"v_cvt_pk_bf16_f32 v{52+4*c+j}, v{x+2*j}, v{x+2*j+1}")
        a(f"ds_write_b128 v6, v[{52+4*c}:{55+4*c}] offset:{UB + 4608*c + 512}")
    ACC = 16; FA = [60, 124]; FB = [92, 156]
    def ra(b, rr, q): return [f"ds_read_b64_tr_b16 v[{FA[b]+4*q}:{FA[b]+4*q+1}], v{VA} offset:{8+512*q+64*rr}",
                              f"ds_read_b64_tr_b16 v[{FA[b]+4*q+2}:{FA[b]+4*q+3}], v{VA} offset:{512*q+64*rr}"]
    def rb(b, rr, j): return [f"ds_read_b128 v[{FB[b]+4*j}:{FB[b]+4*j+3}], v{VB} offset:{512*j+64*(3-rr)}"]
    def reads(rr):
        b = rr % 2; Lr = ra(b, rr, 0)
        for j in range(8): Lr += rb(b, rr, j)
        for q in range(1, 8): Lr += ra(b, rr, q)
        return Lr
    for q in range(8):
        for t in ra(0, 0, q): a(t)
    k.stamp(f"c{L}_u")
    a("s_waitcnt lgkmcnt(0)"); a("s_barrier")
    for j in range(8):
        for t in rb(0, 0, j): a(t)
    nm = 0
    for rr in range(4):
        b = rr % 2
        nxt = reads(rr+1) if rr < 3 else []
        kk = 0
        for q in range(8):
            for jt in range(q, 8):
                if rr == 0 and q == 0: a(f"s_waitcnt lgkmcnt({7 - jt + kk})")
                elif q == 0 and jt == 0: a("s_waitcnt lgkmcnt(0)")
                cin = "0" if (rr == 0 and q == 0) else f"v[{ACC+4*jt}:{ACC+4*jt+3}]"
                a(f"v_mfma_f32_16x16x32_bf16 v[{ACC+4*jt}:{ACC+4*jt+3}], v[{FA[b]+4*q}:{FA[b]+4*q+3}], v[{FB[b]+4*(jt-q)}:{FB[b]+4*(jt-q)+3}], {cin}")
                if kk < len(nxt): a(nxt[kk])
                kk += 1; nm += 1
                if nm % OPT.get("wq_every", 4) == 0: wq_load()
    k.stamp(f"c{L}_mfma")
    wq_load(48)
    a(f"s_lshl_b32 s29, s{W}, 12"); a(f"s_add_u32 s29, s29, {XB}"); a("v_add_u32 v5, s29, v7")
    a(f"s_xor_b32 s29, s{W}, 1"); a("s_lshl_b32 s29, s29, 12"); a(f"s_add_u32 s29, s29, {XB}"); a("v_add_u32 v6, s29, v7")
    a("s_lshl_b32 s30, s26, 11"); a("s_mul_i32 s29, s25, 4608"); a("s_add_u32 s29, s29, s30"); a(f"s_add_u32 s29, s29, {UB + 512}"); a("v_add_u32 v12, s29, v8")
    a("s_lshl_b32 s29, s25, 12"); a("s_add_u32 s29, s29, s30"); a(f"s_add_u32 s29, s29, {RAWB}"); a("v_add_u32 v13, s29, v8")
    for i in range(4): a(f"ds_read_b64 v[{60+2*i}:{61+2*i}], v12 offset:{512*i}")
    for i in range(4): a(f"ds_read_b64 v[{68+2*i}:{69+2*i}], v13 offset:{512*i}")
    a("s_cmp_eq_u32 s26, 0"); a(f"s_cbranch_scc0 L_c{L}x1")
    for i in range(4): a(f"ds_write_b128 v5, v[{ACC+16+4*i}:{ACC+19+4*i}] offset:{1024*i}")
    a(f"s_branch L_c{L}x2")
    a.label(f"L_c{L}x1")
    for i in range(4): a(f"ds_write_b128 v5, v[{ACC+4*i}:{ACC+3+4*i}] offset:{1024*i}")
    a("s_nop 1")
    for i in range(16): a(f"v_mov_b32 v{ACC+i}, v{ACC+16+i}")
    a.label(f"L_c{L}x2")
    k.wait("d", 0); a("s_barrier")
    for i in range(4): a(f"ds_read_b128 v[{76+4*i}:{79+4*i}], v6 offset:{1024*i}")
    a("v_lshlrev_b32 v10, 16, v10")
    U = 92; XR = 108; T8 = list(range(124, 132))
    for i in range(8): unpack(a, U+2*i, U+2*i+1, 60+i)
    for i in range(8): a(f"v_pk_mul_f32 v[{U+2*i}:{U+2*i+1}], v[{U+2*i}:{U+2*i+1}], v[10:11] op_sel_hi:[1,0]")
    rnd_pairs(a, list(range(U, U+16)), T8)
    for i in range(8): unpack(a, XR+2*i, XR+2*i+1, 68+i)
    a("v_and_b32 v5, 1, v4"); a("v_lshlrev_b32 v5, 9, v5"); a("v_lshl_add_u32 v5, v3, 5, v5"); a("v_lshrrev_b32 v6, 1, v4"); a("v_lshl_add_u32 v5, v6, 4, v5")
    a("s_lshl_b32 s29, s28, 12"); a("s_add_u32 s29, s29, s30"); a(f"s_add_u32 s29, s29, {xout}")
    a("s_waitcnt lgkmcnt(0)")
    for i in range(8): a(f"v_pk_add_f32 v[{ACC+2*i}:{ACC+2*i+1}], v[{ACC+2*i}:{ACC+2*i+1}], v[{76+2*i}:{77+2*i}]")
    rnd_pairs(a, list(range(ACC, ACC+16)), T8)
    for i in range(8): a(f"v_pk_add_f32 v[{ACC+2*i}:{ACC+2*i+1}], v[{ACC+2*i}:{ACC+2*i+1}], v[{U+2*i}:{U+2*i+1}]")
    rnd_pairs(a, list(range(ACC, ACC+16)), T8)
    for i in range(8): a(f"v_pk_add_f32 v[{ACC+2*i}:{ACC+2*i+1}], v[{ACC+2*i}:{ACC+2*i+1}], v[{XR+2*i}:{XR+2*i+1}]")
    for i in range(8): a(f"v_cvt_pk_bf16_f32 v{T8[i]}, v{ACC+2*i}, v{ACC+2*i+1}")
    for p in range(2):
        o = T8[4*p]
        a(f"v_permlane16_swap_b32 v{o}, v{o+2}"); a(f"v_permlane16_swap_b32 v{o+1}, v{o+3}")
        k.v(f"buffer_store_dwordx4 v[{o}:{o+3}], v5, s[4:7], s29 offen offset:{1024*p} sc1")

def sm_minmax(a, acc, t, zero0=False):
    mx, mn = t, t + 2
    a(f"v_max3_f32 v{mx}, v{acc}, v{acc+1}, v{acc+2}"); a(f"v_min3_f32 v{mn}, v{acc}, v{acc+1}, v{acc+2}")
    for i in range(3, 15, 2):
        a(f"v_max3_f32 v{mx}, v{mx}, v{acc+i}, v{acc+i+1}"); a(f"v_min3_f32 v{mn}, v{mn}, v{acc+i}, v{acc+i+1}")
    a(f"v_max_f32 v{mx}, v{mx}, v{acc+15}"); a(f"v_min_f32 v{mn}, v{mn}, v{acc+15}")
def sm_exp(a, acc, P, M, c, t, hook=lambda: None):
    mx, mn = t, t + 2
    a(f"v_mul_f32 v{mx}, v{mx}, v{c}"); a(f"v_mul_f32 v{mn}, v{mn}, v{c}")
    for i in range(0, 16, 2):
        a(f"v_pk_fma_f32 v[{P+i}:{P+i+1}], v[{acc+i}:{acc+i+1}], v[{c}:{c+1}], v[{mx}:{mx+1}] op_sel_hi:[1,0,0] neg_lo:[0,0,1] neg_hi:[0,0,1]")
        a(f"v_pk_fma_f32 v[{M+i}:{M+i+1}], v[{acc+i}:{acc+i+1}], v[{c}:{c+1}], v[{mn}:{mn+1}] op_sel_hi:[1,0,0] neg_lo:[1,0,0] neg_hi:[1,0,0]")
    for i in range(16):
        a(f"v_exp_f32 v{P+i}, v{P+i}")
        if i % 4 == 3: hook()
    for i in range(16):
        a(f"v_exp_f32 v{M+i}, v{M+i}")
        if i % 4 == 3: hook()
def sm_norm(a, P, M, t):
    sp, sm = t, t + 2
    a(f"v_pk_add_f32 v[{sp}:{sp+1}], v[{P}:{P+1}], v[{P+2}:{P+3}]"); a(f"v_pk_add_f32 v[{sm}:{sm+1}], v[{M}:{M+1}], v[{M+2}:{M+3}]")
    for i in range(4, 16, 2):
        a(f"v_pk_add_f32 v[{sp}:{sp+1}], v[{sp}:{sp+1}], v[{P+i}:{P+i+1}]"); a(f"v_pk_add_f32 v[{sm}:{sm+1}], v[{sm}:{sm+1}], v[{M+i}:{M+i+1}]")
    a(f"v_add_f32 v{sp}, v{sp}, v{sp+1}"); a(f"v_add_f32 v{sm}, v{sm}, v{sm+1}")
    a(f"v_rcp_f32 v{sp}, v{sp}"); a(f"v_rcp_f32 v{sm}, v{sm}")
    for i in range(0, 16, 2):
        a(f"v_pk_mul_f32 v[{P+i}:{P+i+1}], v[{P+i}:{P+i+1}], v[{sp}:{sp+1}] op_sel_hi:[1,0]")
        a(f"v_pk_mul_f32 v[{M+i}:{M+i+1}], v[{M+i}:{M+i+1}], v[{sm}:{sm+1}] op_sel_hi:[1,0]")
def transpose4(a, R):
    for i in range(4):
        a(f"v_permlane32_swap_b32 v{R+i}, v{R+8+i}"); a(f"v_permlane32_swap_b32 v{R+4+i}, v{R+12+i}")
    for i in range(4):
        a(f"v_permlane16_swap_b32 v{R+i}, v{R+4+i}"); a(f"v_permlane16_swap_b32 v{R+8+i}, v{R+12+i}")

def qkv(k, L):
    a = k.a
    xin = [XT1, XT3][L]; kv = KV[L]; phiq = PHIQ[L]
    NS = 6; SLOT = 16384; RB = PA + 256 - PA % 256; IMG = RB + NS * SLOT; RS = 224; STAT = IMG + 128 * RS
    assert STAT + 512 <= 163840 and RB % 256 == 0
    a("s_and_b32 s25, s2, 7"); a("s_lshl_b32 s25, s25, 1"); a("s_bfe_u32 s26, s2, 0x10003"); a("s_add_u32 s25, s25, s26")
    a("s_lshr_b32 s26, s2, 4")
    a("v_lshrrev_b32 v5, 1, v3"); a("v_xor_b32 v5, v5, v4"); a("v_lshlrev_b32 v5, 5, v5"); a("v_lshl_add_u32 v5, v4, 12, v5")
    a("v_and_b32 v6, 1, v0"); a("v_lshl_add_u32 v5, v6, 4, v5"); a("v_xor_b32 v6, 0x80, v5")
    a(f"s_lshl_b32 s28, s{W}, 16"); a("s_lshl_b32 s27, s25, 8"); a("s_add_u32 s28, s28, s27"); a(f"s_add_u32 s28, s28, {xin}")
    for i in range(1, 4): a(f"s_add_u32 s{28+i}, s28, {i*(16384-1024)}")
    a(f"s_lshl_b32 s34, s{W}, 12"); a(f"s_add_u32 s34, s34, {RB}")
    def dma1(c, i):
        if i == 0: a(f"s_add_u32 m0, s34, {(c % NS) * SLOT}")
        k.v(f"buffer_load_dwordx4 v{5 + i % 2}, s[4:7], s{28+i} offen offset:{1024*i} sc1 lds", f"x{c}")
        if c < 7: a(f"s_add_u32 s{28+i}, s{28+i}, {64*4096}")
    for c in range(3):
        for i in range(4): dma1(c, i)
    a("v_lshlrev_b32 v7, 4, v1")
    wo = [0]
    if L == 0:
        a("s_bfe_u32 s35, s2, 0x20003"); a("s_lshl_b32 s35, s35, 2"); a(f"s_add_u32 s35, s35, s{W}"); a("s_lshl_b32 s35, s35, 15"); a(f"s_add_u32 s35, s35, {WO}")
    def wo_load(n=1):
        if L != 0: return
        for _ in range(n):
            i = wo[0]
            if i >= 32: return
            k.v(f"buffer_load_dwordx4 {wo_reg(i)}, v7, s[4:7], s35 offen offset:{1024*(i%4)}", "wo")
            if i % 4 == 3 and i < 31: a("s_add_u32 s35, s35, 4096")
            wo[0] += 1
    a(f"s_and_b32 s20, s{W}, 1"); a(f"s_lshr_b32 s21, s{W}, 1")
    a("v_lshrrev_b32 v8, 2, v1")
    a("v_and_b32 v9, 7, v8"); a(f"s_lshl_b32 s27, s{W}, 1"); a("v_xor_b32 v9, s27, v9"); a("v_lshlrev_b32 v9, 5, v9")
    a("v_lshl_add_u32 v8, v8, 8, v9"); a("v_and_b32 v9, 3, v0"); a("v_lshl_add_u32 v8, v9, 3, v8"); a(f"v_add_u32 v8, {RB}, v8")
    for t in range(1, 4): a(f"v_xor_b32 v{8+t}, {32*t}, v8")
    for t in range(4): a(f"v_add_u32 v{12+t}, {3*SLOT}, v{8+t}")
    ACC = [16, 32, 48]; AS2 = 64; FX = [72, 88]
    def reads(s_):
        c = s_ // 2; sl = c % NS; b = s_ % 2; base = 8 if sl < 3 else 12; o = (sl % 3) * SLOT + (s_ % 2) * 8192
        Lr = []
        for t in range(4):
            Lr.append(f"ds_read_b64_tr_b16 v[{FX[b]+4*t}:{FX[b]+4*t+1}], v{base+t} offset:{o}")
            Lr.append(f"ds_read_b64_tr_b16 v[{FX[b]+4*t+2}:{FX[b]+4*t+3}], v{base+t} offset:{o+4096}")
        return Lr
    k.wait("x0"); a("s_barrier")
    k.stamp(f"q{L}_x0")
    for t in reads(0): a(t)
    for s_ in range(16):
        b = s_ % 2; c = s_ // 2; first = s_ == 0
        nxt = reads(s_+1) if s_ < 15 else []
        M = []
        for t in range(4):
            x = f"v[{FX[b]+4*t}:{FX[b]+4*t+3}]"
            for j in range(3):
                d = ACC[j] + 4*t
                M.append(f"v_mfma_f32_16x16x32_bf16 v[{d}:{d+3}], a[{(3*s_+j)*4}:{(3*s_+j)*4+3}], {x}, " + ("0" if first else f"v[{d}:{d+3}]"))
            if t < 2: M.append(f"v_mfma_f32_16x16x32_bf16 v[{AS2+4*t}:{AS2+4*t+3}], {x}, {x}, " + ("0" if first else f"v[{AS2+4*t}:{AS2+4*t+3}]"))
        a("s_waitcnt lgkmcnt(0)")
        rd0 = 1 if (b == 1 and s_ < 15) else 0
        for i, m in enumerate(M):
            a(m)
            if rd0 and i == rd0:
                k.wait(f"x{c+1}"); a("s_barrier")
            if 0 <= i - rd0 < len(nxt): a(nxt[i - rd0])
            if b == 0 and c + 3 < 8 and i in (2, 5, 8, 11): dma1(c + 3, (i - 2) // 3)
            if s_ >= OPT.get("wo_from", 10) and i in (4, 8, 12): wo_load()
    k.stamp(f"q{L}_gemm")
    a("s_mov_b32 s56, 0xcccccccc"); a("s_mov_b32 s57, s56"); a("s_mov_b32 s58, 0xaaaaaaaa"); a("s_mov_b32 s59, s58")
    a(f"s_lshl_b32 s27, s{W}, 7"); a(f"s_add_u32 s27, s27, {STAT}"); a("v_lshl_add_u32 v5, v3, 2, s27")
    a("s_lshl_b32 s27, s20, 5"); a("v_xor_b32 v6, s27, v1"); a("s_lshl_b32 s27, s21, 6"); a("v_add_u32 v6, s27, v6")
    for u in range(2):
        r = AS2 + 4*u
        a(f"v_cndmask_b32 v{r}, v{r}, v{r+2}, s[56:57]"); a(f"v_cndmask_b32 v{r+1}, v{r+1}, v{r+3}, s[56:57]"); a(f"v_cndmask_b32 v{r}, v{r}, v{r+1}, s[58:59]")
    a("s_mov_b32 exec_lo, 0x00f0000f"); a("s_mov_b32 exec_hi, 0xf0000f00")
    a(f"ds_write_b32 v5, v{AS2}"); a(f"ds_write_b32 v5, v{AS2+4} offset:64")
    a("s_mov_b64 exec, -1")
    transpose4(a, ACC[1]); wo_load(2)
    a(f"v_lshlrev_b32 v8, 2, v6"); a(f"v_add_u32 v8, {STAT}, v8")
    a("s_waitcnt lgkmcnt(0)"); a("s_barrier")
    S1, S2 = 64, 65
    a(f"ds_read_b32 v{S2}, v8")
    transpose4(a, ACC[0]); wo_load(2)
    TK, TQ = 68, 72
    sm_minmax(a, ACC[1], TK)
    a(f"v_mov_b32 v{S1}, v{ACC[0]}"); a(f"v_mov_b32 v{ACC[0]}, 0")
    a("s_waitcnt lgkmcnt(0)")
    ln_row_stats(a, S1, S2, 1, None)
    transpose4(a, ACC[2])
    R = 66; C = 76
    a(f"v_mov_b32 v{R}, v{S2}"); a(f"v_mul_f32 v{C}, {hex(LOG2E)}, v{S2}")
    P, M_ = 80, 96; O = 112
    sm_exp(a, ACC[1], P, M_, C, TK, lambda: wo_load())
    sm_norm(a, P, M_, TK)
    for i in range(8): a(f"v_cvt_pk_bf16_f32 v{O+i}, v{P+2*i}, v{P+2*i+1}")
    for i in range(8): a(f"v_cvt_pk_bf16_f32 v{O+8+i}, v{M_+2*i}, v{M_+2*i+1}")
    a(f"v_mul_u32_u24 v5, {RS}, v6"); a("s_lshl_b32 s27, s20, 6"); a(f"s_add_u32 s27, s27, {IMG}"); a("v_add_u32 v8, s27, v5")
    a("s_lshl_b32 s27, s20, 5"); a(f"s_add_u32 s27, s27, {IMG + 128}"); a("v_add_u32 v9, s27, v5")
    for i in range(4): a(f"ds_write_b128 v8, v[{O+4*i}:{O+4*i+3}] offset:{16*i}")
    for i in range(8): a(f"v_pk_mul_f32 v[{ACC[2]+2*i}:{ACC[2]+2*i+1}], v[{ACC[2]+2*i}:{ACC[2]+2*i+1}], v[{R}:{R+1}] op_sel_hi:[1,0]")
    for i in range(8): a(f"v_cvt_pk_bf16_f32 v{128+i}, v{ACC[2]+2*i}, v{ACC[2]+2*i+1}")
    for i in range(2): a(f"ds_write_b128 v9, v[{128+4*i}:{131+4*i}] offset:{16*i}")
    wo_load(32)
    a("v_lshrrev_b32 v5, 2, v1"); a(f"v_mul_u32_u24 v5, {RS}, v5"); a("v_and_b32 v10, 3, v0"); a("v_lshl_add_u32 v5, v10, 3, v5")
    a("v_add_u32 v8, s27, v5")
    a("s_lshl_b32 s27, s20, 6"); a("s_lshl_b32 s28, s21, 5"); a("s_add_u32 s27, s27, s28"); a(f"s_add_u32 s27, s27, {IMG}"); a("v_add_u32 v9, s27, v5")
    sm_minmax(a, ACC[0], TQ)
    k.stamp(f"q{L}_kimg")
    a("s_waitcnt lgkmcnt(0)"); a("s_barrier")
    FV, FP = 136, 152
    for ks in range(4):
        for hf in range(2):
            a(f"ds_read_b64_tr_b16 v[{FV+4*ks+2*hf}:{FV+4*ks+2*hf+1}], v8 offset:{(32*ks+16*hf)*RS}")
            a(f"ds_read_b64_tr_b16 v[{FP+4*ks+2*hf}:{FP+4*ks+2*hf+1}], v9 offset:{(32*ks+16*hf)*RS}")
    for r in range(12, 16): a(f"v_mov_b32 v{r}, 0x3f803f80")
    a("s_lshl_b32 s29, s26, 1"); a("s_add_u32 s29, s29, s20"); a("s_lshl_b32 s30, s29, 1"); a("s_add_u32 s30, s30, s21")
    a("s_lshl_b32 s31, s30, 6"); a(f"s_add_u32 s31, s31, {kv + 65536}"); a("s_lshl_b32 s30, s30, 10"); a(f"s_add_u32 s30, s30, {kv}")
    a("v_lshlrev_b32 v10, 2, v3"); a("v_lshl_add_u32 v11, v4, 8, v10")
    for ks in range(4):
        a(f"s_waitcnt lgkmcnt({12 - 4*ks})")
        a(f"v_mfma_f32_16x16x32_bf16 v[168:171], v[{FV+4*ks}:{FV+4*ks+3}], v[{FP+4*ks}:{FP+4*ks+3}], " + ("0" if ks == 0 else "v[168:171]"))
        a(f"v_mfma_f32_16x16x32_bf16 v[172:175], v[12:15], v[{FP+4*ks}:{FP+4*ks+3}], " + ("0" if ks == 0 else "v[172:175]"))
    a("v_lshrrev_b32 v5, 5, v6"); a("v_lshlrev_b32 v5, 16, v5"); a("v_and_b32 v6, 31, v6"); a("v_lshl_add_u32 v5, v6, 4, v5")
    a("s_lshl_b32 s27, s25, 18"); a("s_lshl_b32 s29, s29, 11"); a("s_add_u32 s29, s29, s27"); a(f"s_add_u32 s29, s29, {phiq}")
    for i in range(4): k.v(f"buffer_atomic_add_f32 v{168+i}, v11, s[4:7], s30 offen offset:{64*i}")
    a("s_mov_b64 exec, 0xffff")
    k.v("buffer_atomic_add_f32 v172, v10, s[4:7], s31 offen")
    a("s_mov_b64 exec, -1")
    k.stamp(f"q{L}_kv")
    sm_exp(a, ACC[0], P, M_, C, TQ)
    sm_norm(a, P, M_, TQ)
    for g in range(4):
        a(f"v_cvt_pk_bf16_f32 v{O+4*g}, v{P+4*g}, v{P+4*g+1}"); a(f"v_cvt_pk_bf16_f32 v{O+4*g+1}, v{P+4*g+2}, v{P+4*g+3}")
        a(f"v_cvt_pk_bf16_f32 v{O+4*g+2}, v{M_+4*g}, v{M_+4*g+1}"); a(f"v_cvt_pk_bf16_f32 v{O+4*g+3}, v{M_+4*g+2}, v{M_+4*g+3}")
        k.v(f"buffer_store_dwordx4 v[{O+4*g}:{O+4*g+3}], v5, s[4:7], s29 offen offset:{512*g} sc1")

def outp(k, L):
    a = k.a
    xin = [XT1, XT3][L]; kv = KV[L]; phiq = PHIQ[L]; final = L == 1
    ORS = 1040; OB = PA; RB = OB + 32 * ORS; TB = RB + 4 * 2048; TRS = 72
    a("s_and_b32 s25, s2, 7"); a("s_lshl_b32 s25, s25, 3"); a("s_lshr_b32 s26, s2, 5"); a("s_add_u32 s25, s25, s26")
    a("s_bfe_u32 s26, s2, 0x20003"); a("s_lshl_b32 s26, s26, 2"); a(f"s_add_u32 s26, s26, s{W}")
    a("v_and_b32 v5, 3, v0"); a("v_lshlrev_b32 v5, 7, v5"); a("v_lshl_add_u32 v5, v4, 4, v5")
    a("v_lshlrev_b32 v6, 6, v3"); a("v_lshl_add_u32 v6, v4, 4, v6")
    a("v_lshlrev_b32 v7, 4, v3"); a("v_lshl_add_u32 v7, v4, 9, v7")
    a(f"s_lshl_b32 s27, s{W}, 10"); a(f"s_add_u32 s27, s27, {kv + 65536}")
    a(f"s_lshl_b32 s28, s{W}, 14"); a("s_lshl_b32 s29, s25, 16"); a("s_add_u32 s29, s29, s28"); a(f"s_add_u32 s29, s29, {phiq}"); a(f"s_add_u32 s28, s28, {kv}")
    Z = 16; KVR = 32; PQ = 96
    for grp in range(2):
        for j in range(2): k.v(f"buffer_load_dwordx4 v[{Z+8*grp+4*j}:{Z+8*grp+4*j+3}], v5, s[4:7], s27 offen offset:{512*grp+64*j} sc1", "z")
    def head_loads(h):
        for j in range(2): k.v(f"buffer_load_dwordx4 v[{KVR+8*h+4*j}:{KVR+8*h+4*j+3}], v6, s[4:7], s28 offen offset:{2048*(h%2)+1024*j} sc1", f"h{h}")
        for t in range(2): k.v(f"buffer_load_dwordx4 v[{PQ+8*h+4*t}:{PQ+8*h+4*t+3}], v7, s[4:7], s29 offen offset:{2048*(h%2)+256*t} sc1", f"h{h}")
        if h % 2 == 1 and h < 7: a("s_add_u32 s28, s28, 4096"); a("s_add_u32 s29, s29, 4096")
    PRE = OPT.get("o_pre", 4)
    for h in range(PRE): head_loads(h)
    a("v_lshrrev_b32 v9, 2, v1"); a("v_lshlrev_b32 v9, 12, v9"); a("v_and_b32 v10, 3, v0"); a("v_lshl_add_u32 v9, v10, 4, v9")
    a("s_lshl_b32 s30, s26, 17"); a("s_lshl_b32 s31, s25, 6"); a("s_add_u32 s30, s30, s31"); a(f"s_add_u32 s30, s30, {xin}")
    a(f"s_add_u32 s31, s30, {16*4096 - 1024}")
    a(f"s_lshl_b32 s34, s{W}, 11"); a(f"s_add_u32 s34, s34, {RB}")
    def res_loads():
        a("s_mov_b32 m0, s34")
        k.v("buffer_load_dwordx4 v9, s[4:7], s30 offen sc1 lds", "res"); k.v("buffer_load_dwordx4 v9, s[4:7], s31 offen offset:1024 sc1 lds", "res")
    a(f"v_mul_u32_u24 v10, {ORS}, v3"); a("v_lshl_add_u32 v10, v4, 4, v10"); a(f"s_lshl_b32 s35, s{W}, 8"); a(f"s_add_u32 s35, s35, {OB}"); a("v_add_u32 v10, s35, v10")
    a(f"s_mov_b32 s35, {f32(1e-6)}")
    ZF = 160; KF = 168; NUM = 172; DEN = 180; TMP = 12; OQ = 16
    k.wait("z")
    k.stamp(f"o{L}_z")
    for grp in range(2):
        for i in range(4): a(f"v_cvt_pk_bf16_f32 v{ZF+4*grp+i}, v{Z+8*grp+2*i}, v{Z+8*grp+2*i+1}")
    for h in range(8):
        if h + PRE < 8: head_loads(h + PRE)
        if h + PRE == 8: res_loads()
        k.wait(f"h{h}")
        for i in range(4): a(f"v_cvt_pk_bf16_f32 v{KF+i}, v{KVR+8*h+2*i}, v{KVR+8*h+2*i+1}")
        for t in range(2):
            a(f"v_mfma_f32_16x16x32_bf16 v[{DEN+4*t}:{DEN+4*t+3}], v[{ZF+4*(h//4)}:{ZF+4*(h//4)+3}], v[{PQ+8*h+4*t}:{PQ+8*h+4*t+3}], 0")
        for t in range(2):
            a(f"v_mfma_f32_16x16x32_bf16 v[{NUM+4*t}:{NUM+4*t+3}], v[{KF}:{KF+3}], v[{PQ+8*h+4*t}:{PQ+8*h+4*t+3}], 0")
        for t in range(2): a(f"v_add_f32 v{TMP+2*t}, s35, v{DEN+4*t+(h%4)}")
        for t in range(2): a(f"v_rcp_f32 v{TMP+2*t}, v{TMP+2*t}")
        for t in range(2):
            for i in range(2): a(f"v_pk_mul_f32 v[{NUM+4*t+2*i}:{NUM+4*t+2*i+1}], v[{NUM+4*t+2*i}:{NUM+4*t+2*i+1}], v[{TMP+2*t}:{TMP+2*t+1}] op_sel_hi:[1,0]")
        oq = OQ + 8*((h//2) % 2)
        for t in range(2):
            for i in range(2): a(f"v_cvt_pk_bf16_f32 v{oq+4*t+2*(h%2)+i}, v{NUM+4*t+2*i}, v{NUM+4*t+2*i+1}")
            if h % 2 == 1: a(f"ds_write_b128 v10, v[{oq+4*t}:{oq+4*t+3}] offset:{16*ORS*t + 64*(h//2)}")
    if PRE >= 8 + 1: res_loads()
    a("v_and_b32 v5, 31, v0"); a(f"v_mul_u32_u24 v6, {ORS}, v5"); a("v_lshrrev_b32 v7, 5, v1"); a("v_lshl_add_u32 v6, v7, 4, v6"); a(f"v_add_u32 v6, {OB}, v6")
    k.stamp(f"o{L}_o")
    a("s_waitcnt lgkmcnt(0)"); a("s_barrier")
    FB = 32; ACC = 16; RR = 160
    for s_ in range(12): a(f"ds_read_b128 v[{FB+4*s_}:{FB+4*s_+3}], v6 offset:{32*s_}")
    a("v_bfe_u32 v8, v0, 2, 2"); a("v_lshlrev_b32 v8, 6, v8"); a("v_lshl_add_u32 v8, v7, 8, v8"); a("v_and_b32 v9, 1, v4"); a("v_lshl_add_u32 v8, v9, 5, v8")
    a("v_and_b32 v9, 3, v0"); a("v_lshl_add_u32 v8, v9, 3, v8"); a("v_add_u32 v8, s34, v8")
    XR = 168
    for s_ in range(32):
        issued = min(12 + s_, 32) + (4 if s_ > 20 else 0)
        a(f"s_waitcnt lgkmcnt({issued - s_ - 1})")
        a(f"v_mfma_f32_32x32x16_bf16 v[{ACC}:{ACC+15}], {wo_reg(s_)}, v[{FB+4*s_}:{FB+4*s_+3}], " + ("0" if s_ == 0 else f"v[{ACC}:{ACC+15}]"))
        if s_ + 12 < 32: a(f"ds_read_b128 v[{FB+4*(s_+12)}:{FB+4*(s_+12)+3}], v6 offset:{32*(s_+12)}")
        if s_ == 20:
            k.wait("res")
            for i in range(4): a(f"ds_read_b64_tr_b16 v[{RR+2*i}:{RR+2*i+1}], v8 offset:{512*i}")
    a("s_waitcnt lgkmcnt(0)")
    for i in range(8): unpack(a, XR+2*i, XR+2*i+1, RR+i)
    k.stamp(f"o{L}_gemm")
    T8 = list(range(32, 40))
    rnd_pairs(a, list(range(ACC, ACC+16)), T8)
    for i in range(8): a(f"v_pk_add_f32 v[{ACC+2*i}:{ACC+2*i+1}], v[{ACC+2*i}:{ACC+2*i+1}], v[{XR+2*i}:{XR+2*i+1}]")
    for i in range(8): a(f"v_cvt_pk_bf16_f32 v{T8[i]}, v{ACC+2*i}, v{ACC+2*i+1}")
    if final:
        for p in range(2):
            o = T8[4*p]
            a(f"v_permlane32_swap_b32 v{o}, v{o+2}"); a(f"v_permlane32_swap_b32 v{o+1}, v{o+3}")
        a("v_lshlrev_b32 v5, 10, v5"); a("v_lshl_add_u32 v5, v7, 4, v5")
        a("s_lshl_b32 s27, s25, 15"); a("s_lshl_b32 s28, s26, 6"); a("s_add_u32 s27, s27, s28")
        for p in range(2): k.v(f"buffer_store_dwordx4 v[{T8[4*p]}:{T8[4*p]+3}], v5, s[8:11], s27 offen offset:{32*p}")
    else:
        a(f"s_mul_i32 s27, s{W}, {32*TRS}"); a(f"s_add_u32 s27, s27, {TB}")
        a(f"v_mul_u32_u24 v8, {TRS}, v5"); a("v_lshl_add_u32 v8, v7, 3, v8"); a("v_add_u32 v8, s27, v8")
        for i in range(4): a(f"ds_write_b64 v8, v[{T8[2*i]}:{T8[2*i]+1}] offset:{16*i}")
        a("v_bfe_u32 v8, v0, 2, 2"); a("v_lshl_add_u32 v8, v4, 3, v8"); a(f"v_mul_u32_u24 v8, {TRS}, v8"); a("v_lshl_add_u32 v8, v9, 3, v8"); a("v_add_u32 v8, s27, v8")
        for i in range(8): unpack(a, XR+2*i, XR+2*i+1, T8[i])
        a("s_waitcnt lgkmcnt(0)")
        for p in range(2):
            for hf in range(2): a(f"ds_read_b64_tr_b16 v[{RR+4*p+2*hf}:{RR+4*p+2*hf+1}], v8 offset:{32*p + 4*TRS*hf}")
        a(f"v_pk_add_f32 v[12:13], v[{XR}:{XR+1}], v[{XR+2}:{XR+3}]"); a(f"v_pk_mul_f32 v[14:15], v[{XR}:{XR+1}], v[{XR}:{XR+1}]")
        a(f"v_pk_fma_f32 v[14:15], v[{XR+2}:{XR+3}], v[{XR+2}:{XR+3}], v[14:15]")
        for i in range(2, 8):
            a(f"v_pk_add_f32 v[12:13], v[12:13], v[{XR+2*i}:{XR+2*i+1}]"); a(f"v_pk_fma_f32 v[14:15], v[{XR+2*i}:{XR+2*i+1}], v[{XR+2*i}:{XR+2*i+1}], v[14:15]")
        a("v_add_f32 v12, v12, v13"); a("v_add_f32 v14, v14, v15")
        a("v_permlane32_swap_b32 v12, v14"); a("v_add_f32 v12, v12, v14")
        a("v_lshlrev_b32 v13, 2, v5"); a("v_lshl_add_u32 v13, v7, 13, v13"); a("s_lshl_b32 s28, s25, 7"); a(f"s_add_u32 s28, s28, {ST3}")
        k.v("buffer_atomic_add_f32 v12, v13, s[4:7], s28 offen")
        a("v_lshlrev_b32 v5, 6, v3"); a("v_lshl_add_u32 v5, v4, 4, v5")
        a("s_lshl_b32 s27, s25, 15"); a("s_lshl_b32 s28, s26, 11"); a("s_add_u32 s27, s27, s28"); a(f"s_add_u32 s27, s27, {X2B}")
        a("s_waitcnt lgkmcnt(2)"); k.v(f"buffer_store_dwordx4 v[{RR}:{RR+3}], v5, s[4:7], s27 offen sc1")
        a("s_waitcnt lgkmcnt(0)"); k.v(f"buffer_store_dwordx4 v[{RR+4}:{RR+7}], v5, s[4:7], s27 offen offset:1024 sc1")

def build():
    name = NAME + "_kernel"
    k = K(); a = k.a
    a.raw(kernel_header(name))
    a("s_cmp_ge_u32 s2, 256"); a("s_cbranch_scc1 L_end")
    if PROF: a("s_memrealtime s[96:97]"); a(f"v_mov_b32 v{PV}, 0"); k.stamp("start")
    phase0(k)
    conv(k, 0)
    if OPT.get("dump"):
        a("s_waitcnt vmcnt(0) lgkmcnt(0)"); a("s_barrier")
        a("v_lshlrev_b32 v5, 4, v0"); a("s_lshl_b32 s27, s2, 14"); a("s_lshl_b32 s27, s27, 1"); a(f"s_add_u32 s27, s27, {PHIQ[0]}")
        for i in range(8):
            a(f"ds_read_b128 v[8:11], v5 offset:{OPT['dump'] - 1 + 4096*i}"); a("s_waitcnt lgkmcnt(0)"); a("buffer_store_dwordx4 v[8:11], v5, s[4:7], s27 offen"); a("s_add_u32 s27, s27, 4096"); a("s_nop 1")
        a("s_endpgm")
    grid_barrier(k, 1)
    qkv(k, 0); grid_barrier(k, 2)
    outp(k, 0); grid_barrier(k, 3)
    conv(k, 1); grid_barrier(k, 4)
    qkv(k, 1); grid_barrier(k, 5)
    outp(k, 1)
    if PROF:
        k.stamp("issued"); a("s_waitcnt vmcnt(0)"); k.stamp("end")
        a("s_memrealtime s[98:99]"); a("s_waitcnt lgkmcnt(0)"); a(f"v_writelane_b32 v{PV}, s96, 62"); a(f"v_writelane_b32 v{PV}, s98, 63")
        a("s_lshl_b32 s27, s2, 10"); a(f"s_add_u32 s27, s27, {STAMP}"); a("v_lshlrev_b32 v5, 2, v0")
        a(f"buffer_store_dword v{PV}, v5, s[4:7], s27 offen")
    a.label("L_end"); a("s_endpgm")
    s = "; S4D convolution / Hedgehog linear attention stack as one persistent kernel (256 workgroups, one per CU)\n"
    s += "; generated by a hand-written generator script\n"
    s += "; @launch grid=(256,1,1) block=(256,1,1) lds=163840\n"
    s += '.amdgcn_target "amdgcn-amd-amdhsa--gfx950"\n.text\n'
    s += a.render() + kernel_desc(name, 256, 256) + "\n"
    return s, k.names

if __name__ == "__main__":
    out = f"cdna_kernels/{NAME}.s"
    for arg in sys.argv[1:]:
        if arg == "-p": PROF = True; out = "prof2.s"
        elif "=" in arg: kk, vv = arg.split("="); OPT[kk] = int(vv)
        else: out = arg
    s, names = build()
    open(out, "w").write(s)
    if PROF: json.dump(names, open(out.replace(".s", ".json"), "w"))
```

```python
import sys, struct, json
from asmlib import *

NAME = "interleave_layers__ssm_conv_s4d__linear_kernel_hedgehog__prompt"
X0B = 0x000000; XT1 = 0x200000; X2B = 0x400000; XT3 = 0x600000
WF = 0x800000; WO = 0x980000
PHIQ = [0xA00000, 0xE00000]
ZERO = 0x1200000; ZERO_SZ = 155648
KV = [ZERO, ZERO + 69632]
ST3 = ZERO + 2 * 69632
ST1 = 0x1230000
BAR = 0x1240000; GS = 256; GOFF = BAR + 0x1000
STAMP = 0x1250000
WS_USED = 0x1290000
LOG2E = 0x3fb8aa3b; INV2PI = 0x3e22f983
PA = 33280
W = 24
MEMB = 191
PV = 190
SPIN = 400000
PROF = False
OPT = dict(mimic=True)
def f32(x): return "0x%08x" % struct.unpack("<I", struct.pack("<f", x))[0]

class K:
    def __init__(self):
        self.a = Asm(); self.vm = []; self.names = []
    def __call__(self, t): self.a(t)
    def v(self, text, tag=None):
        self.a(text); self.vm.append(tag)
    def wait(self, tag, lgkm=None):
        idx = max(i for i, t in enumerate(self.vm) if t == tag)
        n = len(self.vm) - 1 - idx
        assert n <= 63, n
        self.a(f"s_waitcnt vmcnt({n})" + (f" lgkmcnt({lgkm})" if lgkm is not None else ""))
    def drained(self): self.vm = []
    def stamp(self, name):
        if not PROF: return
        i = len(self.names); assert i < 60
        self.a("s_memtime s[98:99]"); self.a("s_waitcnt lgkmcnt(0)"); self.a(f"v_writelane_b32 v{PV}, s98, {i}")
        self.names.append(name)

def unpack(a, lo, hi, src):
    a(f"v_lshlrev_b32 v{lo}, 16, v{src}"); a(f"v_and_b32 v{hi}, 0xffff0000, v{src}")
def rnd_pairs(a, regs, tmp):
    n = len(regs)
    for i in range(0, n, 2): a(f"v_cvt_pk_bf16_f32 v{tmp[i//2]}, v{regs[i]}, v{regs[i+1]}")
    for i in range(0, n, 2): unpack(a, regs[i], regs[i+1], tmp[i//2])
def cmul(a, d, z, e, t):
    a(f"v_pk_mul_f32 v[{t}:{t+1}], v[{z}:{z+1}], v[{e}:{e+1}] op_sel:[0,0] op_sel_hi:[1,0]")
    a(f"v_pk_fma_f32 v[{d}:{d+1}], v[{z}:{z+1}], v[{e}:{e+1}], v[{t}:{t+1}] op_sel:[1,1,0] op_sel_hi:[0,1,1] neg_lo:[1,0,0]")
def wo_reg(s_):
    return f"a[{192+4*s_}:{195+4*s_}]" if s_ < 16 else f"v[{192+4*(s_-16)}:{195+4*(s_-16)}]"

def bar_signal(k, e):
    a = k.a
    a(f"s_cmp_eq_u32 s{W}, 1"); a(f"s_cbranch_scc0 L_bs{e}")
    a(f"v_mov_b32 v2, {(2 << e) - 1}"); a("v_mov_b32 v5, 0")
    a("s_mov_b64 exec, 1"); a("buffer_store_byte v2, v5, s[4:7], s38 offen"); a("s_mov_b64 exec, -1")
    a.label(f"L_bs{e}")
def bar_leader(k, e):
    a = k.a
    a(f"s_cmp_eq_u32 s33, 1"); a(f"s_cbranch_scc0 L_bl{e}")
    a(f"v_lshlrev_b32 v5, {e}, v{MEMB}"); a("v_lshlrev_b32 v6, 2, v1"); a("s_mov_b32 s27, 0")
    a.label(f"L_blp{e}")
    a("buffer_load_dword v2, v6, s[4:7], s39 offen sc1"); a("s_add_u32 s27, s27, 1"); a(f"s_cmp_gt_u32 s27, {SPIN}"); a(f"s_cbranch_scc1 L_blq{e}")
    a("s_waitcnt vmcnt(0)"); a("v_and_b32 v2, v2, v5"); a("v_cmp_ne_u32 vcc, v2, v5"); a("s_nop 4"); a(f"s_cbranch_vccnz L_blp{e}")
    a.label(f"L_blq{e}")
    a("s_waitcnt vmcnt(0)")
    a(f"v_mov_b32 v2, {e + 1}"); a(f"v_mul_u32_u24 v6, {8*GS}, v1")
    a("s_mov_b64 exec, s[36:37]"); a("buffer_store_dword v2, v6, s[4:7], s40 offen sc1"); a("s_mov_b64 exec, -1")
    a.label(f"L_bl{e}")
def bar_wait(k, e):
    a = k.a
    a(f"s_cmp_eq_u32 s{W}, 2"); a(f"s_cbranch_scc0 L_bw{e}")
    a(f"v_mul_u32_u24 v6, {GS}, v1"); a("s_mov_b32 s27, 0"); a("s_mov_b64 exec, s[36:37]")
    a.label(f"L_bwp{e}")
    a("buffer_load_dword v2, v6, s[4:7], s41 offen sc1"); a("s_add_u32 s27, s27, 1"); a(f"s_cmp_gt_u32 s27, {SPIN}"); a(f"s_cbranch_scc1 L_bwq{e}")
    a("s_waitcnt vmcnt(0)"); a(f"v_cmp_gt_u32 vcc, {e + 1}, v2"); a("s_nop 4"); a("s_and_b64 exec, exec, vcc"); a(f"s_cbranch_execnz L_bwp{e}")
    a.label(f"L_bwq{e}")
    a("s_waitcnt vmcnt(0)"); a("s_mov_b64 exec, -1")
    a.label(f"L_bw{e}")
    a("s_barrier")
def grid_barrier(k, e):
    k.stamp(f"b{e}_issued")
    k("s_waitcnt vmcnt(0) lgkmcnt(0)"); k.drained(); k("s_barrier")
    k.stamp(f"b{e}_arr")
    bar_signal(k, e); bar_leader(k, e); bar_wait(k, e)
    k.stamp(f"b{e}_rel")

def phase0(k):
    a = k.a
    a("s_load_dwordx4 s[44:47], s[0:1], 0")
    a("s_load_dwordx4 s[48:51], s[0:1], 16")
    a("s_load_dwordx4 s[52:55], s[0:1], 32")
    a("s_load_dwordx2 s[16:17], s[0:1], 48")
    a("s_load_dwordx4 s[56:59], s[0:1], 64")
    a("s_load_dwordx4 s[60:63], s[0:1], 80")
    a("s_load_dwordx4 s[64:67], s[0:1], 96")
    a("v_lshrrev_b32 v2, 6, v0"); a("v_and_b32 v1, 63, v0"); a(f"v_readfirstlane_b32 s{W}, v2")
    a("v_and_b32 v3, 15, v0"); a("v_bfe_u32 v4, v0, 4, 2")
    a("s_getreg_b32 s32, hwreg(HW_REG_XCC_ID, 0, 4)"); a("s_and_b32 s32, s32, 7")
    a("s_and_b32 s18, s2, 7"); a("s_lshl_b32 s18, s18, 5"); a("s_lshr_b32 s25, s2, 3"); a("s_add_u32 s18, s18, s25")
    a("s_lshl_b32 s39, s32, 8"); a(f"s_add_u32 s39, s39, {BAR}"); a("s_add_u32 s38, s39, s2")
    a(f"s_mul_i32 s40, s32, {GS}"); a(f"s_add_u32 s40, s40, {GOFF}"); a(f"s_mul_i32 s41, s32, {8*GS}"); a(f"s_add_u32 s41, s41, {GOFF}")
    a("s_lshl_b32 s25, s18, 9"); a("v_lshl_add_u32 v5, v0, 1, s25")
    a(f"s_lshr_b32 s26, s{W}, 1"); a("s_lshl_b32 s27, s18, 1"); a("s_add_u32 s27, s27, s26"); a("s_lshl_b32 s27, s27, 1"); a("v_mov_b32 v6, s27")
    a("s_lshl_b32 s29, s2, 13"); a("v_lshl_add_u32 v7, v0, 2, s29"); a("v_add_u32 v8, 0x1000, v7")
    a(f"s_lshl_b32 s30, s{W}, 11"); a("s_add_u32 s30, s30, s29"); a("v_lshl_add_u32 v9, v1, 4, s30")
    for r in range(56, 60): a(f"v_mov_b32 v{r}, 0")
    a(f"v_mov_b32 v{MEMB}, 0")
    a("s_waitcnt lgkmcnt(0)")
    k.stamp("karg")
    a("s_mov_b32 s4, s66"); a("s_mov_b32 s5, s67"); a(f"s_mov_b32 s6, {hex(WS_USED)}"); a("s_mov_b32 s7, 0x20000")
    a("s_mov_b32 s8, s62"); a("s_mov_b32 s9, s63"); a("s_mov_b32 s10, 0x200000"); a("s_mov_b32 s11, 0x20000")
    a("s_mov_b32 s12, s64"); a("s_mov_b32 s13, s65"); a("s_mov_b32 s14, 256"); a("s_mov_b32 s15, 0x20000")
    a(f"s_cmp_eq_u32 s{W}, 3"); a("s_cbranch_scc0 L_p0a")
    a("s_mov_b64 exec, 1")
    a("buffer_store_byte v56, v56, s[4:7], s38 offen")
    a("s_and_b32 s27, s2, 63"); a(f"s_mul_i32 s27, s27, {GS}"); a(f"s_add_u32 s27, s27, {GOFF}")
    a("s_cmp_lt_u32 s2, 64"); a("s_cbranch_scc0 L_p0b")
    a("buffer_store_dword v56, v56, s[4:7], s27 offen sc1")
    a.label("L_p0b")
    a("s_mov_b64 exec, -1")
    a.label("L_p0a")
    for i in range(8): k.v(f"global_load_dword v{24+i}, v{7 if i < 4 else 8}, s[44:45] offset:{(i%4)*1024}", "x")
    k.v("global_load_dwordx4 v[16:19], v9, s[44:45]", "x"); k.v("global_load_dwordx4 v[20:23], v9, s[44:45] offset:1024", "x")
    a("s_and_b32 s19, s2, 127"); a("s_cmp_lt_u32 s19, 96")
    a("s_cselect_b32 s31, 3, 1"); a("s_cselect_b32 s34, s56, s60"); a("s_cselect_b32 s35, s57, s61")
    a("s_cselect_b32 s27, 0, 96"); a("s_lshl_b32 s31, s31, 10"); a("s_sub_u32 s27, s19, s27"); a("s_lshl_b32 s27, s27, 5")
    a("s_cmp_ge_u32 s2, 128"); a("s_cbranch_scc1 L_p0c")
    a(f"s_lshl_b32 s28, s{W}, 7"); a("v_add_u32 v52, s28, v3")
    a("v_mul_lo_u32 v52, v52, s31"); a("v_lshl_add_u32 v52, v4, 3, v52"); a("v_add_u32 v52, s27, v52")
    a("s_lshl_b32 s28, s31, 4")
    for i in range(8):
        a(f"global_load_dwordx2 v[{32+2*i}:{33+2*i}], v52, s[34:35]")
        if i < 7: a("v_add_u32 v52, s28, v52")
    a("s_and_b32 s28, s2, 31"); a("s_lshl_b32 s28, s28, 9")
    a("v_lshlrev_b32 v53, 7, v4"); a("v_add_u32 v53, s28, v53"); a("v_lshl_add_u32 v54, v3, 1, v53")
    for i in range(4): a(f"global_load_ushort v{48+i}, v54, s[58:59] offset:{32*i}")
    for i in range(4): a(f"global_load_ushort v{68+i}, v53, s[58:59] offset:{32*i}")
    a.label("L_p0c")
    for i, sp in enumerate([46, 48, 50, 52]): k.v(f"global_load_ushort v{10+i}, v5, s[{sp}:{sp+1}]", "ssm")
    k.v("global_load_ushort v14, v6, s[54:55]", "ssm")
    k.stamp("iss")
    a("s_lshl_b32 s27, s2, 10"); a("v_lshl_add_u32 v54, v0, 2, s27"); a(f"v_cmp_gt_u32 vcc, {ZERO_SZ}, v54"); a(f"s_mov_b32 s27, {ZERO}")
    a("s_and_saveexec_b64 s[28:29], vcc"); a("s_cbranch_execz L_p0d")
    a("buffer_store_dword v56, v54, s[4:7], s27 offen sc1")
    a.label("L_p0d"); a("s_mov_b64 exec, -1")
    TB = PA + 73728; GA = 108
    a("v_lshlrev_b32 v54, 3, v0")
    for j in range(12): a(f"v_add_u32 v{GA+j}, {j-3}, v54")
    for j in range(12): a(f"v_cvt_f32_i32 v{GA+j}, v{GA+j}")
    rnd_pairs(a, list(range(GA, GA+12)), list(range(120, 126)))
    for j in range(11): a(f"v_cvt_i32_f32 v{GA+j}, v{GA+j}")
    for j in range(3): a(f"v_min_u32 v{GA+j}, 3071, v{GA+j}")
    a(f"s_mov_b32 s27, {TB}")
    for j in range(11): a(f"v_lshl_add_u32 v{GA+j}, v{GA+j}, 1, s27")
    k.stamp("ga")
    a(f"s_cmp_eq_u32 s{W}, 3"); a("s_cbranch_scc0 L_p0g")
    a("s_lshl_b32 s27, s32, 5"); a("s_lshr_b32 s28, s2, 5"); a("s_lshl_b32 s28, s28, 2"); a("s_add_u32 s27, s27, s28")
    a("s_and_b32 s28, s2, 31"); a("s_lshl_b32 s28, 1, s28"); a("v_mov_b32 v55, s28")
    a("s_cmp_ge_u32 s2, 128"); a("s_cbranch_scc1 L_p0m")
    a("s_waitcnt vmcnt(32)"); a("s_branch L_p0n")
    a.label("L_p0m"); a("s_waitcnt vmcnt(15)")
    a.label("L_p0n")
    a("s_mov_b64 exec, 1"); a("buffer_atomic_or v55, v56, s[12:15], s27 offen"); a("s_mov_b64 exec, -1")
    a.label("L_p0g")
    k.stamp("regd")
    a("s_cmp_ge_u32 s2, 128"); a("s_cbranch_scc1 L_p0e")
    a("s_waitcnt vmcnt(22)"); a("s_branch L_p0f")
    a.label("L_p0e"); a("s_waitcnt vmcnt(5)")
    a.label("L_p0f")
    k.stamp("x_in")
    a("s_mov_b32 s68, 0x05040100"); a("s_mov_b32 s69, 0x07060302"); a("s_mov_b32 s70, 0x3f803f80")
    for j in range(4):
        a(f"v_perm_b32 v{60+j}, v{25+2*j}, v{24+2*j}, s68"); a(f"v_perm_b32 v{64+j}, v{25+2*j}, v{24+2*j}, s69")
    a("v_lshlrev_b32 v55, 5, v0"); a("s_lshl_b32 s29, s2, 13")
    a("buffer_store_dwordx4 v[60:63], v55, s[4:7], s29 offen sc1"); a("buffer_store_dwordx4 v[64:67], v55, s[4:7], s29 offen offset:16 sc1")
    for j in range(4):
        for r in range(2):
            src = 16 + 4*r + j
            a(f"v_dot2_f32_bf16 v{24+r}, v{src}, s70, {'0' if j == 0 else 'v%d' % (24+r)}")
            a(f"v_dot2_f32_bf16 v{26+r}, v{src}, v{src}, {'0' if j == 0 else 'v%d' % (26+r)}")
    for m in ["row_shr:1", "row_shr:2", "row_shr:4", "row_shr:8"]:
        for r in range(24, 28): a(f"v_add_f32_dpp v{r}, v{r}, v{r} {m} row_mask:0xf bank_mask:0xf bound_ctrl:1")
    for r in range(24, 28): a(f"v_add_f32_dpp v{r}, v{r}, v{r} row_bcast:15 row_mask:0xa bank_mask:0xf")
    for r in range(24, 28): a(f"v_add_f32_dpp v{r}, v{r}, v{r} row_bcast:31 row_mask:0xc bank_mask:0xf")
    a("s_lshl_b32 s27, s2, 5"); a(f"s_lshl_b32 s28, s{W}, 3"); a("s_add_u32 s27, s27, s28"); a(f"s_add_u32 s27, s27, {ST1}"); a("s_add_u32 s28, s27, 8192")
    a("s_mov_b32 exec_lo, 0"); a("s_mov_b32 exec_hi, 0x80000000")
    a("buffer_store_dwordx2 v[24:25], v56, s[4:7], s27 offen sc1"); a("buffer_store_dwordx2 v[26:27], v56, s[4:7], s28 offen sc1")
    a("s_mov_b64 exec, -1")
    k.stamp("xpub")
    CS = PA + 86016; D0 = 128
    a(f"s_cmp_eq_u32 s{W}, 3"); a("s_cbranch_scc1 L_p0o")
    a("s_waitcnt vmcnt(4)")
    a.label("L_p0o"); a("s_waitcnt vmcnt(5)")
    k.stamp("w_in")
    a("s_cmp_ge_u32 s2, 128"); a("s_cbranch_scc1 L_p0h")
    a("v_lshl_or_b32 v48, v49, 16, v48"); a("v_lshl_or_b32 v49, v51, 16, v50")
    a("v_lshl_or_b32 v68, v69, 16, v68"); a("v_lshl_or_b32 v69, v71, 16, v70")
    a("v_xor_b32 v68, 0x80008000, v68"); a("v_xor_b32 v69, 0x80008000, v69")
    a("s_cmp_lt_u32 s2, 32"); a("s_cbranch_scc1 L_p0i")
    a("v_mov_b32 v68, 0"); a("v_mov_b32 v69, 0")
    a("s_cmp_lt_u32 s2, 64"); a("s_cbranch_scc1 L_p0i")
    a("v_lshlrev_b32 v50, 2, v4"); a("v_sub_u32 v50, v3, v50")
    a("v_mov_b32 v51, 0x3f80"); a("v_mov_b32 v52, 0x3f800000"); a("v_mov_b32 v48, 0"); a("v_mov_b32 v49, 0")
    for t, (d, srcv) in enumerate([(48, 51), (48, 52), (49, 51), (49, 52)]):
        a(f"v_cmp_eq_u32 vcc, {t}, v50"); a(f"v_cndmask_b32 v{d}, v{d}, v{srcv}, vcc")
    a.label("L_p0i")
    a("s_nop 1")
    for i in range(8): a(f"v_mfma_f32_16x16x16_bf16 v[{D0+4*i}:{D0+4*i+3}], v[{32+2*i}:{33+2*i}], v[48:49], 0")
    for i in range(8): a(f"v_mfma_f32_16x16x16_bf16 v[{D0+4*i}:{D0+4*i+3}], v[{32+2*i}:{33+2*i}], v[68:69], v[{D0+4*i}:{D0+4*i+3}]")
    a(f"v_pk_add_f32 v[50:51], v[{D0}:{D0+1}], v[{D0+2}:{D0+3}]")
    for i in range(2, 16): a(f"v_pk_add_f32 v[50:51], v[50:51], v[{D0+2*i}:{D0+2*i+1}]")
    a("v_add_f32 v50, v50, v51")
    a("v_mov_b32 v51, v50"); a("v_permlane32_swap_b32 v50, v51"); a("v_add_f32 v50, v50, v51")
    a("v_mov_b32 v51, v50"); a("v_permlane16_swap_b32 v50, v51"); a("v_add_f32 v50, v50, v51")
    a(f"s_lshl_b32 s27, s{W}, 2"); a(f"s_add_u32 s27, s27, {CS}"); a("v_lshl_add_u32 v52, v3, 4, s27")
    a("ds_write_b32 v52, v50")
    a(f"v_lshlrev_b32 v52, 4, v3"); a(f"v_add_u32 v52, {CS}, v52")
    a("s_waitcnt lgkmcnt(0)"); a("s_barrier")
    a("ds_read_b128 v[32:35], v52")
    a("s_cmp_lt_u32 s2, 96"); a("s_cbranch_scc0 L_p0j")
    a("s_lshr_b32 s27, s2, 5"); a("s_and_b32 s28, s2, 31"); a("s_mul_i32 s28, s28, 49152"); a("s_lshl_b32 s27, s27, 10"); a("s_add_u32 s27, s27, s28")
    a(f"s_mul_i32 s28, s{W}, {4*3072}"); a("s_add_u32 s27, s27, s28"); a(f"s_add_u32 s27, s27, {WF}")
    a("s_mov_b32 s28, 3072"); a(f"s_mov_b32 s29, {f32(1/512)}")
    a("v_lshlrev_b32 v52, 4, v1")
    a("s_branch L_p0k")
    a.label("L_p0j")
    a("s_sub_u32 s27, s2, 96"); a("s_lshr_b32 s28, s27, 1"); a("s_lshl_b32 s28, s28, 15"); a("s_and_b32 s27, s27, 1"); a("s_lshl_b32 s27, s27, 8")
    a("s_add_u32 s27, s27, s28"); a(f"s_add_u32 s27, s27, {WO}")
    a(f"s_lshl_b32 s28, s{W}, 13"); a("s_add_u32 s27, s27, s28")
    a("s_mov_b32 s28, 2048"); a("s_mov_b32 s29, 0")
    a("v_lshlrev_b32 v52, 4, v3"); a("v_lshl_add_u32 v52, v4, 9, v52")
    a.label("L_p0k")
    a("s_cmp_lt_u32 s2, 32"); a("s_cselect_b32 s30, 0x00010001, 0"); a("s_mov_b32 s31, s30")
    a("v_mov_b32 v53, 0x3f803f80")
    a("s_waitcnt lgkmcnt(0)")
    a("v_add_f32 v32, v32, v33"); a("v_add_f32 v34, v34, v35"); a("v_add_f32 v32, v32, v34"); a("v_mul_f32 v32, s29, v32")
    for i in range(16): a(f"v_pk_add_f32 v[{D0+2*i}:{D0+2*i+1}], v[{D0+2*i}:{D0+2*i+1}], v[32:33] op_sel_hi:[1,0] neg_lo:[0,1] neg_hi:[0,1]")
    for b in range(4):
        o = 36 + 4*b
        for i in range(4): a(f"v_cvt_pk_bf16_f32 v{o+i}, v{D0+8*b+2*i}, v{D0+8*b+2*i+1}")
        for i in range(4): a(f"v_cndmask_b32 v{o+i}, v{o+i}, v53, s[30:31]")
        a(f"buffer_store_dwordx4 v[{o}:{o+3}], v52, s[4:7], s27 offen sc1")
        if b < 3: a("s_add_u32 s27, s27, s28")
    a.label("L_p0h")
    k.stamp("pub")
    a("v_lshrrev_b32 v54, 5, v0"); a("v_mul_u32_u24 v54, 9216, v54"); a("v_and_b32 v55, 31, v0"); a("v_lshl_add_u32 v54, v55, 2, v54"); a(f"v_add_u32 v54, {PA}, v54")
    for r in range(10, 15): a(f"v_lshlrev_b32 v{r}, 16, v{r}")
    a(f"v_mul_f32 v10, {hex(LOG2E)}, v10"); a(f"v_mul_f32 v14, {hex(LOG2E)}, v14")
    a("v_exp_f32 v10, v10"); a("v_exp_f32 v14, v14")
    a("v_cvt_pk_bf16_f32 v15, v10, v14"); unpack(a, 10, 14, 15)
    a("v_mul_f32 v10, v10, v14"); a("v_mul_f32 v11, v11, v14")
    a(f"v_mul_f32 v10, {hex(LOG2E | 0x80000000)}, v10"); a(f"v_mul_f32 v11, {hex(INV2PI)}, v11")
    E = {1: 72, 8: 74, 128: 76}
    for s_, e in E.items():
        t = 78
        a(f"v_mul_f32 v{t}, {f32(s_)}, v10"); a(f"v_mul_f32 v{t+1}, {f32(s_)}, v11")
        a(f"v_exp_f32 v{t}, v{t}"); a(f"v_fract_f32 v{t+1}, v{t+1}")
        a(f"v_cos_f32 v{e}, v{t+1}"); a(f"v_sin_f32 v{e+1}, v{t+1}")
        a(f"v_pk_mul_f32 v[{e}:{e+1}], v[{e}:{e+1}], v[{t}:{t+1}] op_sel:[0,0] op_sel_hi:[1,0]")
    X = [80 + 2*j for j in range(8)]; Y = 96
    pk = [100, 101, 102, 103]; pki = [0]
    def emit(row, z, neg):
        p = pk[pki[0] % 4]; pki[0] += 1
        a(f"v_cvt_pk_bf16_f32 v{p}, v{z}, {'-' if neg else ''}v{z+1}")
        a(f"ds_write_b32 v54, v{p} offset:{row*144}")
    a(f"v_mov_b32 v{X[0]}, v12"); a(f"v_mov_b32 v{X[0]+1}, v13")
    a(f"v_mov_b32 v{Y}, 1.0"); a(f"v_mov_b32 v{Y+1}, 0")
    yops = []
    for b in range(16):
        yops.append(("e", 48 + b, Y, False))
        if b < 15: yops.append(("m", Y, Y, E[8], 98))
    xops = [("e", 0, X[0], True)]
    for j in range(1, 8): xops += [("m", X[j], X[j-1], E[1], 104), ("e", j, X[j], True)]
    def blk(js, rows):
        o = []
        for kk, j in enumerate(js): o.append(("m", X[j], X[j], E[128], 104 + 2*(kk % 2)))
        for j, r in zip(js, rows): o.append(("e", r, X[j], True))
        return o
    xops += blk(range(8), range(8, 16))
    xops += blk([0, 2, 4, 6], range(16, 20)); xops += blk([0, 2, 4, 6], range(20, 24))
    for q in range(4): xops += blk([0, 4], [24 + 2*q, 25 + 2*q])
    for q in range(9): xops += blk([0], [32 + q])
    order = []; yi = 0
    for i, o in enumerate(xops):
        order.append(o)
        if (i < 15 or i >= len(xops) - 18) and yi < len(yops): order.append(yops[yi]); yi += 1
    order += yops[yi:]
    for o in order:
        if o[0] == "e": emit(o[1], o[2], o[3])
        else: cmul(a, o[1], o[2], o[3], o[4])
    a(f"v_and_b32 v55, 1, v0"); a("v_mul_u32_u24 v55, 6144, v55"); a(f"v_add_u32 v55, {TB + 6140}, v55"); a("ds_write_b32 v55, v56")
    a("v_lshrrev_b32 v55, 1, v3"); a("v_mul_u32_u24 v55, 4160, v55"); a("v_and_b32 v53, 1, v0"); a("v_lshl_add_u32 v55, v53, 4, v55"); a("ds_write_b128 v55, v[56:59]")
    k.stamp("st1")
    a("s_waitcnt vmcnt(0) lgkmcnt(0)"); a("s_barrier"); k.drained()
    k.stamp("b0_arr")
    bar_signal(k, 0)
    a("v_lshlrev_b32 v9, 2, v1")
    a("buffer_load_dword v8, v9, s[12:15], 0 offen sc1")
    a(f"s_and_b32 s25, s{W}, 1")
    a("s_mul_i32 s27, s26, 36864"); a(f"s_add_u32 s27, s27, {PA}"); a("v_mul_u32_u24 v54, 9216, v4"); a("v_mul_u32_u24 v55, 144, v3")
    a("v_add3_u32 v54, v54, v55, s27")
    a(f"s_mul_i32 s27, s25, {32*144}"); a("v_add_u32 v55, s27, v54")
    FY, FX0, FX1 = 128, 192, 224
    for s_ in range(8):
        a(f"ds_read_b128 v[{FY+4*s_}:{FY+4*s_+3}], v54 offset:{48*144+16*s_}")
        a(f"ds_read_b128 v[{FX0+4*s_}:{FX0+4*s_+3}], v55 offset:{16*s_}")
        a(f"ds_read_b128 v[{FX1+4*s_}:{FX1+4*s_+3}], v55 offset:{16*144+16*s_}")
    a("v_and_b32 v24, 7, v3"); a("v_lshrrev_b32 v25, 3, v3"); a("v_lshl_add_u32 v24, v25, 7, v24")
    a("v_lshlrev_b32 v26, 7, v3"); a("v_add_u32 v26, 1024, v26")
    a("s_cmp_eq_u32 s25, 0"); a("s_cselect_b64 vcc, -1, 0"); a("v_cndmask_b32 v24, v26, v24, vcc")
    a("v_lshrrev_b32 v25, 2, v3"); a("v_lshlrev_b32 v25, 7, v25"); a("v_and_b32 v26, 3, v3"); a("v_lshl_add_u32 v25, v26, 1, v25"); a("v_add_u32 v25, 256, v25")
    a("v_lshrrev_b32 v26, 1, v3"); a("v_lshlrev_b32 v26, 7, v26"); a("v_and_b32 v27, 1, v3"); a("v_lshl_add_u32 v26, v27, 2, v26")
    a("v_cmp_gt_u32 vcc, 8, v3"); a("v_cndmask_b32 v25, v26, v25, vcc")
    a(f"s_mul_i32 s27, s26, 6144"); a(f"s_add_u32 s27, s27, {TB}"); a("v_lshl_add_u32 v26, v4, 6, s27")
    a("v_lshl_add_u32 v24, v24, 1, v26"); a("v_lshl_add_u32 v25, v25, 1, v26")
    a("v_add_f32 v14, v14, v14")
    for s_ in range(8):
        a(f"s_waitcnt lgkmcnt({min(15, 21 - 3*s_)})")
        c0 = "0" if s_ == 0 else "v[28:31]"; c1 = "0" if s_ == 0 else "v[16:19]"
        a(f"v_mfma_f32_16x16x32_bf16 v[28:31], v[{FY+4*s_}:{FY+4*s_+3}], v[{FX0+4*s_}:{FX0+4*s_+3}], {c0}")
        a(f"v_mfma_f32_16x16x32_bf16 v[16:19], v[{FY+4*s_}:{FY+4*s_+3}], v[{FX1+4*s_}:{FX1+4*s_+3}], {c1}")
    def twrite(acc, addr):
        for i in range(4): a(f"v_mul_f32 v{acc+i}, v{acc+i}, v14")
        a(f"v_cvt_pk_bf16_f32 v{acc}, v{acc}, v{acc+1}"); a(f"v_cvt_pk_bf16_f32 v{acc+2}, v{acc+2}, v{acc+3}")
        a(f"ds_write_b16 v{addr}, v{acc}"); a(f"ds_write_b16_d16_hi v{addr}, v{acc} offset:16")
        a(f"ds_write_b16 v{addr}, v{acc+2} offset:32"); a(f"ds_write_b16_d16_hi v{addr}, v{acc+2} offset:48")
    twrite(28, 24)
    a("s_cmp_eq_u32 s25, 0"); a("s_cbranch_scc0 L_p0l")
    a("s_nop 7")
    twrite(16, 25)
    a.label("L_p0l")
    k.stamp("st2")
    a("s_mov_b32 s27, 0")
    a.label("L_reg")
    a("s_waitcnt vmcnt(0)")
    a("v_bcnt_u32_b32 v12, v8, 0")
    for m in ["row_shr:1", "row_shr:2", "row_shr:4", "row_shr:8"]: a(f"v_add_u32_dpp v12, v12, v12 {m} row_mask:0xf bank_mask:0xf bound_ctrl:1")
    a("v_add_u32_dpp v12, v12, v12 row_bcast:15 row_mask:0xa bank_mask:0xf"); a("v_add_u32_dpp v12, v12, v12 row_bcast:31 row_mask:0xc bank_mask:0xf")
    a("v_readlane_b32 s28, v12, 63"); a("s_cmp_eq_u32 s28, 256"); a("s_cbranch_scc1 L_regq")
    a("s_sleep 4")
    a("buffer_load_dword v8, v9, s[12:15], 0 offen sc1")
    a("s_add_u32 s27, s27, 1"); a(f"s_cmp_gt_u32 s27, {SPIN}"); a("s_cbranch_scc0 L_reg")
    a("s_waitcnt vmcnt(0)")
    a.label("L_regq")
    a("v_cmp_ne_u32 vcc, 0, v8"); a("s_mov_b64 s[28:29], vcc")
    a("v_lshlrev_b32 v12, 3, v1"); a("v_lshrrev_b64 v[10:11], v12, s[28:29]"); a("v_and_b32 v10, 0xff, v10")
    a("v_cmp_ne_u32 vcc, 0, v10"); a("s_nop 1"); a("s_and_b32 s36, vcc_lo, 0xff"); a("s_mov_b32 s37, 0")
    a("s_lshl_b32 s28, s32, 3"); a("v_lshrrev_b32 v12, 3, v1"); a("v_add_u32 v12, s28, v12"); a("v_lshlrev_b32 v12, 2, v12")
    a("ds_bpermute_b32 v13, v12, v8"); a("v_and_b32 v12, 7, v1"); a("v_lshlrev_b32 v12, 2, v12"); a("s_waitcnt lgkmcnt(0)")
    a("v_lshrrev_b32 v13, v12, v13"); a("v_and_b32 v13, 15, v13")
    a("v_cmp_ne_u32 vcc, 0, v13"); a("s_nop 1"); a("s_ff1_i32_b64 s28, vcc"); a("s_and_b32 s28, s28, 63")
    a("s_nop 3"); a("v_readlane_b32 s29, v13, s28"); a("s_nop 1"); a("s_ff1_i32_b32 s29, s29"); a("s_lshl_b32 s28, s28, 2"); a("s_add_u32 s28, s28, s29")
    a("s_cmp_eq_u32 s28, s2"); a("s_cselect_b32 s33, 1, 0"); a(f"s_cmp_eq_u32 s{W}, 0"); a("s_cselect_b32 s33, s33, 0")
    a("s_mov_b32 s28, 0x00204081"); a("v_mul_lo_u32 v13, v13, s28"); a(f"v_and_b32 v{MEMB}, 0x01010101, v13")
    k.stamp("reg")
    bar_leader(k, 0)
    a("s_waitcnt lgkmcnt(0)"); a("s_barrier")
    for c in range(2):
        for j in range(11): a(f"ds_read_u16 v{16+12*c+j}, v{GA+j} offset:{6144*c}")
    a("v_lshlrev_b32 v72, 4, v0")
    for c in range(2):
        a(f"s_waitcnt lgkmcnt({11 if c == 0 else 4})")
        for e in range(4):
            o = 40 + 16*c + 4*e
            for j in range(4):
                lo = 16 + 12*c + 3 - e + 2*j
                a(f"v_lshl_or_b32 v{o+j}, v{lo+1}, 16, v{lo}")
            a(f"ds_write_b128 v72, v[{o}:{o+3}] offset:{(4*c+e)*4160 + 32}")
    k.stamp("st3")
    a("s_waitcnt lgkmcnt(0)")
    bar_wait(k, 0)
    k.stamp("b0_rel")

def ln_row_stats(a, s1, s2, n, tmp):
    a(f"s_mov_b32 s70, {f32(1/512)}"); a("s_mov_b32 s71, s70"); a(f"s_mov_b32 s72, {f32(1e-5)}"); a("s_mov_b32 s73, s72")
    if n >= 2:
        for i in range(0, n, 2): a(f"v_pk_mul_f32 v[{s1+i}:{s1+i+1}], v[{s1+i}:{s1+i+1}], s[70:71]")
        for i in range(0, n, 2): a(f"v_pk_mul_f32 v[{s2+i}:{s2+i+1}], v[{s2+i}:{s2+i+1}], s[70:71]")
        for i in range(0, n, 2): a(f"v_pk_fma_f32 v[{s2+i}:{s2+i+1}], v[{s1+i}:{s1+i+1}], v[{s1+i}:{s1+i+1}], v[{s2+i}:{s2+i+1}] neg_lo:[1,0,0] neg_hi:[1,0,0]")
        for i in range(n): a(f"v_max_f32 v{s2+i}, 0, v{s2+i}")
        rnd_pairs(a, list(range(s1, s1+n)), tmp)
        rnd_pairs(a, list(range(s2, s2+n)), tmp)
        for i in range(0, n, 2): a(f"v_pk_add_f32 v[{s2+i}:{s2+i+1}], v[{s2+i}:{s2+i+1}], s[72:73]")
        rnd_pairs(a, list(range(s2, s2+n)), tmp)
        for i in range(n): a(f"v_sqrt_f32 v{s2+i}, v{s2+i}")
        rnd_pairs(a, list(range(s2, s2+n)), tmp)
        for i in range(n): a(f"v_rcp_f32 v{s2+i}, v{s2+i}")
    else:
        def r1(r): a(f"v_cvt_pk_bf16_f32 v{r}, v{r}, v{r}"); a(f"v_lshlrev_b32 v{r}, 16, v{r}")
        a(f"v_mul_f32 v{s1}, s70, v{s1}"); a(f"v_mul_f32 v{s2}, s70, v{s2}")
        a(f"v_fma_f32 v{s2}, -v{s1}, v{s1}, v{s2}"); a(f"v_max_f32 v{s2}, 0, v{s2}")
        r1(s2); a(f"v_add_f32 v{s2}, s72, v{s2}"); r1(s2); a(f"v_sqrt_f32 v{s2}, v{s2}"); r1(s2); a(f"v_rcp_f32 v{s2}, v{s2}")

def conv(k, L):
    a = k.a
    xin, st, xout = (X0B, ST1, XT1) if L == 0 else (X2B, ST3, XT3)
    UB = PA; RAWB = PA + 9216; XB = RAWB + 8192
    a(f"s_lshr_b32 s25, s{W}, 1"); a(f"s_and_b32 s26, s{W}, 1")
    a("s_lshl_b32 s28, s18, 1"); a("s_add_u32 s28, s28, s25")
    a("v_lshlrev_b32 v5, 5, v0"); a(f"s_mov_b32 s29, {st}"); a(f"s_mov_b32 s30, {st + 8192}")
    S1, S2, XA = 16, 24, 32
    k.v(f"buffer_load_dwordx4 v[{S1}:{S1+3}], v5, s[4:7], s29 offen sc1", "st"); k.v(f"buffer_load_dwordx4 v[{S1+4}:{S1+7}], v5, s[4:7], s29 offen offset:16 sc1", "st")
    k.v(f"buffer_load_dwordx4 v[{S2}:{S2+3}], v5, s[4:7], s30 offen sc1", "st"); k.v(f"buffer_load_dwordx4 v[{S2+4}:{S2+7}], v5, s[4:7], s30 offen offset:16 sc1", "st")
    if L == 0:
        a("v_lshlrev_b32 v6, 13, v0"); a("s_lshl_b32 s31, s18, 5"); co = 16
    else:
        a("v_lshrrev_b32 v6, 2, v0"); a("v_lshlrev_b32 v6, 15, v6"); a("v_and_b32 v7, 3, v0"); a("v_lshl_add_u32 v6, v7, 4, v6")
        a("s_lshl_b32 s31, s18, 7"); a(f"s_add_u32 s31, s31, {xin}"); co = 64
    k.v(f"buffer_load_dwordx4 v[{XA}:{XA+3}], v6, s[4:7], s31 offen sc1", "x"); k.v(f"buffer_load_dwordx4 v[{XA+4}:{XA+7}], v6, s[4:7], s31 offen offset:{co} sc1", "x")
    a("s_lshl_b32 s34, s28, 1"); a("v_mov_b32 v9, s34")
    k.v("global_load_ushort v10, v9, s[16:17]", "d")
    a("v_lshlrev_b32 v7, 4, v1")
    wq = [0]
    if L == 0:
        a("s_lshr_b32 s35, s2, 4"); a("s_lshl_b32 s35, s35, 1"); a("s_add_u32 s35, s35, s26"); a("s_mul_i32 s35, s35, 49152"); a(f"s_add_u32 s35, s35, {WF}")
    def wq_load(n=1):
        if L != 0: return
        for _ in range(n):
            i = wq[0]
            if i >= 48: return
            k.v(f"buffer_load_dwordx4 a[{4*i}:{4*i+3}], v7, s[4:7], s35 offen offset:{1024*(i%4)}", "wq")
            if i % 4 == 3 and i < 47: a("s_add_u32 s35, s35, 4096")
            wq[0] += 1
    wq_load(OPT.get("wq_pre", 6))
    for r in range(12, 16): a(f"v_mov_b32 v{r}, 0")
    a("v_lshrrev_b32 v9, 5, v1"); a("v_mul_u32_u24 v9, 4608, v9"); a("v_and_b32 v11, 31, v0"); a("v_lshl_add_u32 v9, v11, 4, v9")
    a(f"ds_write_b128 v9, v[12:15] offset:{UB}")
    VA, VB = 9, 11
    a("v_lshrrev_b32 v9, 2, v3"); a("v_mul_u32_u24 v9, 4160, v9"); a("v_and_b32 v11, 3, v0"); a("v_lshl_add_u32 v9, v11, 3, v9")
    a("v_lshlrev_b32 v11, 4, v4"); a("v_sub_u32 v9, v9, v11")
    a("s_mul_i32 s29, s25, 16640"); a("s_lshl_b32 s30, s26, 8"); a("s_add_u32 s29, s29, s30"); a("s_add_u32 s29, s29, 56")
    a("v_add_u32 v9, s29, v9")
    a("v_lshl_add_u32 v11, v3, 5, v11")
    a("s_mul_i32 s29, s25, 4608"); a("s_sub_u32 s29, s29, s30"); a(f"s_add_u32 s29, s29, {UB + 480 - 192}")
    a("v_add_u32 v11, s29, v11")
    a("v_lshlrev_b32 v6, 4, v0")
    a("v_lshlrev_b32 v8, 5, v3"); a("v_lshl_add_u32 v8, v4, 3, v8")
    k.wait("st")
    k.stamp(f"c{L}_st")
    ln_row_stats(a, S1, S2, 8, [40, 41, 42, 43])
    k.wait("x")
    for c in range(2):
        x = 44
        a(f"ds_write_b128 v6, v[{XA+4*c}:{XA+4*c+3}] offset:{RAWB + 4096*c}")
        for j in range(4): unpack(a, x+2*j, x+2*j+1, XA+4*c+j)
        for j in range(4): a(f"v_pk_add_f32 v[{x+2*j}:{x+2*j+1}], v[{x+2*j}:{x+2*j+1}], v[{S1+2*j}:{S1+2*j+1}] neg_lo:[0,1] neg_hi:[0,1]")
        rnd_pairs(a, list(range(x, x+8)), [40, 41, 42, 43])
        for j in range(4): a(f"v_pk_mul_f32 v[{x+2*j}:{x+2*j+1}], v[{x+2*j}:{x+2*j+1}], v[{S2+2*j}:{S2+2*j+1}]")
        for j in range(4): a(f"v_cvt_pk_bf16_f32 v{52+4*c+j}, v{x+2*j}, v{x+2*j+1}")
        a(f"ds_write_b128 v6, v[{52+4*c}:{55+4*c}] offset:{UB + 4608*c + 512}")
    ACC = 16; FA = [60, 124]; FB = [92, 156]
    def ra(b, rr, q): return [f"ds_read_b64_tr_b16 v[{FA[b]+4*q}:{FA[b]+4*q+1}], v{VA} offset:{8+512*q+64*rr}",
                              f"ds_read_b64_tr_b16 v[{FA[b]+4*q+2}:{FA[b]+4*q+3}], v{VA} offset:{512*q+64*rr}"]
    def rb(b, rr, j): return [f"ds_read_b128 v[{FB[b]+4*j}:{FB[b]+4*j+3}], v{VB} offset:{512*j+64*(3-rr)}"]
    def reads(rr):
        b = rr % 2; Lr = ra(b, rr, 0)
        for j in range(8): Lr += rb(b, rr, j)
        for q in range(1, 8): Lr += ra(b, rr, q)
        return Lr
    for q in range(8):
        for t in ra(0, 0, q): a(t)
    k.stamp(f"c{L}_u")
    a("s_waitcnt lgkmcnt(0)"); a("s_barrier")
    for j in range(8):
        for t in rb(0, 0, j): a(t)
    nm = 0
    for rr in range(4):
        b = rr % 2
        nxt = reads(rr+1) if rr < 3 else []
        kk = 0
        for q in range(8):
            for jt in range(q, 8):
                if rr == 0 and q == 0: a(f"s_waitcnt lgkmcnt({7 - jt + kk})")
                elif q == 0 and jt == 0: a("s_waitcnt lgkmcnt(0)")
                cin = "0" if (rr == 0 and q == 0) else f"v[{ACC+4*jt}:{ACC+4*jt+3}]"
                a(f"v_mfma_f32_16x16x32_bf16 v[{ACC+4*jt}:{ACC+4*jt+3}], v[{FA[b]+4*q}:{FA[b]+4*q+3}], v[{FB[b]+4*(jt-q)}:{FB[b]+4*(jt-q)+3}], {cin}")
                if kk < len(nxt): a(nxt[kk])
                kk += 1; nm += 1
                if nm % OPT.get("wq_every", 4) == 0: wq_load()
    k.stamp(f"c{L}_mfma")
    wq_load(48)
    a(f"s_lshl_b32 s29, s{W}, 12"); a(f"s_add_u32 s29, s29, {XB}"); a("v_add_u32 v5, s29, v7")
    a(f"s_xor_b32 s29, s{W}, 1"); a("s_lshl_b32 s29, s29, 12"); a(f"s_add_u32 s29, s29, {XB}"); a("v_add_u32 v6, s29, v7")
    a("s_lshl_b32 s30, s26, 11"); a("s_mul_i32 s29, s25, 4608"); a("s_add_u32 s29, s29, s30"); a(f"s_add_u32 s29, s29, {UB + 512}"); a("v_add_u32 v12, s29, v8")
    a("s_lshl_b32 s29, s25, 12"); a("s_add_u32 s29, s29, s30"); a(f"s_add_u32 s29, s29, {RAWB}"); a("v_add_u32 v13, s29, v8")
    for i in range(4): a(f"ds_read_b64 v[{60+2*i}:{61+2*i}], v12 offset:{512*i}")
    for i in range(4): a(f"ds_read_b64 v[{68+2*i}:{69+2*i}], v13 offset:{512*i}")
    a("s_cmp_eq_u32 s26, 0"); a(f"s_cbranch_scc0 L_c{L}x1")
    for i in range(4): a(f"ds_write_b128 v5, v[{ACC+16+4*i}:{ACC+19+4*i}] offset:{1024*i}")
    a(f"s_branch L_c{L}x2")
    a.label(f"L_c{L}x1")
    for i in range(4): a(f"ds_write_b128 v5, v[{ACC+4*i}:{ACC+3+4*i}] offset:{1024*i}")
    a("s_nop 1")
    for i in range(16): a(f"v_mov_b32 v{ACC+i}, v{ACC+16+i}")
    a.label(f"L_c{L}x2")
    k.wait("d", 0); a("s_barrier")
    for i in range(4): a(f"ds_read_b128 v[{76+4*i}:{79+4*i}], v6 offset:{1024*i}")
    a("v_lshlrev_b32 v10, 16, v10")
    U = 92; XR = 108; T8 = list(range(124, 132))
    for i in range(8): unpack(a, U+2*i, U+2*i+1, 60+i)
    for i in range(8): a(f"v_pk_mul_f32 v[{U+2*i}:{U+2*i+1}], v[{U+2*i}:{U+2*i+1}], v[10:11] op_sel_hi:[1,0]")
    rnd_pairs(a, list(range(U, U+16)), T8)
    for i in range(8): unpack(a, XR+2*i, XR+2*i+1, 68+i)
    a("v_and_b32 v5, 1, v4"); a("v_lshlrev_b32 v5, 9, v5"); a("v_lshl_add_u32 v5, v3, 5, v5"); a("v_lshrrev_b32 v6, 1, v4"); a("v_lshl_add_u32 v5, v6, 4, v5")
    a("s_lshl_b32 s29, s28, 12"); a("s_add_u32 s29, s29, s30"); a(f"s_add_u32 s29, s29, {xout}")
    a("s_waitcnt lgkmcnt(0)")
    for i in range(8): a(f"v_pk_add_f32 v[{ACC+2*i}:{ACC+2*i+1}], v[{ACC+2*i}:{ACC+2*i+1}], v[{76+2*i}:{77+2*i}]")
    rnd_pairs(a, list(range(ACC, ACC+16)), T8)
    for i in range(8): a(f"v_pk_add_f32 v[{ACC+2*i}:{ACC+2*i+1}], v[{ACC+2*i}:{ACC+2*i+1}], v[{U+2*i}:{U+2*i+1}]")
    rnd_pairs(a, list(range(ACC, ACC+16)), T8)
    for i in range(8): a(f"v_pk_add_f32 v[{ACC+2*i}:{ACC+2*i+1}], v[{ACC+2*i}:{ACC+2*i+1}], v[{XR+2*i}:{XR+2*i+1}]")
    for i in range(8): a(f"v_cvt_pk_bf16_f32 v{T8[i]}, v{ACC+2*i}, v{ACC+2*i+1}")
    for p in range(2):
        o = T8[4*p]
        a(f"v_permlane16_swap_b32 v{o}, v{o+2}"); a(f"v_permlane16_swap_b32 v{o+1}, v{o+3}")
        k.v(f"buffer_store_dwordx4 v[{o}:{o+3}], v5, s[4:7], s29 offen offset:{1024*p} sc1")

def sm_minmax(a, acc, t, zero0=False):
    mx, mn = t, t + 2
    a(f"v_max3_f32 v{mx}, v{acc}, v{acc+1}, v{acc+2}"); a(f"v_min3_f32 v{mn}, v{acc}, v{acc+1}, v{acc+2}")
    for i in range(3, 15, 2):
        a(f"v_max3_f32 v{mx}, v{mx}, v{acc+i}, v{acc+i+1}"); a(f"v_min3_f32 v{mn}, v{mn}, v{acc+i}, v{acc+i+1}")
    a(f"v_max_f32 v{mx}, v{mx}, v{acc+15}"); a(f"v_min_f32 v{mn}, v{mn}, v{acc+15}")
def sm_exp(a, acc, P, M, c, t, hook=lambda: None):
    mx, mn = t, t + 2
    a(f"v_mul_f32 v{mx}, v{mx}, v{c}"); a(f"v_mul_f32 v{mn}, v{mn}, v{c}")
    for i in range(0, 16, 2):
        a(f"v_pk_fma_f32 v[{P+i}:{P+i+1}], v[{acc+i}:{acc+i+1}], v[{c}:{c+1}], v[{mx}:{mx+1}] op_sel_hi:[1,0,0] neg_lo:[0,0,1] neg_hi:[0,0,1]")
        a(f"v_pk_fma_f32 v[{M+i}:{M+i+1}], v[{acc+i}:{acc+i+1}], v[{c}:{c+1}], v[{mn}:{mn+1}] op_sel_hi:[1,0,0] neg_lo:[1,0,0] neg_hi:[1,0,0]")
    for i in range(16):
        a(f"v_exp_f32 v{P+i}, v{P+i}")
        if i % 4 == 3: hook()
    for i in range(16):
        a(f"v_exp_f32 v{M+i}, v{M+i}")
        if i % 4 == 3: hook()
def sm_norm(a, P, M, t):
    sp, sm = t, t + 2
    a(f"v_pk_add_f32 v[{sp}:{sp+1}], v[{P}:{P+1}], v[{P+2}:{P+3}]"); a(f"v_pk_add_f32 v[{sm}:{sm+1}], v[{M}:{M+1}], v[{M+2}:{M+3}]")
    for i in range(4, 16, 2):
        a(f"v_pk_add_f32 v[{sp}:{sp+1}], v[{sp}:{sp+1}], v[{P+i}:{P+i+1}]"); a(f"v_pk_add_f32 v[{sm}:{sm+1}], v[{sm}:{sm+1}], v[{M+i}:{M+i+1}]")
    a(f"v_add_f32 v{sp}, v{sp}, v{sp+1}"); a(f"v_add_f32 v{sm}, v{sm}, v{sm+1}")
    a(f"v_rcp_f32 v{sp}, v{sp}"); a(f"v_rcp_f32 v{sm}, v{sm}")
    for i in range(0, 16, 2):
        a(f"v_pk_mul_f32 v[{P+i}:{P+i+1}], v[{P+i}:{P+i+1}], v[{sp}:{sp+1}] op_sel_hi:[1,0]")
        a(f"v_pk_mul_f32 v[{M+i}:{M+i+1}], v[{M+i}:{M+i+1}], v[{sm}:{sm+1}] op_sel_hi:[1,0]")
def transpose4(a, R):
    for i in range(4):
        a(f"v_permlane32_swap_b32 v{R+i}, v{R+8+i}"); a(f"v_permlane32_swap_b32 v{R+4+i}, v{R+12+i}")
    for i in range(4):
        a(f"v_permlane16_swap_b32 v{R+i}, v{R+4+i}"); a(f"v_permlane16_swap_b32 v{R+8+i}, v{R+12+i}")

def qkv(k, L):
    a = k.a
    xin = [XT1, XT3][L]; kv = KV[L]; phiq = PHIQ[L]
    NS = 6; SLOT = 16384; RB = PA + 256 - PA % 256; IMG = RB + NS * SLOT; RS = 224; STAT = IMG + 128 * RS
    assert STAT + 512 <= 163840 and RB % 256 == 0
    a("s_and_b32 s25, s2, 7"); a("s_lshl_b32 s25, s25, 1"); a("s_bfe_u32 s26, s2, 0x10003"); a("s_add_u32 s25, s25, s26")
    a("s_lshr_b32 s26, s2, 4")
    a("v_lshrrev_b32 v5, 1, v3"); a("v_xor_b32 v5, v5, v4"); a("v_lshlrev_b32 v5, 5, v5"); a("v_lshl_add_u32 v5, v4, 12, v5")
    a("v_and_b32 v6, 1, v0"); a("v_lshl_add_u32 v5, v6, 4, v5"); a("v_xor_b32 v6, 0x80, v5")
    a(f"s_lshl_b32 s28, s{W}, 16"); a("s_lshl_b32 s27, s25, 8"); a("s_add_u32 s28, s28, s27"); a(f"s_add_u32 s28, s28, {xin}")
    for i in range(1, 4): a(f"s_add_u32 s{28+i}, s28, {i*(16384-1024)}")
    a(f"s_lshl_b32 s34, s{W}, 12"); a(f"s_add_u32 s34, s34, {RB}")
    def dma1(c, i):
        if i == 0: a(f"s_add_u32 m0, s34, {(c % NS) * SLOT}")
        k.v(f"buffer_load_dwordx4 v{5 + i % 2}, s[4:7], s{28+i} offen offset:{1024*i} sc1 lds", f"x{c}")
        if c < 7: a(f"s_add_u32 s{28+i}, s{28+i}, {64*4096}")
    for c in range(3):
        for i in range(4): dma1(c, i)
    a("v_lshlrev_b32 v7, 4, v1")
    wo = [0]
    if L == 0:
        a("s_bfe_u32 s35, s2, 0x20003"); a("s_lshl_b32 s35, s35, 2"); a(f"s_add_u32 s35, s35, s{W}"); a("s_lshl_b32 s35, s35, 15"); a(f"s_add_u32 s35, s35, {WO}")
    def wo_load(n=1):
        if L != 0: return
        for _ in range(n):
            i = wo[0]
            if i >= 32: return
            k.v(f"buffer_load_dwordx4 {wo_reg(i)}, v7, s[4:7], s35 offen offset:{1024*(i%4)}", "wo")
            if i % 4 == 3 and i < 31: a("s_add_u32 s35, s35, 4096")
            wo[0] += 1
    a(f"s_and_b32 s20, s{W}, 1"); a(f"s_lshr_b32 s21, s{W}, 1")
    a("v_lshrrev_b32 v8, 2, v1")
    a("v_and_b32 v9, 7, v8"); a(f"s_lshl_b32 s27, s{W}, 1"); a("v_xor_b32 v9, s27, v9"); a("v_lshlrev_b32 v9, 5, v9")
    a("v_lshl_add_u32 v8, v8, 8, v9"); a("v_and_b32 v9, 3, v0"); a("v_lshl_add_u32 v8, v9, 3, v8"); a(f"v_add_u32 v8, {RB}, v8")
    for t in range(1, 4): a(f"v_xor_b32 v{8+t}, {32*t}, v8")
    for t in range(4): a(f"v_add_u32 v{12+t}, {3*SLOT}, v{8+t}")
    ACC = [16, 32, 48]; AS2 = 64; FX = [72, 88]
    def reads(s_):
        c = s_ // 2; sl = c % NS; b = s_ % 2; base = 8 if sl < 3 else 12; o = (sl % 3) * SLOT + (s_ % 2) * 8192
        Lr = []
        for t in range(4):
            Lr.append(f"ds_read_b64_tr_b16 v[{FX[b]+4*t}:{FX[b]+4*t+1}], v{base+t} offset:{o}")
            Lr.append(f"ds_read_b64_tr_b16 v[{FX[b]+4*t+2}:{FX[b]+4*t+3}], v{base+t} offset:{o+4096}")
        return Lr
    k.wait("x0"); a("s_barrier")
    k.stamp(f"q{L}_x0")
    for t in reads(0): a(t)
    for s_ in range(16):
        b = s_ % 2; c = s_ // 2; first = s_ == 0
        nxt = reads(s_+1) if s_ < 15 else []
        M = []
        for t in range(4):
            x = f"v[{FX[b]+4*t}:{FX[b]+4*t+3}]"
            for j in range(3):
                d = ACC[j] + 4*t
                M.append(f"v_mfma_f32_16x16x32_bf16 v[{d}:{d+3}], a[{(3*s_+j)*4}:{(3*s_+j)*4+3}], {x}, " + ("0" if first else f"v[{d}:{d+3}]"))
            if t < 2: M.append(f"v_mfma_f32_16x16x32_bf16 v[{AS2+4*t}:{AS2+4*t+3}], {x}, {x}, " + ("0" if first else f"v[{AS2+4*t}:{AS2+4*t+3}]"))
        a("s_waitcnt lgkmcnt(0)")
        rd0 = 1 if (b == 1 and s_ < 15) else 0
        for i, m in enumerate(M):
            a(m)
            if rd0 and i == rd0:
                k.wait(f"x{c+1}"); a("s_barrier")
            if 0 <= i - rd0 < len(nxt): a(nxt[i - rd0])
            if b == 0 and c + 3 < 8 and i in (2, 5, 8, 11): dma1(c + 3, (i - 2) // 3)
            if s_ >= OPT.get("wo_from", 10) and i in (4, 8, 12): wo_load()
    k.stamp(f"q{L}_gemm")
    a("s_mov_b32 s56, 0xcccccccc"); a("s_mov_b32 s57, s56"); a("s_mov_b32 s58, 0xaaaaaaaa"); a("s_mov_b32 s59, s58")
    a(f"s_lshl_b32 s27, s{W}, 7"); a(f"s_add_u32 s27, s27, {STAT}"); a("v_lshl_add_u32 v5, v3, 2, s27")
    a("s_lshl_b32 s27, s20, 5"); a("v_xor_b32 v6, s27, v1"); a("s_lshl_b32 s27, s21, 6"); a("v_add_u32 v6, s27, v6")
    for u in range(2):
        r = AS2 + 4*u
        a(f"v_cndmask_b32 v{r}, v{r}, v{r+2}, s[56:57]"); a(f"v_cndmask_b32 v{r+1}, v{r+1}, v{r+3}, s[56:57]"); a(f"v_cndmask_b32 v{r}, v{r}, v{r+1}, s[58:59]")
    a("s_mov_b32 exec_lo, 0x00f0000f"); a("s_mov_b32 exec_hi, 0xf0000f00")
    a(f"ds_write_b32 v5, v{AS2}"); a(f"ds_write_b32 v5, v{AS2+4} offset:64")
    a("s_mov_b64 exec, -1")
    transpose4(a, ACC[1]); wo_load(2)
    a(f"v_lshlrev_b32 v8, 2, v6"); a(f"v_add_u32 v8, {STAT}, v8")
    a("s_waitcnt lgkmcnt(0)"); a("s_barrier")
    S1, S2 = 64, 65
    a(f"ds_read_b32 v{S2}, v8")
    transpose4(a, ACC[0]); wo_load(2)
    TK, TQ = 68, 72
    sm_minmax(a, ACC[1], TK)
    a(f"v_mov_b32 v{S1}, v{ACC[0]}"); a(f"v_mov_b32 v{ACC[0]}, 0")
    a("s_waitcnt lgkmcnt(0)")
    ln_row_stats(a, S1, S2, 1, None)
    transpose4(a, ACC[2])
    R = 66; C = 76
    a(f"v_mov_b32 v{R}, v{S2}"); a(f"v_mul_f32 v{C}, {hex(LOG2E)}, v{S2}")
    P, M_ = 80, 96; O = 112
    sm_exp(a, ACC[1], P, M_, C, TK, lambda: wo_load())
    sm_norm(a, P, M_, TK)
    for i in range(8): a(f"v_cvt_pk_bf16_f32 v{O+i}, v{P+2*i}, v{P+2*i+1}")
    for i in range(8): a(f"v_cvt_pk_bf16_f32 v{O+8+i}, v{M_+2*i}, v{M_+2*i+1}")
    a(f"v_mul_u32_u24 v5, {RS}, v6"); a("s_lshl_b32 s27, s20, 6"); a(f"s_add_u32 s27, s27, {IMG}"); a("v_add_u32 v8, s27, v5")
    a("s_lshl_b32 s27, s20, 5"); a(f"s_add_u32 s27, s27, {IMG + 128}"); a("v_add_u32 v9, s27, v5")
    for i in range(4): a(f"ds_write_b128 v8, v[{O+4*i}:{O+4*i+3}] offset:{16*i}")
    for i in range(8): a(f"v_pk_mul_f32 v[{ACC[2]+2*i}:{ACC[2]+2*i+1}], v[{ACC[2]+2*i}:{ACC[2]+2*i+1}], v[{R}:{R+1}] op_sel_hi:[1,0]")
    for i in range(8): a(f"v_cvt_pk_bf16_f32 v{128+i}, v{ACC[2]+2*i}, v{ACC[2]+2*i+1}")
    for i in range(2): a(f"ds_write_b128 v9, v[{128+4*i}:{131+4*i}] offset:{16*i}")
    wo_load(32)
    a("v_lshrrev_b32 v5, 2, v1"); a(f"v_mul_u32_u24 v5, {RS}, v5"); a("v_and_b32 v10, 3, v0"); a("v_lshl_add_u32 v5, v10, 3, v5")
    a("v_add_u32 v8, s27, v5")
    a("s_lshl_b32 s27, s20, 6"); a("s_lshl_b32 s28, s21, 5"); a("s_add_u32 s27, s27, s28"); a(f"s_add_u32 s27, s27, {IMG}"); a("v_add_u32 v9, s27, v5")
    sm_minmax(a, ACC[0], TQ)
    k.stamp(f"q{L}_kimg")
    a("s_waitcnt lgkmcnt(0)"); a("s_barrier")
    FV, FP = 136, 152
    for ks in range(4):
        for hf in range(2):
            a(f"ds_read_b64_tr_b16 v[{FV+4*ks+2*hf}:{FV+4*ks+2*hf+1}], v8 offset:{(32*ks+16*hf)*RS}")
            a(f"ds_read_b64_tr_b16 v[{FP+4*ks+2*hf}:{FP+4*ks+2*hf+1}], v9 offset:{(32*ks+16*hf)*RS}")
    for r in range(12, 16): a(f"v_mov_b32 v{r}, 0x3f803f80")
    a("s_lshl_b32 s29, s26, 1"); a("s_add_u32 s29, s29, s20"); a("s_lshl_b32 s30, s29, 1"); a("s_add_u32 s30, s30, s21")
    a("s_lshl_b32 s31, s30, 6"); a(f"s_add_u32 s31, s31, {kv + 65536}"); a("s_lshl_b32 s30, s30, 10"); a(f"s_add_u32 s30, s30, {kv}")
    a("v_lshlrev_b32 v10, 2, v3"); a("v_lshl_add_u32 v11, v4, 8, v10")
    for ks in range(4):
        a(f"s_waitcnt lgkmcnt({12 - 4*ks})")
        a(f"v_mfma_f32_16x16x32_bf16 v[168:171], v[{FV+4*ks}:{FV+4*ks+3}], v[{FP+4*ks}:{FP+4*ks+3}], " + ("0" if ks == 0 else "v[168:171]"))
        a(f"v_mfma_f32_16x16x32_bf16 v[172:175], v[12:15], v[{FP+4*ks}:{FP+4*ks+3}], " + ("0" if ks == 0 else "v[172:175]"))
    a("v_lshrrev_b32 v5, 5, v6"); a("v_lshlrev_b32 v5, 16, v5"); a("v_and_b32 v6, 31, v6"); a("v_lshl_add_u32 v5, v6, 4, v5")
    a("s_lshl_b32 s27, s25, 18"); a("s_lshl_b32 s29, s29, 11"); a("s_add_u32 s29, s29, s27"); a(f"s_add_u32 s29, s29, {phiq}")
    for i in range(4): k.v(f"buffer_atomic_add_f32 v{168+i}, v11, s[4:7], s30 offen offset:{64*i}")
    a("s_mov_b64 exec, 0xffff")
    k.v("buffer_atomic_add_f32 v172, v10, s[4:7], s31 offen")
    a("s_mov_b64 exec, -1")
    k.stamp(f"q{L}_kv")
    sm_exp(a, ACC[0], P, M_, C, TQ)
    sm_norm(a, P, M_, TQ)
    for g in range(4):
        a(f"v_cvt_pk_bf16_f32 v{O+4*g}, v{P+4*g}, v{P+4*g+1}"); a(f"v_cvt_pk_bf16_f32 v{O+4*g+1}, v{P+4*g+2}, v{P+4*g+3}")
        a(f"v_cvt_pk_bf16_f32 v{O+4*g+2}, v{M_+4*g}, v{M_+4*g+1}"); a(f"v_cvt_pk_bf16_f32 v{O+4*g+3}, v{M_+4*g+2}, v{M_+4*g+3}")
        k.v(f"buffer_store_dwordx4 v[{O+4*g}:{O+4*g+3}], v5, s[4:7], s29 offen offset:{512*g} sc1")

def outp(k, L):
    a = k.a
    xin = [XT1, XT3][L]; kv = KV[L]; phiq = PHIQ[L]; final = L == 1
    ORS = 1040; OB = PA; RB = OB + 32 * ORS; TB = RB + 4 * 2048; TRS = 72
    a("s_and_b32 s25, s2, 7"); a("s_lshl_b32 s25, s25, 3"); a("s_lshr_b32 s26, s2, 5"); a("s_add_u32 s25, s25, s26")
    a("s_bfe_u32 s26, s2, 0x20003"); a("s_lshl_b32 s26, s26, 2"); a(f"s_add_u32 s26, s26, s{W}")
    a("v_and_b32 v5, 3, v0"); a("v_lshlrev_b32 v5, 7, v5"); a("v_lshl_add_u32 v5, v4, 4, v5")
    a("v_lshlrev_b32 v6, 6, v3"); a("v_lshl_add_u32 v6, v4, 4, v6")
    a("v_lshlrev_b32 v7, 4, v3"); a("v_lshl_add_u32 v7, v4, 9, v7")
    a(f"s_lshl_b32 s27, s{W}, 10"); a(f"s_add_u32 s27, s27, {kv + 65536}")
    a(f"s_lshl_b32 s28, s{W}, 14"); a("s_lshl_b32 s29, s25, 16"); a("s_add_u32 s29, s29, s28"); a(f"s_add_u32 s29, s29, {phiq}"); a(f"s_add_u32 s28, s28, {kv}")
    Z = 16; KVR = 32; PQ = 96
    for grp in range(2):
        for j in range(2): k.v(f"buffer_load_dwordx4 v[{Z+8*grp+4*j}:{Z+8*grp+4*j+3}], v5, s[4:7], s27 offen offset:{512*grp+64*j} sc1", "z")
    def head_loads(h):
        for j in range(2): k.v(f"buffer_load_dwordx4 v[{KVR+8*h+4*j}:{KVR+8*h+4*j+3}], v6, s[4:7], s28 offen offset:{2048*(h%2)+1024*j} sc1", f"h{h}")
        for t in range(2): k.v(f"buffer_load_dwordx4 v[{PQ+8*h+4*t}:{PQ+8*h+4*t+3}], v7, s[4:7], s29 offen offset:{2048*(h%2)+256*t} sc1", f"h{h}")
        if h % 2 == 1 and h < 7: a("s_add_u32 s28, s28, 4096"); a("s_add_u32 s29, s29, 4096")
    PRE = OPT.get("o_pre", 4)
    for h in range(PRE): head_loads(h)
    a("v_lshrrev_b32 v9, 2, v1"); a("v_lshlrev_b32 v9, 12, v9"); a("v_and_b32 v10, 3, v0"); a("v_lshl_add_u32 v9, v10, 4, v9")
    a("s_lshl_b32 s30, s26, 17"); a("s_lshl_b32 s31, s25, 6"); a("s_add_u32 s30, s30, s31"); a(f"s_add_u32 s30, s30, {xin}")
    a(f"s_add_u32 s31, s30, {16*4096 - 1024}")
    a(f"s_lshl_b32 s34, s{W}, 11"); a(f"s_add_u32 s34, s34, {RB}")
    def res_loads():
        a("s_mov_b32 m0, s34")
        k.v("buffer_load_dwordx4 v9, s[4:7], s30 offen sc1 lds", "res"); k.v("buffer_load_dwordx4 v9, s[4:7], s31 offen offset:1024 sc1 lds", "res")
    a(f"v_mul_u32_u24 v10, {ORS}, v3"); a("v_lshl_add_u32 v10, v4, 4, v10"); a(f"s_lshl_b32 s35, s{W}, 8"); a(f"s_add_u32 s35, s35, {OB}"); a("v_add_u32 v10, s35, v10")
    a(f"s_mov_b32 s35, {f32(1e-6)}")
    ZF = 160; KF = 168; NUM = 172; DEN = 180; TMP = 12; OQ = 16
    k.wait("z")
    k.stamp(f"o{L}_z")
    for grp in range(2):
        for i in range(4): a(f"v_cvt_pk_bf16_f32 v{ZF+4*grp+i}, v{Z+8*grp+2*i}, v{Z+8*grp+2*i+1}")
    for h in range(8):
        if h + PRE < 8: head_loads(h + PRE)
        if h + PRE == 8: res_loads()
        k.wait(f"h{h}")
        for i in range(4): a(f"v_cvt_pk_bf16_f32 v{KF+i}, v{KVR+8*h+2*i}, v{KVR+8*h+2*i+1}")
        for t in range(2):
            a(f"v_mfma_f32_16x16x32_bf16 v[{DEN+4*t}:{DEN+4*t+3}], v[{ZF+4*(h//4)}:{ZF+4*(h//4)+3}], v[{PQ+8*h+4*t}:{PQ+8*h+4*t+3}], 0")
        for t in range(2):
            a(f"v_mfma_f32_16x16x32_bf16 v[{NUM+4*t}:{NUM+4*t+3}], v[{KF}:{KF+3}], v[{PQ+8*h+4*t}:{PQ+8*h+4*t+3}], 0")
        for t in range(2): a(f"v_add_f32 v{TMP+2*t}, s35, v{DEN+4*t+(h%4)}")
        for t in range(2): a(f"v_rcp_f32 v{TMP+2*t}, v{TMP+2*t}")
        for t in range(2):
            for i in range(2): a(f"v_pk_mul_f32 v[{NUM+4*t+2*i}:{NUM+4*t+2*i+1}], v[{NUM+4*t+2*i}:{NUM+4*t+2*i+1}], v[{TMP+2*t}:{TMP+2*t+1}] op_sel_hi:[1,0]")
        oq = OQ + 8*((h//2) % 2)
        for t in range(2):
            for i in range(2): a(f"v_cvt_pk_bf16_f32 v{oq+4*t+2*(h%2)+i}, v{NUM+4*t+2*i}, v{NUM+4*t+2*i+1}")
            if h % 2 == 1: a(f"ds_write_b128 v10, v[{oq+4*t}:{oq+4*t+3}] offset:{16*ORS*t + 64*(h//2)}")
    if PRE >= 8 + 1: res_loads()
    a("v_and_b32 v5, 31, v0"); a(f"v_mul_u32_u24 v6, {ORS}, v5"); a("v_lshrrev_b32 v7, 5, v1"); a("v_lshl_add_u32 v6, v7, 4, v6"); a(f"v_add_u32 v6, {OB}, v6")
    k.stamp(f"o{L}_o")
    a("s_waitcnt lgkmcnt(0)"); a("s_barrier")
    FB = 32; ACC = 16; RR = 160
    for s_ in range(12): a(f"ds_read_b128 v[{FB+4*s_}:{FB+4*s_+3}], v6 offset:{32*s_}")
    a("v_bfe_u32 v8, v0, 2, 2"); a("v_lshlrev_b32 v8, 6, v8"); a("v_lshl_add_u32 v8, v7, 8, v8"); a("v_and_b32 v9, 1, v4"); a("v_lshl_add_u32 v8, v9, 5, v8")
    a("v_and_b32 v9, 3, v0"); a("v_lshl_add_u32 v8, v9, 3, v8"); a("v_add_u32 v8, s34, v8")
    XR = 168
    for s_ in range(32):
        issued = min(12 + s_, 32) + (4 if s_ > 20 else 0)
        a(f"s_waitcnt lgkmcnt({issued - s_ - 1})")
        a(f"v_mfma_f32_32x32x16_bf16 v[{ACC}:{ACC+15}], {wo_reg(s_)}, v[{FB+4*s_}:{FB+4*s_+3}], " + ("0" if s_ == 0 else f"v[{ACC}:{ACC+15}]"))
        if s_ + 12 < 32: a(f"ds_read_b128 v[{FB+4*(s_+12)}:{FB+4*(s_+12)+3}], v6 offset:{32*(s_+12)}")
        if s_ == 20:
            k.wait("res")
            for i in range(4): a(f"ds_read_b64_tr_b16 v[{RR+2*i}:{RR+2*i+1}], v8 offset:{512*i}")
    a("s_waitcnt lgkmcnt(0)")
    for i in range(8): unpack(a, XR+2*i, XR+2*i+1, RR+i)
    k.stamp(f"o{L}_gemm")
    T8 = list(range(32, 40))
    rnd_pairs(a, list(range(ACC, ACC+16)), T8)
    for i in range(8): a(f"v_pk_add_f32 v[{ACC+2*i}:{ACC+2*i+1}], v[{ACC+2*i}:{ACC+2*i+1}], v[{XR+2*i}:{XR+2*i+1}]")
    if final and OPT.get("perturb"):
        for i in range(16): a(f"v_mul_f32 v{ACC+i}, {f32(1 + OPT['perturb']/1000)}, v{ACC+i}")
    for i in range(8): a(f"v_cvt_pk_bf16_f32 v{T8[i]}, v{ACC+2*i}, v{ACC+2*i+1}")
    if final:
        for p in range(2):
            o = T8[4*p]
            a(f"v_permlane32_swap_b32 v{o}, v{o+2}"); a(f"v_permlane32_swap_b32 v{o+1}, v{o+3}")
        a("v_lshlrev_b32 v5, 10, v5"); a("v_lshl_add_u32 v5, v7, 4, v5")
        a("s_lshl_b32 s27, s25, 15"); a("s_lshl_b32 s28, s26, 6"); a("s_add_u32 s27, s27, s28")
        for p in range(2): k.v(f"buffer_store_dwordx4 v[{T8[4*p]}:{T8[4*p]+3}], v5, s[8:11], s27 offen offset:{32*p}")
    else:
        a(f"s_mul_i32 s27, s{W}, {32*TRS}"); a(f"s_add_u32 s27, s27, {TB}")
        a(f"v_mul_u32_u24 v8, {TRS}, v5"); a("v_lshl_add_u32 v8, v7, 3, v8"); a("v_add_u32 v8, s27, v8")
        for i in range(4): a(f"ds_write_b64 v8, v[{T8[2*i]}:{T8[2*i]+1}] offset:{16*i}")
        a("v_bfe_u32 v8, v0, 2, 2"); a("v_lshl_add_u32 v8, v4, 3, v8"); a(f"v_mul_u32_u24 v8, {TRS}, v8"); a("v_lshl_add_u32 v8, v9, 3, v8"); a("v_add_u32 v8, s27, v8")
        for i in range(8): unpack(a, XR+2*i, XR+2*i+1, T8[i])
        a("s_waitcnt lgkmcnt(0)")
        for p in range(2):
            for hf in range(2): a(f"ds_read_b64_tr_b16 v[{RR+4*p+2*hf}:{RR+4*p+2*hf+1}], v8 offset:{32*p + 4*TRS*hf}")
        a(f"v_pk_add_f32 v[12:13], v[{XR}:{XR+1}], v[{XR+2}:{XR+3}]"); a(f"v_pk_mul_f32 v[14:15], v[{XR}:{XR+1}], v[{XR}:{XR+1}]")
        a(f"v_pk_fma_f32 v[14:15], v[{XR+2}:{XR+3}], v[{XR+2}:{XR+3}], v[14:15]")
        for i in range(2, 8):
            a(f"v_pk_add_f32 v[12:13], v[12:13], v[{XR+2*i}:{XR+2*i+1}]"); a(f"v_pk_fma_f32 v[14:15], v[{XR+2*i}:{XR+2*i+1}], v[{XR+2*i}:{XR+2*i+1}], v[14:15]")
        a("v_add_f32 v12, v12, v13"); a("v_add_f32 v14, v14, v15")
        a("v_permlane32_swap_b32 v12, v14"); a("v_add_f32 v12, v12, v14")
        a("v_lshlrev_b32 v13, 2, v5"); a("v_lshl_add_u32 v13, v7, 13, v13"); a("s_lshl_b32 s28, s25, 7"); a(f"s_add_u32 s28, s28, {ST3}")
        k.v("buffer_atomic_add_f32 v12, v13, s[4:7], s28 offen")
        a("v_lshlrev_b32 v5, 6, v3"); a("v_lshl_add_u32 v5, v4, 4, v5")
        a("s_lshl_b32 s27, s25, 15"); a("s_lshl_b32 s28, s26, 11"); a("s_add_u32 s27, s27, s28"); a(f"s_add_u32 s27, s27, {X2B}")
        a("s_waitcnt lgkmcnt(2)"); k.v(f"buffer_store_dwordx4 v[{RR}:{RR+3}], v5, s[4:7], s27 offen sc1")
        a("s_waitcnt lgkmcnt(0)"); k.v(f"buffer_store_dwordx4 v[{RR+4}:{RR+7}], v5, s[4:7], s27 offen offset:1024 sc1")

def build():
    name = NAME + "_kernel"
    k = K(); a = k.a
    a.raw(kernel_header(name))
    a("s_cmp_ge_u32 s2, 256"); a("s_cbranch_scc1 L_end")
    if PROF: a("s_memrealtime s[96:97]"); a(f"v_mov_b32 v{PV}, 0"); k.stamp("start")
    phase0(k)
    conv(k, 0)
    if OPT.get("dump"):
        a("s_waitcnt vmcnt(0) lgkmcnt(0)"); a("s_barrier")
        a("v_lshlrev_b32 v5, 4, v0"); a("s_lshl_b32 s27, s2, 14"); a("s_lshl_b32 s27, s27, 1"); a(f"s_add_u32 s27, s27, {PHIQ[0]}")
        for i in range(8):
            a(f"ds_read_b128 v[8:11], v5 offset:{OPT['dump'] - 1 + 4096*i}"); a("s_waitcnt lgkmcnt(0)"); a("buffer_store_dwordx4 v[8:11], v5, s[4:7], s27 offen"); a("s_add_u32 s27, s27, 4096"); a("s_nop 1")
        a("s_endpgm")
    grid_barrier(k, 1)
    qkv(k, 0); grid_barrier(k, 2)
    outp(k, 0); grid_barrier(k, 3)
    conv(k, 1); grid_barrier(k, 4)
    qkv(k, 1); grid_barrier(k, 5)
    outp(k, 1)
    if PROF:
        k.stamp("issued"); a("s_waitcnt vmcnt(0)"); k.stamp("end")
        a("s_memrealtime s[98:99]"); a("s_waitcnt lgkmcnt(0)"); a(f"v_writelane_b32 v{PV}, s96, 62"); a(f"v_writelane_b32 v{PV}, s98, 63")
        a("s_lshl_b32 s27, s2, 10"); a(f"s_add_u32 s27, s27, {STAMP}"); a("v_lshlrev_b32 v5, 2, v0")
        a(f"buffer_store_dword v{PV}, v5, s[4:7], s27 offen")
    a.label("L_end"); a("s_endpgm")
    s = "; S4D convolution / Hedgehog linear attention stack as one persistent kernel (256 workgroups, one per CU)\n"
    s += "; generated by a hand-written generator script\n"
    s += "; @launch grid=(256,1,1) block=(256,1,1) lds=163840\n"
    s += '.amdgcn_target "amdgcn-amd-amdhsa--gfx950"\n.text\n'
    s += a.render() + kernel_desc(name, 256, 256) + "\n"
    return s, k.names

if __name__ == "__main__":
    out = f"cdna_kernels/{NAME}.s"
    for arg in sys.argv[1:]:
        if arg == "-p": PROF = True; out = "prof2.s"
        elif "=" in arg: kk, vv = arg.split("="); OPT[kk] = int(vv)
        else: out = arg
    s, names = build()
    open(out, "w").write(s)
    if PROF: json.dump(names, open(out.replace(".s", ".json"), "w"))
```

```python
import re

def vr(a, n=1, p="v"):
    return f"{p}{a}" if n == 1 else f"{p}[{a}:{a+n-1}]"
def ar(a, n=1): return vr(a, n, "a")
def sr(a, n=1): return vr(a, n, "s")

_reg = re.compile(r"^(-|\|)?(?:abs\()?([vas])(?:(\d+)|\[(\d+):(\d+)\])\)?\|?$")
def regs_of(tok):
    tok = tok.strip()
    if tok == "vcc": return [("s", "vcc")]
    if tok == "exec": return [("s", "exec")]
    if tok == "m0": return [("s", "m0")]
    m = _reg.match(tok)
    if not m: return []
    k = m.group(2)
    if m.group(3) is not None: return [(k, int(m.group(3)))]
    return [(k, i) for i in range(int(m.group(4)), int(m.group(5)) + 1)]

TRANS = ("v_exp_f32", "v_log_f32", "v_rcp_f32", "v_rsq_f32", "v_sqrt_f32", "v_sin_f32", "v_cos_f32")
def passes(op):
    if "32x32x16" in op or "32x32x8" in op: return 8
    if "16x16x32" in op or "16x16x16" in op: return 4
    raise ValueError(op)

class Ins:
    def __init__(self, text):
        self.text = text
        t = text.split(";")[0].strip()
        self.op = t.split()[0] if t else ""
        rest = t[len(self.op):].strip()
        ops = [o.strip() for o in rest.split(",")] if rest else []
        self.mods = ""
        if ops:
            joined = ", ".join(ops)
            m = re.search(r"\s(op_sel|op_sel_hi|neg_lo|neg_hi|offset|offen|offset0|offset1|lds|sc0|sc1|nt|quad_perm|row_|wave_|bank_mask|bound_ctrl|clamp|dst_sel|src0_sel|src1_sel|dst_unused|cbsz|abid|blgp|mul:|div:)", " " + joined)
            if m:
                self.mods = joined[m.start():]
                joined = joined[:m.start()]
            ops = [o.strip() for o in joined.split(",")]
        self.ops = ops
        op = self.op
        self.kind = "other"; self.w = []; self.r = []; self.srcC = []; self.ab = []
        R = lambda i: regs_of(ops[i]) if i < len(ops) else []
        if op.startswith("v_mfma"):
            self.kind = "mfma"; self.w = R(0); self.ab = R(1) + R(2); self.srcC = R(3); self.r = self.ab + self.srcC
        elif op.startswith("v_"):
            self.kind = "valu"
            self.w = R(0); self.r = sum((R(i) for i in range(1, len(ops))), [])
            if op.startswith(("v_fmac", "v_dot2c", "v_pk_fmac")): self.r += R(0)
            if "permlane" in op and "swap" in op: self.w = R(0) + R(1); self.r = R(0) + R(1)
            if op.startswith(("v_add_co", "v_sub_co", "v_addc_co", "v_subb_co")): self.w = R(0) + R(1); self.r = sum((R(i) for i in range(2, len(ops))), [])
            if "dpp" in op or "row_" in self.mods or "quad_perm" in self.mods or "wave_" in self.mods:
                self.dpp = True; self.r += R(0)
        elif op.startswith("ds_read") or op.startswith("ds_bpermute") or op.startswith("ds_swizzle"):
            self.kind = "ds"; self.w = R(0); self.r = sum((R(i) for i in range(1, len(ops))), [])
            if "d16" in op: self.r += R(0)
        elif op.startswith("ds_"):
            self.kind = "ds"; self.r = sum((R(i) for i in range(len(ops))), [])
        elif op.startswith("buffer_load"):
            self.kind = "vmem"
            if " lds" in (" " + self.mods):
                self.r = sum((R(i) for i in range(len(ops))), []) + [("s", "m0")]; self.ldsdma = True
            else:
                self.w = R(0); self.r = sum((R(i) for i in range(1, len(ops))), [])
        elif op.startswith(("buffer_store", "buffer_atomic")):
            self.kind = "vmem"; self.r = sum((R(i) for i in range(len(ops))), [])
            self.data = R(0)
            if op.startswith("buffer_atomic") and "sc0" in self.mods: self.w = R(0)
        elif op.startswith("global_load"):
            self.kind = "vmem"; self.w = R(0); self.r = sum((R(i) for i in range(1, len(ops))), [])
        elif op.startswith(("global_store", "global_atomic")):
            self.kind = "vmem"; self.r = sum((R(i) for i in range(len(ops))), []); self.data = R(1)
        elif op.startswith("s_"):
            self.kind = "salu"
            if op.startswith(("s_cmp", "s_cbranch", "s_branch", "s_waitcnt", "s_barrier", "s_nop", "s_endpgm", "s_setprio", "s_sleep", "s_bitcmp")):
                self.r = sum((R(i) for i in range(len(ops))), [])
            else:
                self.w = R(0); self.r = sum((R(i) for i in range(1, len(ops))), [])
                if "saveexec" in op: self.w += [("s", "exec")]
    def states(self):
        if self.op == "s_nop": return int(self.ops[0], 0) + 1
        return 1

def need(prev, cur):
    n = 0
    pw = set(prev.w); cr = set(cur.r); cw = set(cur.w)
    vw = {x for x in pw if x[0] in "va"}; sw = {x for x in pw if x[0] == "s"}
    if prev.kind == "valu":
        if cur.kind == "mfma" and vw & cr: n = max(n, 2)
        if prev.op.startswith(TRANS) and vw & cr: n = max(n, 1)
        if prev.op.startswith("v_dot") and cur.kind in ("valu", "mfma", "ds", "vmem") and (vw & (cr | cw)):
            same_c = cur.op == prev.op and not (vw & set(sum((regs_of(o) for o in cur.ops[1:3]), [])))
            if not same_c: n = max(n, 3)
        if cur.kind == "valu":
            if cur.op.startswith(("v_readfirstlane", "v_readlane")) and vw & cr: n = max(n, 1)
            if "permlane" in cur.op and vw & cr: n = max(n, 2)
            if getattr(cur, "dpp", False) and vw & cr: n = max(n, 2)
            if sw & cr: n = max(n, 2)
            if cur.op.startswith("v_cndmask") and len(cur.ops) == 3 and ("s", "vcc") in sw: n = max(n, 2)
            if cur.op.startswith(("v_readlane", "v_writelane")) and sw & cr: n = max(n, 4)
        if cur.kind == "vmem" and sw & cr: n = max(n, 5)
        if cur.kind == "salu" and sw & cr: n = max(n, 1)
    if prev.kind == "mfma":
        p = passes(prev.op); full = {4: 8, 8: 12}[p]
        if cur.kind == "mfma":
            if pw & set(cur.ab): n = max(n, full)
            if pw & set(cur.srcC):
                if not (prev.w == cur.srcC and passes(cur.op) == p): n = max(n, {4: 6, 8: 10}[p])
            elif pw & cw: n = max(n, full)
        elif cur.kind in ("valu", "ds", "vmem"):
            if pw & (cr | cw): n = max(n, full)
            if cur.kind == "valu" and set(prev.srcC) & cw: n = max(n, {4: 3, 8: 7}[p])
    if prev.kind == "salu" and ("s", "m0") in pw and getattr(cur, "ldsdma", False): n = max(n, 1)
    if prev.kind == "vmem" and hasattr(prev, "data") and len(prev.data) >= 3:
        if set(prev.data) & cw: n = max(n, 2)
    return n

class Asm:
    def __init__(self):
        self.items = []
        self.walks = {}
    def __call__(self, text):
        for line in text.split("\n"):
            line = line.strip()
            if line: self.items.append(("i", line))
    def label(self, l): self.items.append(("l", l))
    def raw(self, t): self.items.append(("x", t))
    def c(self, t): self.items.append(("x", "    ; " + t))
    def walk_begin(self, name): self.items.append(("x", f";@wb {name}"))
    def force_stub(self): self.items.append(("x", ";@fs"))
    def render(self):
        out = []; hist = []
        nops = 0
        for kind, t in self.items:
            if kind == "l": out.append(t + ":"); continue
            if kind == "x": out.append(t); continue
            ins = Ins(t)
            dist = 0; req = 0
            for p in reversed(hist):
                if dist >= 20: break
                nd = need(p, ins)
                if nd > dist: req = max(req, nd - dist)
                dist += p.states()
            while req > 0:
                k = min(req, 16)
                nop = Ins(f"s_nop {k-1}"); hist.append(nop); out.append(f"    s_nop {k-1}"); req -= k; nops += 1
            hist.append(ins); hist = hist[-24:]
            out.append("    " + t)
            if ins.op == "s_endpgm": hist = []
        return "\n".join(out) + "\n"

def kernel_header(name):
    return f".globl {name}\n.p2align 8\n.type {name},@function\n{name}:"
def kernel_desc(name, vgpr, agpr=0, sgpr=102):
    acc = max(4, (vgpr + 3) // 4 * 4)
    nfv = acc + agpr if agpr else vgpr
    return f""".section .rodata,"a"
.p2align 6
.amdhsa_kernel {name}
  .amdhsa_next_free_vgpr {nfv}
  .amdhsa_next_free_sgpr {sgpr}
  .amdhsa_accum_offset {acc}
  .amdhsa_group_segment_fixed_size 0
  .amdhsa_kernarg_size 112
  .amdhsa_user_sgpr_count 2
  .amdhsa_user_sgpr_kernarg_segment_ptr 1
  .amdhsa_system_sgpr_workgroup_id_x 1
.end_amdhsa_kernel
.text"""


def place_page_stubs(text, head, main="L_main"):
    import subprocess, tempfile, os
    probe = re.sub(r"@WALK\((\w+)\)", main, text)
    d = tempfile.mkdtemp(); src = os.path.join(d, "p.s"); obj = os.path.join(d, "p.o")
    open(src, "w").write(head + probe)
    subprocess.run(["clang", "-x", "assembler", "-target", "amdgcn-amd-amdhsa", "-mcpu=gfx950", "-c", src, "-o", obj], check=True)
    dis = subprocess.run(["llvm-objdump", "-d", "--mcpu=gfx950", obj], capture_output=True, text=True).stdout
    dis = dis[dis.index(f"<{main}>:"):]
    sizes = [4 * len(m.group(1).split()) for m in re.finditer(r"// [0-9A-F]{12}: ([0-9A-F ]+)", dis)]
    lines = text.split("\n"); st = lines.index(main + ":")
    out = lines[:st+1]; addr = 0; k = 0; page = 0; ns = False; regions = {}; cur = None; want = False
    for ln in lines[st+1:]:
        if ln.startswith(";@wb"): cur = ln.split()[1]; regions[cur] = []; continue
        if ln.startswith(";@fs"): want = True; continue
        if ln.startswith("    ") and not ln.strip().startswith((";", ".")):
            if addr // 4096 > page: page = addr // 4096; want = True
            if want and not ns and cur:
                regions[cur].append(len(out)); out.append(None); addr += 4; want = False
            t = ln.strip()
            if "exec" in t.split(",")[0] and not t.startswith("s_cbranch"): ns = not t.endswith("-1")
            addr += sizes[k]; k += 1
        out.append(ln)
    for name, pos in regions.items():
        for i, p in enumerate(pos):
            out[p] = f"L_{name}_{i}:\n    s_cbranch_execz " + (f"L_{name}_{i+1}" if i + 1 < len(pos) else f"L_{name}_ret")
    res = "\n".join(out)
    res = re.sub(r"@WALK\((\w+)\)", lambda m: f"L_{m.group(1)}_0" if regions.get(m.group(1)) else f"L_{m.group(1)}_ret", res)
    return res, {n: len(p) for n, p in regions.items()}, addr
```

```python
import sys, struct, json
from asmlib import *

NAME = "interleave_layers__ssm_conv_s4d__linear_kernel_hedgehog__prompt"
PROF = False
OPT = {}
X0B = 0x000000
XT1 = 0x420000; XT3 = 0x820000
X2B = 0x620000
WF = 0xA20000; WO = 0xBA0000
PHIQ = [0xC20000 - 0x0, 0x1020000 - 0x20000 + 0x20000]
ZERO = 0x1420000; KVSZ = 65536 + 8192; ZERO_SZ = 2 * KVSZ + 16384
KV = [ZERO, ZERO + KVSZ]
ST3 = ZERO + 2 * KVSZ
BAR = 0x1470000; GS = 256; GOFF = BAR + 0x1000
STAMP = 0x1480000
WS_USED = 0x14C0000
RBS = 16384 + 256
LOG2E = 0x3fb8aa3b; INV2PI = 0x3e22f983
CSB = 33280
PA = 33792
W = 24
MEMB = 191; PV = 190; B0, B1 = 188, 189
SPIN = 400000
def f32(x): return "0x%08x" % struct.unpack("<I", struct.pack("<f", x))[0]

class K:
    def __init__(self):
        self.a = Asm(); self.vm = []; self.names = []
    def __call__(self, t): self.a(t)
    def v(self, text, tag=None):
        self.a(text); self.vm.append(tag)
    def wait(self, tag, lgkm=None):
        idx = max(i for i, t in enumerate(self.vm) if t == tag)
        n = len(self.vm) - 1 - idx
        assert n <= 63, n
        self.a(f"s_waitcnt vmcnt({n})" + (f" lgkmcnt({lgkm})" if lgkm is not None else ""))
    def drained(self): self.vm = []
    def stamp(self, name, lvl=1):
        if not PROF or lvl > OPT.get("plvl", 1): return
        if name in self.names: i = self.names.index(name)
        else: i = len(self.names); self.names.append(name)
        assert i < 60
        self.a("s_memtime s[98:99]"); self.a("s_waitcnt lgkmcnt(0)"); self.a(f"v_writelane_b32 v{PV}, s98, {i}")

def unpack(a, lo, hi, src):
    a(f"v_lshlrev_b32 v{lo}, 16, v{src}"); a(f"v_and_b32 v{hi}, 0xffff0000, v{src}")
def rnd_pairs(a, regs, tmp):
    n = len(regs)
    for i in range(0, n, 2): a(f"v_cvt_pk_bf16_f32 v{tmp[i//2]}, v{regs[i]}, v{regs[i+1]}")
    for i in range(0, n, 2): unpack(a, regs[i], regs[i+1], tmp[i//2])
def cmul_ops(d, z, e, t):
    return [f"v_pk_mul_f32 v[{t}:{t+1}], v[{z}:{z+1}], v[{e}:{e+1}] op_sel:[0,0] op_sel_hi:[1,0]",
            f"v_pk_fma_f32 v[{d}:{d+1}], v[{z}:{z+1}], v[{e}:{e+1}], v[{t}:{t+1}] op_sel:[1,1,0] op_sel_hi:[0,1,1] neg_lo:[1,0,0]"]
def wo_reg(i):
    return f"a[{192+4*i}:{195+4*i}]" if i < 16 else f"v[{192+4*(i-16)}:{195+4*(i-16)}]"

def bar_signal(k, e):
    a = k.a
    a(f"s_cmp_eq_u32 s{W}, 1"); a(f"s_cbranch_scc0 L_bs{e}")
    a(f"v_mov_b32 v{B0}, {(2 << e) - 1}"); a(f"v_mov_b32 v{B1}, 0")
    a("s_mov_b64 exec, 1"); a(f"buffer_store_byte v{B0}, v{B1}, s[4:7], s38 offen"); a("s_mov_b64 exec, -1")
    a.label(f"L_bs{e}")
def bar_leader(k, e):
    a = k.a
    a(f"s_cmp_eq_u32 s33, 1"); a(f"s_cbranch_scc0 L_bl{e}")
    a(f"v_lshlrev_b32 v{B0}, {e}, v{MEMB}"); a(f"v_lshlrev_b32 v{B1}, 2, v1"); a("s_mov_b32 s23, 0")
    a.label(f"L_blp{e}")
    a(f"buffer_load_dword v2, v{B1}, s[4:7], s39 offen sc1"); a("s_add_u32 s23, s23, 1"); a(f"s_cmp_gt_u32 s23, {SPIN}"); a(f"s_cbranch_scc1 L_blq{e}")
    a("s_waitcnt vmcnt(0)"); a(f"v_and_b32 v2, v2, v{B0}"); a(f"v_cmp_ne_u32 vcc, v2, v{B0}"); a("s_nop 4"); a(f"s_cbranch_vccnz L_blp{e}")
    a.label(f"L_blq{e}")
    a("s_waitcnt vmcnt(0)")
    a(f"v_mov_b32 v{B0}, {e + 1}"); a(f"v_mul_u32_u24 v{B1}, {8*GS}, v1")
    a("s_mov_b64 exec, s[36:37]"); a(f"buffer_store_dword v{B0}, v{B1}, s[4:7], s40 offen sc1"); a("s_mov_b64 exec, -1")
    a.label(f"L_bl{e}")
def bar_wait(k, e):
    a = k.a
    a(f"s_cmp_eq_u32 s{W}, 0"); a(f"s_cbranch_scc0 L_bw{e}")
    a(f"v_mul_u32_u24 v{B1}, {GS}, v1"); a("s_mov_b32 s23, 0"); a("s_mov_b64 exec, s[36:37]")
    a.label(f"L_bwp{e}")
    a(f"buffer_load_dword v2, v{B1}, s[4:7], s41 offen sc1"); a("s_add_u32 s23, s23, 1"); a(f"s_cmp_gt_u32 s23, {SPIN}"); a(f"s_cbranch_scc1 L_bwq{e}")
    a("s_waitcnt vmcnt(0)"); a(f"v_cmp_gt_u32 vcc, {e + 1}, v2"); a("s_nop 4"); a("s_and_b64 exec, exec, vcc"); a(f"s_cbranch_execnz L_bwp{e}")
    a.label(f"L_bwq{e}")
    a("s_waitcnt vmcnt(0)"); a("s_mov_b64 exec, -1")
    a.label(f"L_bw{e}")
    a("s_waitcnt lgkmcnt(0)"); a("s_barrier")
def walker(k, name, wave):
    a = k.a
    if not OPT.get("walk", 1): return
    a(f"s_cmp_eq_u32 s{W}, {wave}"); a(f"s_cbranch_scc0 L_{name}_skip")
    a("s_mov_b64 exec, 0"); a(f"s_branch @WALK({name})")
    a.label(f"L_{name}_ret"); a("s_mov_b64 exec, -1")
    a.label(f"L_{name}_skip")
def grid_barrier(k, e, pre):
    k.stamp(f"b{e}_iss")
    k("s_waitcnt vmcnt(0) lgkmcnt(0)"); k.drained(); k("s_barrier")
    k.stamp(f"b{e}_arr")
    bar_signal(k, e); walker(k, f'wk{e}', 1); bar_leader(k, e); pre(); bar_wait(k, e)
    k.stamp(f"b{e}_rel")

def phase0(k, pre):
    a = k.a
    a("s_load_dwordx4 s[64:67], s[0:1], 96")
    a("s_load_dwordx16 s[44:59], s[0:1], 0")
    a("s_load_dwordx8 s[68:75], s[0:1], 64")
    a("v_lshrrev_b32 v2, 6, v0"); a("v_and_b32 v1, 63, v0"); a(f"v_readfirstlane_b32 s{W}, v2")
    a("v_and_b32 v3, 15, v0"); a("v_bfe_u32 v4, v0, 4, 2")
    a("s_getreg_b32 s32, hwreg(HW_REG_XCC_ID, 0, 4)"); a("s_and_b32 s32, s32, 7")
    a("s_and_b32 s18, s2, 7"); a("s_lshl_b32 s18, s18, 5"); a("s_lshr_b32 s25, s2, 3"); a("s_add_u32 s18, s18, s25")
    a("s_lshl_b32 s39, s32, 8"); a(f"s_add_u32 s39, s39, {BAR}"); a("s_add_u32 s38, s39, s2")
    a(f"s_mul_i32 s40, s32, {GS}"); a(f"s_add_u32 s40, s40, {GOFF}"); a(f"s_mul_i32 s41, s32, {8*GS}"); a(f"s_add_u32 s41, s41, {GOFF}")
    a("s_mov_b32 s33, 0"); a("s_mov_b64 s[36:37], 0")
    a("s_lshl_b32 s25, s18, 9"); a("v_lshl_add_u32 v5, v0, 1, s25")
    a(f"s_lshr_b32 s26, s{W}, 1"); a("s_lshl_b32 s27, s18, 1"); a("s_add_u32 s27, s27, s26"); a("s_lshl_b32 s27, s27, 1"); a("v_mov_b32 v6, s27")
    a("s_lshl_b32 s29, s2, 13"); a("v_lshlrev_b32 v7, 4, v1"); a("v_mov_b32 v8, 0")
    a(f"s_lshl_b32 s30, s{W}, 11"); a("s_add_u32 s30, s30, s29"); a("v_add_u32 v9, s30, v7")
    for r in range(56, 60): a(f"v_mov_b32 v{r}, 0")
    a(f"v_mov_b32 v{MEMB}, 0")
    a("s_and_b32 s19, s2, 15"); a("s_lshr_b32 s20, s2, 4"); a("s_cmp_lt_u32 s19, 12")
    a("s_cselect_b32 s31, 3, 1"); a("s_cselect_b32 s27, 0, 12"); a("s_lshl_b32 s31, s31, 10"); a("s_sub_u32 s21, s19, s27")
    a("s_lshl_b32 s27, s20, 5"); a("v_add_u32 v52, s27, v3"); a("v_mul_lo_u32 v52, v52, s31"); a("v_lshl_add_u32 v52, v4, 4, v52")
    a("s_lshl_b32 s27, s21, 8"); a(f"s_lshl_b32 s28, s{W}, 6"); a("s_add_u32 s27, s27, s28"); a("v_add_u32 v52, s27, v52")
    a("s_lshl_b32 s27, s31, 4"); a("v_add_u32 v53, s27, v52")
    a("s_and_b32 s22, s19, 3"); a("s_lshl_b32 s22, s22, 3"); a(f"s_lshl_b32 s27, s{W}, 1"); a("s_add_u32 s22, s22, s27")
    a("s_lshl_b32 s27, s22, 9"); a("v_add_u32 v54, s27, v7")
    a("s_waitcnt lgkmcnt(0)")
    k.stamp("karg")
    a("s_mov_b32 s4, s66"); a("s_mov_b32 s5, s67"); a(f"s_mov_b32 s6, {hex(WS_USED)}"); a("s_mov_b32 s7, 0x20000")
    a(f"s_cmp_eq_u32 s{W}, 3"); a("s_cbranch_scc0 L_p0a")
    a("s_mov_b64 exec, 1")
    a("buffer_store_byte v56, v56, s[4:7], s38 offen")
    a(f"s_mul_i32 s27, s2, {GS}"); a(f"s_add_u32 s27, s27, {GOFF}")
    a("s_cmp_lt_u32 s2, 64"); a("s_cbranch_scc0 L_p0b")
    a("buffer_store_dword v56, v56, s[4:7], s27 offen sc1")
    a.label("L_p0b")
    a("s_mov_b64 exec, -1")
    a.label("L_p0a")
    k.vm.append("clr")
    k.v("global_load_dwordx4 v[16:19], v9, s[44:45]", "x"); k.v("global_load_dwordx4 v[20:23], v9, s[44:45] offset:1024", "x")
    a("s_cmp_lt_u32 s19, 12"); a("s_cselect_b32 s34, s68, s72"); a("s_cselect_b32 s35, s69, s73")
    k.v("global_load_dwordx4 v[32:35], v52, s[34:35]", "w"); k.v("global_load_dwordx4 v[36:39], v53, s[34:35]", "w")
    k.v("global_load_dwordx4 v[40:43], v54, s[70:71]", "w")
    for i, sp in enumerate([46, 48, 50, 52]): k.v(f"global_load_ushort v{10+i}, v5, s[{sp}:{sp+1}]", "ssm")
    k.v("global_load_ushort v14, v6, s[54:55]", "ssm"); k.v("global_load_ushort v15, v6, s[56:57]", "ssm")
    a("s_mov_b32 s8, s74"); a("s_mov_b32 s9, s75"); a("s_mov_b32 s10, 0x200000"); a("s_mov_b32 s11, 0x20000")
    a("s_mov_b32 s12, s64"); a("s_mov_b32 s13, s65"); a("s_mov_b32 s14, 256"); a("s_mov_b32 s15, 0x20000")
    a("s_branch L_main"); a.raw(".p2align 12"); a.label("L_main"); a.walk_begin("wkp")
    walker(k, "wkp", 2)
    k.stamp("iss", 2)
    a(f"s_cmp_eq_u32 s{W}, 3"); a("s_cbranch_scc0 L_p0g")
    a("s_lshl_b32 s27, s32, 5"); a("s_lshr_b32 s28, s2, 5"); a("s_lshl_b32 s28, s28, 2"); a("s_add_u32 s27, s27, s28")
    a("s_and_b32 s28, s2, 31"); a("s_lshl_b32 s28, 1, s28"); a("v_mov_b32 v55, s28")
    k.wait("clr")
    a("s_mov_b64 exec, 1"); a("buffer_atomic_or v55, v56, s[12:15], s27 offen"); a("s_mov_b64 exec, -1")
    a("s_branch L_p0h")
    a.label("L_p0g")
    a(f"s_mul_i32 s27, s2, {ZERO_SZ//256}"); a(f"s_add_u32 s27, s27, {ZERO}"); a("v_lshlrev_b32 v55, 4, v0"); a(f"v_cmp_gt_u32 vcc, {ZERO_SZ//4096}, v0")
    a("v_mov_b32 v60, 0x7f000000"); a("v_cndmask_b32 v55, v60, v55, vcc")
    a("buffer_store_dwordx4 v[56:59], v55, s[4:7], s27 offen sc1")
    a.label("L_p0h")
    k.vm.append("z")
    IM = PA + 12544; TB = IM + 81920; TS = 6400; GA = 108
    a("v_lshlrev_b32 v55, 3, v0")
    for j in range(12): a(f"v_add_u32 v{GA+j}, {j-3}, v55")
    for j in range(12): a(f"v_cvt_f32_i32 v{GA+j}, v{GA+j}")
    rnd_pairs(a, list(range(GA, GA+12)), list(range(120, 126)))
    for j in range(11): a(f"v_cvt_i32_f32 v{GA+j}, v{GA+j}")
    for j in range(3): a(f"v_min_u32 v{GA+j}, 3071, v{GA+j}")
    a(f"s_mov_b32 s27, {TB}")
    for j in range(11):
        a(f"v_lshrrev_b32 v120, 6, v{GA+j}"); a(f"v_lshl_add_u32 v{GA+j}, v{GA+j}, 1, s27"); a(f"v_lshl_add_u32 v{GA+j}, v120, 2, v{GA+j}")
    XL = PA; SL = PA + 8192; PL = PA + 8192 + 64
    a(f"s_lshl_b32 s27, s{W}, 11"); a(f"s_add_u32 s27, s27, {XL}"); a("v_add_u32 v9, s27, v7")
    a(f"s_lshl_b32 s27, s{W}, 10"); a(f"s_add_u32 s27, s27, {PL}"); a("v_add_u32 v53, s27, v7")
    a("v_lshrrev_b32 v54, 2, v1"); a("v_and_b32 v54, 3, v54"); a("v_lshlrev_b32 v54, 5, v54"); a("v_lshl_add_u32 v54, v4, 8, v54")
    a("v_and_b32 v55, 3, v0"); a("v_lshl_add_u32 v54, v55, 3, v54"); a("v_add_u32 v54, s27, v54")
    a(f"s_lshl_b32 s27, s{W}, 4"); a(f"s_add_u32 s27, s27, {SL}"); a("v_mov_b32 v55, s27")
    a("s_mov_b32 s60, 0x05040100"); a("s_mov_b32 s61, 0x07060302"); a("s_mov_b32 s62, 0x3f803f80")
    k.wait("x")
    k.stamp("x_in", 2)
    a("ds_write_b128 v9, v[16:19]"); a("ds_write_b128 v9, v[20:23] offset:1024")
    for j in range(4):
        for r in range(2):
            src = 16 + 4*r + j
            a(f"v_dot2_f32_bf16 v{24+r}, v{src}, s62, {'0' if j == 0 else 'v%d' % (24+r)}")
            a(f"v_dot2_f32_bf16 v{26+r}, v{src}, v{src}, {'0' if j == 0 else 'v%d' % (26+r)}")
    for m in ["row_shr:1", "row_shr:2", "row_shr:4", "row_shr:8"]:
        for r in range(24, 28): a(f"v_add_f32_dpp v{r}, v{r}, v{r} {m} row_mask:0xf bank_mask:0xf bound_ctrl:1")
    for r in range(24, 28): a(f"v_add_f32_dpp v{r}, v{r}, v{r} row_bcast:15 row_mask:0xa bank_mask:0xf")
    for r in range(24, 28): a(f"v_add_f32_dpp v{r}, v{r}, v{r} row_bcast:31 row_mask:0xc bank_mask:0xf")
    for r in range(2):
        a(f"v_mul_f32 v{24+r}, {f32(1/512)}, v{24+r}"); a(f"v_mov_b32 v{28+2*r}, {f32(1e-5)}"); a(f"v_fmac_f32 v{28+2*r}, {f32(1/512)}, v{26+r}")
    for r in range(2): a(f"v_fma_f32 v{28+2*r}, -v{24+r}, v{24+r}, v{28+2*r}")
    for r in range(2): a(f"v_max_f32 v{28+2*r}, {f32(1e-5)}, v{28+2*r}")
    for r in range(2): a(f"v_rsq_f32 v{28+2*r}, v{28+2*r}")
    for r in range(2): a(f"v_mul_f32 v{29+2*r}, -v{24+r}, v{28+2*r}")
    a("s_mov_b32 exec_lo, 0"); a("s_mov_b32 exec_hi, 0x80000000")
    a("ds_write_b128 v55, v[28:31]")
    a("s_mov_b64 exec, -1")
    k.wait("w")
    a("ds_write_b128 v53, v[40:43]")
    a(f"v_lshlrev_b32 v9, 2, v0"); a(f"v_mov_b32 v55, {SL}")
    a("s_waitcnt lgkmcnt(0)"); a("s_barrier")
    k.stamp("w_in", 2)
    for i in range(8): a(f"ds_read_b32 v{16+i}, v9 offset:{XL + 1024*i}")
    for i in range(4): a(f"ds_read_b128 v[{72+4*i}:{75+4*i}], v55 offset:{16*i}")
    a("ds_read_b64_tr_b16 v[40:41], v54"); a("ds_read_b64_tr_b16 v[42:43], v54 offset:128")
    a("v_lshlrev_b32 v55, 6, v3"); a("v_lshl_add_u32 v55, v4, 4, v55"); a(f"s_mul_i32 s29, s2, {RBS}"); a(f"s_lshl_b32 s27, s{W}, 12"); a("s_add_u32 s29, s29, s27")
    RC = 144
    a("s_waitcnt lgkmcnt(6)")
    for j in range(4):
        a(f"v_perm_b32 v{RC+j}, v{17+2*j}, v{16+2*j}, s60"); a(f"v_perm_b32 v{RC+4+j}, v{17+2*j}, v{16+2*j}, s61")
    for i in range(8): unpack(a, 88+2*i, 89+2*i, 16+i)
    a("s_waitcnt lgkmcnt(2)")
    for i in range(8): a(f"v_pk_fma_f32 v[{88+2*i}:{89+2*i}], v[{88+2*i}:{89+2*i}], v[{72+2*i}:{73+2*i}], v[{72+2*i}:{73+2*i}] op_sel:[0,0,1] op_sel_hi:[1,0,1]")
    for j in range(4):
        a(f"v_cvt_pk_bf16_f32 v{RC+8+j}, v{88+4*j}, v{90+4*j}"); a(f"v_cvt_pk_bf16_f32 v{RC+12+j}, v{89+4*j}, v{91+4*j}")
    transpose4(a, RC)
    for j in range(4): k.v(f"buffer_store_dwordx4 v[{RC+4*j}:{RC+4*j+3}], v55, s[4:7], s29 offen offset:{1024*j} sc1")
    a("s_waitcnt lgkmcnt(0)")
    a("s_cmp_lt_u32 s19, 8"); a("s_cbranch_scc1 L_p0i")
    a("v_and_b32 v44, 1, v3"); a("v_lshlrev_b32 v44, 4, v44"); a("v_mov_b32 v45, 0x3f80"); a("v_lshlrev_b32 v44, v44, v45")
    a("v_and_b32 v45, 1, v4"); a("v_lshlrev_b32 v45, 2, v45"); a("v_lshrrev_b32 v46, 1, v3"); a("v_sub_u32 v45, v46, v45")
    for i in range(4): a(f"v_cmp_eq_u32 vcc, {i}, v45"); a(f"v_cndmask_b32 v{40+i}, 0, v44, vcc")
    a.label("L_p0i")
    a("s_mov_b32 s60, 0"); a("s_mov_b32 s61, -1")
    for i in range(4): a(f"v_cndmask_b32 v{44+i}, 0, v{40+i}, s[60:61]")
    for i in range(4): a(f"v_cndmask_b32 v{40+i}, v{40+i}, 0, s[60:61]")
    D0 = 16
    for u in range(2):
        for h in range(2): a(f"v_mfma_f32_16x16x32_bf16 v[{D0+8*u+4*h}:{D0+8*u+4*h+3}], v[{32+4*h}:{35+4*h}], v[{40+4*u}:{43+4*u}], 0")
    a("s_cmp_lt_u32 s19, 12"); a("s_cbranch_scc0 L_p0j")
    a("s_lshl_b32 s27, s22, 4"); a("s_add_u32 s27, s27, s20"); a("s_mul_i32 s27, s27, 3"); a("s_lshr_b32 s28, s19, 2"); a("s_add_u32 s27, s27, s28")
    a("s_lshl_b32 s27, s27, 10"); a(f"s_add_u32 s27, s27, {WF}"); a("s_add_u32 s28, s27, 49152")
    a("v_lshlrev_b32 v52, 4, v1")
    a("s_branch L_p0k")
    a.label("L_p0j")
    a("s_lshl_b32 s27, s21, 2"); a(f"s_add_u32 s27, s27, s{W}"); a("s_lshl_b32 s27, s27, 4"); a("s_add_u32 s27, s27, s20"); a("s_lshl_b32 s27, s27, 11")
    a(f"s_add_u32 s27, s27, {WO}"); a("s_add_u32 s28, s27, 256")
    a("v_lshlrev_b32 v52, 4, v3"); a("v_lshl_add_u32 v52, v4, 9, v52")
    a.label("L_p0k")
    a("s_nop 4")
    a("s_cmp_lt_u32 s19, 4"); a("s_cbranch_scc0 L_p0l")
    for i in range(16): a(f"v_subrev_f32_dpp v{32+i}, v{D0+i}, v{D0+i} row_newbcast:0 row_mask:0xf bank_mask:0xf")
    a("s_mov_b32 s60, 0x00010001"); a("s_mov_b32 s61, s60")
    for i in range(16): a(f"v_cndmask_b32 v{D0+i}, v{32+i}, 1.0, s[60:61]")
    a.label("L_p0l")
    for u in range(2):
        for i in range(4): a(f"v_cvt_pk_bf16_f32 v{48+4*u+i if u == 0 else 68+i}, v{D0+8*u+2*i}, v{D0+8*u+2*i+1}")
        k.v(f"buffer_store_dwordx4 v[{48 if u == 0 else 68}:{51 if u == 0 else 71}], v52, s[4:7], s{27+u} offen sc1")
    k.stamp("pub")
    k.wait("ssm")
    a("v_and_b32 v54, 127, v0"); a("v_mul_u32_u24 v54, 160, v54"); a("s_mul_i32 s27, s26, 40960"); a(f"s_add_u32 s27, s27, {IM}"); a("v_add_u32 v54, s27, v54")
    for r in range(10, 16): a(f"v_lshlrev_b32 v{r}, 16, v{r}")
    a(f"v_mul_f32 v10, {hex(LOG2E)}, v10"); a(f"v_mul_f32 v14, {hex(LOG2E)}, v14")
    a("v_exp_f32 v10, v10"); a("v_exp_f32 v14, v14")
    a("v_cvt_pk_bf16_f32 v9, v10, v14"); unpack(a, 10, 14, 9)
    a("v_mul_f32 v10, v10, v14"); a("v_mul_f32 v11, v11, v14")
    a(f"v_mul_f32 v10, {hex(LOG2E | 0x80000000)}, v10"); a(f"v_mul_f32 v11, {hex(INV2PI)}, v11")
    E = {1: 16, 8: 18, 128: 20}; T0 = {1: 22, 8: 24, 128: 26}
    for s_, t in T0.items(): a(f"v_mul_f32 v{t}, {f32(s_)}, v10"); a(f"v_mul_f32 v{t+1}, {f32(s_)}, v11")
    for s_, t in T0.items(): a(f"v_fract_f32 v{t+1}, v{t+1}")
    for s_, t in T0.items(): a(f"v_exp_f32 v{t}, v{t}"); a(f"v_cos_f32 v{E[s_]}, v{t+1}"); a(f"v_sin_f32 v{E[s_]+1}, v{t+1}")
    for s_, t in T0.items(): a(f"v_pk_mul_f32 v[{E[s_]}:{E[s_]+1}], v[{E[s_]}:{E[s_]+1}], v[{t}:{t+1}] op_sel:[0,0] op_sel_hi:[1,0]")
    E[2], E[16], E[256] = 28, 30, 32
    X = [72 + 2*j for j in range(8)]; Y = [88 + 2*j for j in range(8)]
    tmp = [34, 36, 38, 40]; ti = [0]
    def cm(d, z, e):
        t = tmp[ti[0] % 4]; ti[0] += 1
        return cmul_ops(d, z, e, t)
    def par(*pairs):
        for p in pairs: a(p[0])
        for p in pairs: a(p[1])
    SR, SI = [128, 136], [132, 140]; sb = [0]
    def pack(slot, r0, r1, neg):
        b = sb[0]; s = "-" if neg else ""
        a(f"v_cvt_pk_bf16_f32 v{SR[b]+slot}, v{r0}, v{r1}"); a(f"v_cvt_pk_bf16_f32 v{SI[b]+slot}, {s}v{r0+1}, {s}v{r1+1}")
    def flush(grp):
        b = sb[0]
        a(f"ds_write_b128 v54, v[{SR[b]}:{SR[b]+3}] offset:{16*grp}"); a(f"ds_write_b128 v54, v[{SI[b]}:{SI[b]+3}] offset:{20480+16*grp}")
        sb[0] ^= 1
    a(f"v_mov_b32 v{X[0]}, v12"); a(f"v_mov_b32 v{X[0]+1}, v13"); a(f"v_mov_b32 v{Y[0]}, 1.0"); a(f"v_mov_b32 v{Y[0]+1}, 0")
    a(f"v_mov_b32 v{Y[1]}, v{E[8]}"); a(f"v_mov_b32 v{Y[1]+1}, v{E[8]+1}")
    par(cm(E[2], E[1], E[1]), cm(E[16], E[8], E[8]), cm(E[256], E[128], E[128]), cm(X[1], X[0], E[1]))
    for j in (2, 4, 6): par(cm(X[j], X[j-2], E[2]), cm(X[j+1], X[j-1], E[2]), cm(Y[j], Y[j-2], E[16]), cm(Y[j+1], Y[j-1], E[16]))
    for j in range(4): pack(j, X[2*j], X[2*j+1], True)
    flush(0)
    par(*[cm(X[j], X[j], E[128]) for j in range(4)]); par(*[cm(X[j], X[j], E[128]) for j in range(4, 8)])
    for j in range(4): pack(j, Y[2*j], Y[2*j+1], False)
    flush(6)
    a("s_waitcnt vmcnt(0)"); a("s_barrier"); k.drained()
    k.stamp("b0_arr")
    bar_signal(k, 0)
    for j in range(4): pack(j, X[2*j], X[2*j+1], True)
    flush(1)
    par(cm(Y[0], Y[6], E[16]), cm(Y[1], Y[7], E[16]), cm(X[1], X[0], E[256]), cm(X[3], X[2], E[256]))
    par(cm(X[5], X[4], E[256]), cm(X[7], X[6], E[256]), cm(X[0], X[0], E[128]), cm(X[2], X[2], E[128]))
    par(cm(X[4], X[4], E[128]), cm(X[6], X[6], E[128]), cm(Y[2], Y[0], E[16]), cm(Y[3], Y[1], E[16]))
    pack(0, X[0], X[2], True); pack(1, X[4], X[6], True); pack(2, X[1], X[3], True); pack(3, X[5], X[7], True)
    flush(2)
    par(cm(X[0], X[0], E[256]), cm(X[4], X[4], E[256]), cm(X[1], X[1], E[256]), cm(X[5], X[5], E[256]))
    par(cm(Y[4], Y[2], E[16]), cm(Y[5], Y[3], E[16]))
    pack(0, X[0], X[4], True); pack(1, X[1], X[5], True)
    par(cm(X[0], X[0], E[256]), cm(X[4], X[4], E[256]), cm(X[1], X[1], E[256]), cm(X[5], X[5], E[256]))
    par(cm(Y[6], Y[4], E[16]), cm(Y[7], Y[5], E[16]))
    pack(2, X[0], X[4], True); pack(3, X[1], X[5], True)
    flush(3)
    par(cm(X[0], X[0], E[256]), cm(X[1], X[1], E[256]), cm(E[2], E[256], E[256]))
    for j in range(4): pack(j, Y[2*j], Y[2*j+1], False)
    flush(7)
    par(cm(X[2], X[0], E[256]), cm(X[3], X[1], E[256]), cm(X[4], X[0], E[2]), cm(X[5], X[1], E[2]))
    par(cm(X[6], X[2], E[2]), cm(X[7], X[3], E[2]), cm(Y[0], X[4], E[2]))
    for j in range(4): pack(j, X[2*j], X[2*j+1], True)
    flush(4)
    pack(0, Y[0], Y[0], True)
    b = sb[0]; a(f"ds_write_b32 v54, v{SR[b]} offset:80"); a(f"ds_write_b32 v54, v{SI[b]} offset:{20480+80}")
    a(f"v_and_b32 v55, 1, v0"); a(f"v_mul_u32_u24 v55, {TS}, v55"); a(f"v_add_u32 v55, {TB + 6140 + 4*47}, v55"); a("ds_write_b32 v55, v56")
    a("v_lshrrev_b32 v55, 1, v3"); a("v_mul_u32_u24 v55, 4160, v55"); a("v_and_b32 v53, 1, v0"); a("v_lshl_add_u32 v55, v53, 4, v55"); a("ds_write_b128 v55, v[56:59]")
    a(f"s_and_b32 s25, s{W}, 1")
    a("v_lshrrev_b32 v54, 2, v1"); a("v_mul_u32_u24 v54, 160, v54"); a("v_and_b32 v55, 3, v0"); a("v_lshl_add_u32 v54, v55, 3, v54"); a("v_add_u32 v54, s27, v54")
    a("s_lshl_b32 s28, s25, 6"); a("v_add_u32 v55, s28, v54")
    a("v_and_b32 v24, 7, v3"); a("v_lshrrev_b32 v25, 3, v3"); a("v_lshl_add_u32 v24, v25, 7, v24")
    a("v_lshlrev_b32 v26, 7, v3"); a("v_add_u32 v26, 1024, v26")
    a("s_cmp_eq_u32 s25, 0"); a("s_cselect_b64 vcc, -1, 0"); a("v_cndmask_b32 v24, v26, v24, vcc")
    a("s_cselect_b64 s[60:61], 1, 0"); a("v_cndmask_b32 v15, 0, v15, s[60:61]")
    a("v_lshrrev_b32 v25, 2, v3"); a("v_lshlrev_b32 v25, 7, v25"); a("v_and_b32 v26, 3, v3"); a("v_lshl_add_u32 v25, v26, 1, v25"); a("v_add_u32 v25, 256, v25")
    a("v_lshrrev_b32 v26, 1, v3"); a("v_lshlrev_b32 v26, 7, v26"); a("v_and_b32 v27, 1, v3"); a("v_lshl_add_u32 v26, v27, 2, v26")
    a("v_cmp_gt_u32 vcc, 8, v3"); a("v_cndmask_b32 v25, v26, v25, vcc")
    a(f"s_mul_i32 s28, s26, {TS}"); a(f"s_add_u32 s28, s28, {TB}")
    for r in (24, 25):
        a(f"v_lshl_add_u32 v{r}, v4, 5, v{r}"); a(f"v_lshrrev_b32 v26, 6, v{r}"); a(f"v_lshl_add_u32 v{r}, v{r}, 1, s28"); a(f"v_lshl_add_u32 v{r}, v26, 2, v{r}")
    a("v_add_f32 v14, v14, v14")
    k.stamp("st1")
    a("s_waitcnt lgkmcnt(0)"); a("s_barrier")
    a(f"s_cmp_eq_u32 s{W}, 0"); a("s_cbranch_scc0 L_p0m")
    a("v_lshlrev_b32 v9, 2, v1"); a("buffer_load_dword v8, v9, s[12:15], 0 offen sc1")
    a.label("L_p0m")
    FY, FX0, FX1 = 128, 192, 224
    def frag(dst, vb, s_, col):
        o = (s_ // 4) * 20480 + (s_ % 4) * 32 * 160 + col
        a(f"ds_read_b64_tr_b16 v[{dst}:{dst+1}], v{vb} offset:{o}"); a(f"ds_read_b64_tr_b16 v[{dst+2}:{dst+3}], v{vb} offset:{o + 16*160}")
    def mm(s_):
        c0 = "0" if s_ == 0 else "v[28:31]"; c1 = "0" if s_ == 0 else "v[16:19]"
        a(f"v_mfma_f32_16x16x32_bf16 v[28:31], v[{FY+4*s_}:{FY+4*s_+3}], v[{FX0+4*s_}:{FX0+4*s_+3}], {c0}")
        a(f"v_mfma_f32_16x16x32_bf16 v[16:19], v[{FY+4*s_}:{FY+4*s_+3}], v[{FX1+4*s_}:{FX1+4*s_+3}], {c1}")
    for s_ in range(8):
        frag(FY+4*s_, 54, s_, 96); frag(FX0+4*s_, 55, s_, 0); frag(FX1+4*s_, 55, s_, 32)
        if s_ >= 2: a("s_waitcnt lgkmcnt(12)"); mm(s_ - 2)
    a("s_waitcnt lgkmcnt(6)"); mm(6); a("s_waitcnt lgkmcnt(0)"); mm(7)
    def twrite(acc, addr, skip):
        for i in range(4):
            if skip and i == 0: a(f"v_fma_f32 v{acc}, v{acc}, v14, v15")
            else: a(f"v_mul_f32 v{acc+i}, v{acc+i}, v14")
        a(f"v_cvt_pk_bf16_f32 v{acc}, v{acc}, v{acc+1}"); a(f"v_cvt_pk_bf16_f32 v{acc+2}, v{acc+2}, v{acc+3}")
        a(f"ds_write_b16 v{addr}, v{acc}"); a(f"ds_write_b16_d16_hi v{addr}, v{acc} offset:16")
        a(f"ds_write_b16 v{addr}, v{acc+2} offset:32"); a(f"ds_write_b16_d16_hi v{addr}, v{acc+2} offset:48")
    twrite(28, 24, True)
    a("s_cmp_eq_u32 s25, 0"); a("s_cbranch_scc0 L_p0n")
    twrite(16, 25, False)
    a.label("L_p0n")
    k.stamp("st2", 2)
    a("s_waitcnt lgkmcnt(0)"); a("s_barrier")
    for c in range(2):
        for j in range(11): a(f"ds_read_u16 v{16+12*c+j}, v{GA+j} offset:{TS*c}")
    a(f"s_cmp_eq_u32 s{W}, 0"); a("s_cbranch_scc0 L_regx")
    a("s_mov_b32 s23, 0")
    a.label("L_reg")
    a("s_waitcnt vmcnt(0)")
    a("v_bcnt_u32_b32 v12, v8, 0")
    for m in ["row_shr:1", "row_shr:2", "row_shr:4", "row_shr:8"]: a(f"v_add_u32_dpp v12, v12, v12 {m} row_mask:0xf bank_mask:0xf bound_ctrl:1")
    a("v_add_u32_dpp v12, v12, v12 row_bcast:15 row_mask:0xa bank_mask:0xf"); a("v_add_u32_dpp v12, v12, v12 row_bcast:31 row_mask:0xc bank_mask:0xf")
    a("v_readlane_b32 s28, v12, 63"); a("s_cmp_eq_u32 s28, 256"); a("s_cbranch_scc1 L_regq")
    a("s_sleep 8")
    a("buffer_load_dword v8, v9, s[12:15], 0 offen sc1")
    a("s_add_u32 s23, s23, 1"); a(f"s_cmp_gt_u32 s23, {SPIN}"); a("s_cbranch_scc0 L_reg")
    a("s_waitcnt vmcnt(0)")
    a.label("L_regq")
    a("v_cmp_ne_u32 vcc, 0, v8"); a("s_mov_b64 s[28:29], vcc")
    a("v_lshlrev_b32 v12, 3, v1"); a("v_lshrrev_b64 v[10:11], v12, s[28:29]"); a("v_and_b32 v10, 0xff, v10")
    a("v_cmp_ne_u32 vcc, 0, v10"); a("s_nop 1"); a("s_and_b32 s36, vcc_lo, 0xff")
    a("s_lshl_b32 s28, s32, 3"); a("v_lshrrev_b32 v12, 3, v1"); a("v_add_u32 v12, s28, v12"); a("v_lshlrev_b32 v12, 2, v12")
    a("ds_bpermute_b32 v13, v12, v8"); a("v_and_b32 v12, 7, v1"); a("v_lshlrev_b32 v12, 2, v12"); a("s_waitcnt lgkmcnt(0)")
    a("v_lshrrev_b32 v13, v12, v13"); a("v_and_b32 v13, 15, v13")
    a("v_cmp_ne_u32 vcc, 0, v13"); a("s_nop 1"); a("s_ff1_i32_b64 s28, vcc"); a("s_and_b32 s28, s28, 63")
    a("s_nop 3"); a("v_readlane_b32 s29, v13, s28"); a("s_nop 1"); a("s_ff1_i32_b32 s29, s29"); a("s_lshl_b32 s28, s28, 2"); a("s_add_u32 s28, s28, s29")
    a("s_cmp_eq_u32 s28, s2"); a("s_cselect_b32 s33, 1, 0")
    a("s_mov_b32 s28, 0x00204081"); a("v_mul_lo_u32 v13, v13, s28"); a(f"v_and_b32 v{MEMB}, 0x01010101, v13")
    a.label("L_regx")
    k.stamp("reg", 2)
    bar_leader(k, 0)
    a("v_lshlrev_b32 v72, 4, v0")
    for c in range(2):
        a(f"s_waitcnt lgkmcnt({11 if c == 0 else 4})")
        for e in range(4):
            o = 40 + 16*c + 4*e
            for j in range(4):
                lo = 16 + 12*c + 3 - e + 2*j
                a(f"v_lshl_or_b32 v{o+j}, v{lo+1}, 16, v{lo}")
            a(f"ds_write_b128 v72, v[{o}:{o+3}] offset:{(4*c+e)*4160 + 32}")
    k.stamp("st3")
    a("s_waitcnt lgkmcnt(0)"); a("s_barrier")
    walker(k, "wk0", 1); pre()
    bar_wait(k, 0)
    k.stamp("b0_rel")

class Conv:
    UB = PA; RAWB = PA + 9216; XB = PA + 9216 + 8192; WST = PA + 9216 + 8192 + 16384
    ACC = 16; FA = [60, 124]; FB = [92, 156]; VA, VB = 9, 11
    def __init__(self, k, L): self.k = k; self.L = L
    def ra(self, b, rr, q):
        F = self.FA[b] + 4*q
        return [f"ds_read_b64_tr_b16 v[{F}:{F+1}], v{self.VA} offset:{8+512*q+64*rr}", f"ds_read_b64_tr_b16 v[{F+2}:{F+3}], v{self.VA} offset:{512*q+64*rr}"]
    def rb(self, b, rr, j):
        F = self.FB[b] + 4*j
        return [f"ds_read_b128 v[{F}:{F+3}], v{self.VB} offset:{512*j+64*(3-rr)}"]
    def pre(self):
        a = self.k.a; L = self.L; UB = self.UB
        xout = XT1 if L == 0 else XT3
        a(f"s_lshr_b32 s25, s{W}, 1"); a(f"s_and_b32 s26, s{W}, 1")
        if L == 0:
            a("v_lshrrev_b32 v5, 2, v1"); a(f"v_mul_u32_u24 v6, {RBS}, v5"); a("v_and_b32 v7, 3, v0"); a("v_lshl_add_u32 v6, v7, 4, v6")
            a(f"s_mul_i32 s28, s{W}, {64*RBS}"); a("s_lshl_b32 s27, s18, 6"); a("s_add_u32 s28, s28, s27")
            for j in range(1, 4): a(f"s_add_u32 s{28+j}, s28, {j*16*RBS}")
            a("s_mov_b32 s44, s28")
            a(f"v_mov_b32 v10, {self.RAWB}"); a(f"v_mov_b32 v11, {self.RAWB + 4096}"); a("v_cmp_eq_u32 vcc, 1, v7"); a("v_cndmask_b32 v10, v10, v11, vcc")
            a(f"v_mov_b32 v11, {UB + 512}"); a("v_cmp_eq_u32 vcc, 2, v7"); a("v_cndmask_b32 v10, v10, v11, vcc")
            a(f"v_mov_b32 v11, {UB + 4608 + 512}"); a("v_cmp_eq_u32 vcc, 3, v7"); a("v_cndmask_b32 v10, v10, v11, vcc")
            a("v_lshl_add_u32 v10, v5, 4, v10"); a(f"s_lshl_b32 s27, s{W}, 10"); a("v_add_u32 v10, s27, v10")
            a("s_lshr_b32 s35, s2, 4"); a("s_lshl_b32 s35, s35, 1"); a("s_add_u32 s35, s35, s26"); a("s_mul_i32 s35, s35, 49152"); a(f"s_add_u32 s35, s35, {WF}")
            a(f"s_mul_i32 s27, s25, {22*1024}"); a("s_add_u32 s45, s35, s27"); a("s_add_u32 s45, s45, 4096")
            a(f"s_mul_i32 s46, s26, {44*1024}"); a("s_add_u32 s46, s46, s27"); a(f"s_add_u32 s46, s46, {self.WST}")
        else:
            a("v_lshrrev_b32 v6, 2, v0"); a("v_lshlrev_b32 v6, 15, v6"); a("v_and_b32 v7, 3, v0"); a("v_lshl_add_u32 v6, v7, 4, v6")
            a("s_lshl_b32 s31, s18, 7"); a(f"s_add_u32 s31, s31, {X2B}")
            a("v_lshlrev_b32 v10, 4, v0")
            for j in range(4): a(f"s_mov_b32 s{44+j}, {ST3 + 4096*j}")
        a("v_lshlrev_b32 v7, 4, v1")
        for r in range(12, 16): a(f"v_mov_b32 v{r}, 0")
        a("v_lshrrev_b32 v9, 5, v1"); a("v_mul_u32_u24 v9, 4608, v9"); a("v_and_b32 v11, 31, v0"); a("v_lshl_add_u32 v9, v11, 4, v9")
        a(f"ds_write_b128 v9, v[12:15] offset:{UB}")
        a("v_lshrrev_b32 v9, 2, v3"); a("v_mul_u32_u24 v9, 4160, v9"); a("v_and_b32 v11, 3, v0"); a("v_lshl_add_u32 v9, v11, 3, v9")
        a("v_lshlrev_b32 v11, 4, v4"); a("v_sub_u32 v9, v9, v11")
        a("s_mul_i32 s27, s25, 16640"); a("s_lshl_b32 s28, s26, 8"); a("s_add_u32 s27, s27, s28"); a("s_add_u32 s27, s27, 56")
        a("v_add_u32 v9, s27, v9")
        a("v_lshl_add_u32 v11, v3, 5, v11")
        a("s_mul_i32 s27, s25, 4608"); a("s_sub_u32 s27, s27, s28"); a(f"s_add_u32 s27, s27, {UB + 480 - 192}")
        a("v_add_u32 v11, s27, v11")
        for q in range(8):
            for t in self.ra(0, 0, q): a(t)
        a(f"s_lshl_b32 s27, s{W}, 11"); a(f"s_add_u32 s27, s27, {self.RAWB}"); a("v_lshlrev_b32 v8, 5, v3"); a("v_lshl_add_u32 v8, v4, 3, v8"); a("v_add_u32 v8, s27, v8")
        a(f"s_lshl_b32 s27, s{W}, 12"); a(f"s_add_u32 s27, s27, {self.XB}"); a("v_add_u32 v48, s27, v7"); a("v_xor_b32 v49, 0x1000, v48") if self.XB % 8192 == 0 else (
            a(f"s_xor_b32 s27, s{W}, 1"), a("s_lshl_b32 s27, s27, 12"), a(f"s_add_u32 s27, s27, {self.XB}"), a("v_add_u32 v49, s27, v7"))
        a("v_and_b32 v50, 1, v4"); a("v_lshlrev_b32 v50, 18, v50"); a("v_lshrrev_b32 v51, 3, v3"); a("v_lshl_add_u32 v50, v51, 17, v50")
        a("v_and_b32 v51, 7, v3"); a("v_lshl_add_u32 v50, v51, 5, v50"); a("v_lshrrev_b32 v51, 1, v4"); a("v_lshl_add_u32 v50, v51, 4, v50")
        a("s_lshl_b32 s34, s18, 9"); a("s_lshl_b32 s27, s25, 8"); a("s_add_u32 s34, s34, s27"); a("s_lshl_b32 s27, s26, 20"); a("s_add_u32 s34, s34, s27")
        a(f"s_add_u32 s34, s34, {xout}"); a(f"s_add_u32 s43, s34, {1 << 19}")
        a(f"v_mov_b32 v12, {f32(1/512)}"); a(f"v_mov_b32 v14, {f32(1e-5)}")
    def run(self):
        k = self.k; a = k.a; L = self.L; UB, RAWB = self.UB, self.RAWB; ACC, FA, FB = self.ACC, self.FA, self.FB
        S1, S2, XA = 16, 24, 32
        wq = [0]
        def wq_load(n=1):
            if L != 0: return
            for _ in range(n):
                i = wq[0]
                if i >= 22: return
                if i % 4 == 0: a(f"s_add_u32 m0, s46, {1024*i}")
                k.v(f"buffer_load_dwordx4 v7, s[4:7], s45 offen offset:{1024*(i%4)} lds", "wq")
                if i % 4 == 3: a("s_add_u32 s45, s45, 4096")
                wq[0] += 1
        if L == 0:
            for j in range(4): k.v(f"buffer_load_dwordx4 v[{16+4*j}:{19+4*j}], v6, s[4:7], s{44 if j == 0 else 28+j} offen sc1", f"r{j}")
            for j in range(4):
                k.wait(f"r{j}"); a(f"ds_write_b128 v10, v[{16+4*j}:{19+4*j}] offset:{256*j}")
            for i in range(4): k.v(f"buffer_load_dwordx4 a[{4*i}:{4*i+3}], v7, s[4:7], s35 offen offset:{1024*i}", "wq")
        else:
            for j in range(4): k.v(f"buffer_load_dwordx4 v[{S1+4*j}:{S1+4*j+3}], v10, s[4:7], s{44+j} offen sc1", "st")
            k.v(f"buffer_load_dwordx4 v[{XA}:{XA+3}], v6, s[4:7], s31 offen sc1", "x"); k.v(f"buffer_load_dwordx4 v[{XA+4}:{XA+7}], v6, s[4:7], s31 offen offset:64 sc1", "x")
            k.wait("st")
            k.stamp(f"c{L}_st", 2)
            for i in range(0, 8, 2): a(f"v_pk_mul_f32 v[{S1+i}:{S1+i+1}], v[{S1+i}:{S1+i+1}], v[12:13] op_sel_hi:[1,0]")
            for i in range(0, 8, 2): a(f"v_pk_fma_f32 v[{S2+i}:{S2+i+1}], v[{S2+i}:{S2+i+1}], v[12:13], v[14:15] op_sel_hi:[1,0,0]")
            for i in range(0, 8, 2): a(f"v_pk_fma_f32 v[{S2+i}:{S2+i+1}], v[{S1+i}:{S1+i+1}], v[{S1+i}:{S1+i+1}], v[{S2+i}:{S2+i+1}] neg_lo:[1,0,0] neg_hi:[1,0,0]")
            for i in range(8): a(f"v_max_f32 v{S2+i}, v14, v{S2+i}")
            for i in range(8): a(f"v_rsq_f32 v{S2+i}, v{S2+i}")
            for i in range(0, 8, 2): a(f"v_pk_mul_f32 v[{S1+i}:{S1+i+1}], v[{S1+i}:{S1+i+1}], v[{S2+i}:{S2+i+1}] neg_lo:[1,0] neg_hi:[1,0]")
            k.wait("x")
            for c in range(2):
                x = 40
                for j in range(4): unpack(a, x+2*j, x+2*j+1, XA+4*c+j)
                for j in range(4): a(f"v_pk_fma_f32 v[{x+2*j}:{x+2*j+1}], v[{x+2*j}:{x+2*j+1}], v[{S2+2*j}:{S2+2*j+1}], v[{S1+2*j}:{S1+2*j+1}]")
                for j in range(4): a(f"v_cvt_pk_bf16_f32 v{52+4*c+j}, v{x+2*j}, v{x+2*j+1}")
                a(f"ds_write_b128 v10, v[{52+4*c}:{55+4*c}] offset:{UB + 4608*c + 512}")
            for c in range(2): a(f"ds_write_b128 v10, v[{XA+4*c}:{XA+4*c+3}] offset:{RAWB + 4096*c}")
        def reads(rr):
            b = rr % 2; Lr = self.ra(b, rr, 0)
            for j in range(8): Lr += self.rb(b, rr, j)
            for q in range(1, 8): Lr += self.ra(b, rr, q)
            return Lr
        def mf(b, q, jt, first=False):
            d = ACC + 4*jt
            return f"v_mfma_f32_16x16x32_bf16 v[{d}:{d+3}], v[{FA[b]+4*q}:{FA[b]+4*q+3}], v[{FB[b]+4*(jt-q)}:{FB[b]+4*(jt-q)+3}], " + ("0" if first else f"v[{d}:{d+3}]")
        k.stamp(f"c{L}_u", 2)
        a("s_waitcnt lgkmcnt(0)"); a("s_barrier")
        for j in range(8):
            for t in self.rb(0, 0, j): a(t)
        nm = 0; ev = OPT.get("wq_every", 5)
        for rr in range(3):
            b = rr % 2; nxt = reads(rr+1); kk = 0
            for q in range(8):
                for jt in range(q, 8):
                    if rr == 0 and q == 0: a("s_waitcnt lgkmcnt(7)")
                    elif q == 0 and jt == 0: a("s_waitcnt lgkmcnt(0)")
                    a(mf(b, q, jt, rr == 0 and q == 0))
                    if kk < len(nxt): a(nxt[kk])
                    kk += 1; nm += 1
                    if nm % ev == 0: wq_load()
        wq_load(48)
        RAW = 60; XR = 68; PT = 84; T8 = list(range(100, 108))
        vm0 = list(k.vm)
        a("s_waitcnt lgkmcnt(0)")
        a("s_cmp_eq_u32 s26, 0"); a(f"s_cbranch_scc0 L_c{L}h1")
        for rh in range(2):
            k.vm = list(vm0)
            if rh == 1: a.label(f"L_c{L}h1"); a.force_stub()
            own = list(range(4*rh, 4*rh+4)); send = list(range(4-4*rh, 8-4*rh))
            seq = [(q, jt) for q in range(8) for jt in send if q <= jt] + [(q, jt) for q in range(8) for jt in own if q <= jt]
            done_at = {jt: max(i for i, (q, j) in enumerate(seq) if j == jt) for jt in send}
            side = [f"ds_read_b64 v[{RAW+2*i}:{RAW+2*i+1}], v8 offset:{512*i}" for i in range(4)]
            up = []
            for i in range(8): up += [f"v_lshlrev_b32 v{XR+2*i}, 16, v{RAW+i}", f"v_and_b32 v{XR+2*i+1}, 0xffff0000, v{RAW+i}"]
            for i, (q, jt) in enumerate(seq):
                a(mf(1, q, jt))
                if i < 4: a(side[i])
                if i == 7: a("s_waitcnt lgkmcnt(0)")
                if 8 <= i < 24: a(up[i-8])
                for n_, js in enumerate(send):
                    if i == done_at[js] + 8: a(f"ds_write_b128 v48, v[{ACC+4*js}:{ACC+4*js+3}] offset:{1024*n_}")
            k.stamp(f"c{L}_mm", 2)
            a("s_waitcnt lgkmcnt(0)"); a("s_barrier")
            for i in range(4): a(f"ds_read_b128 v[{PT+4*i}:{PT+4*i+3}], v49 offset:{1024*i}")
            O = ACC + 16*rh
            for i in range(8): a(f"v_pk_add_f32 v[{O+2*i}:{O+2*i+1}], v[{O+2*i}:{O+2*i+1}], v[{XR+2*i}:{XR+2*i+1}]")
            for p in range(2):
                a(f"s_waitcnt lgkmcnt({2 - 2*p})")
                for i in range(4*p, 4*p+4): a(f"v_pk_add_f32 v[{O+2*i}:{O+2*i+1}], v[{O+2*i}:{O+2*i+1}], v[{PT+2*i}:{PT+2*i+1}]")
                for i in range(4*p, 4*p+4): a(f"v_cvt_pk_bf16_f32 v{T8[i]}, v{O+2*i}, v{O+2*i+1}")
                o = T8[4*p]
                a(f"v_permlane16_swap_b32 v{o}, v{o+2}"); a(f"v_permlane16_swap_b32 v{o+1}, v{o+3}")
                k.v(f"buffer_store_dwordx4 v[{o}:{o+3}], v50, s[4:7], s{34 if p == 0 else 43} offen sc1")
            if rh == 0: a(f"s_branch L_c{L}e")
        a.label(f"L_c{L}e")

def sm_minmax(a, acc, t):
    mx, mn = t, t + 2
    a(f"v_max3_f32 v{mx}, v{acc}, v{acc+1}, v{acc+2}"); a(f"v_min3_f32 v{mn}, v{acc}, v{acc+1}, v{acc+2}")
    for i in range(3, 15, 2):
        a(f"v_max3_f32 v{mx}, v{mx}, v{acc+i}, v{acc+i+1}"); a(f"v_min3_f32 v{mn}, v{mn}, v{acc+i}, v{acc+i+1}")
    a(f"v_max_f32 v{mx}, v{mx}, v{acc+15}"); a(f"v_min_f32 v{mn}, v{mn}, v{acc+15}")
def sm_exp(a, acc, P, M, c, t, hook=lambda: None):
    mx, mn = t, t + 2
    a(f"v_mul_f32 v{mx}, v{mx}, v{c}"); a(f"v_mul_f32 v{mn}, v{mn}, v{c}")
    for i in range(0, 16, 2):
        a(f"v_pk_fma_f32 v[{P+i}:{P+i+1}], v[{acc+i}:{acc+i+1}], v[{c}:{c+1}], v[{mx}:{mx+1}] op_sel_hi:[1,0,0] neg_lo:[0,0,1] neg_hi:[0,0,1]")
        a(f"v_pk_fma_f32 v[{M+i}:{M+i+1}], v[{acc+i}:{acc+i+1}], v[{c}:{c+1}], v[{mn}:{mn+1}] op_sel_hi:[1,0,0] neg_lo:[1,0,0] neg_hi:[1,0,0]")
    for i in range(16):
        a(f"v_exp_f32 v{P+i}, v{P+i}")
        if i % 4 == 3: hook()
    for i in range(16):
        a(f"v_exp_f32 v{M+i}, v{M+i}")
        if i % 4 == 3: hook()
def sm_norm(a, P, M, t):
    sp, sm = t, t + 2
    a(f"v_pk_add_f32 v[{sp}:{sp+1}], v[{P}:{P+1}], v[{P+2}:{P+3}]"); a(f"v_pk_add_f32 v[{sm}:{sm+1}], v[{M}:{M+1}], v[{M+2}:{M+3}]")
    for i in range(4, 16, 2):
        a(f"v_pk_add_f32 v[{sp}:{sp+1}], v[{sp}:{sp+1}], v[{P+i}:{P+i+1}]"); a(f"v_pk_add_f32 v[{sm}:{sm+1}], v[{sm}:{sm+1}], v[{M+i}:{M+i+1}]")
    a(f"v_add_f32 v{sp}, v{sp}, v{sp+1}"); a(f"v_add_f32 v{sm}, v{sm}, v{sm+1}")
    a(f"v_rcp_f32 v{sp}, v{sp}"); a(f"v_rcp_f32 v{sm}, v{sm}")
    for i in range(0, 16, 2):
        a(f"v_pk_mul_f32 v[{P+i}:{P+i+1}], v[{P+i}:{P+i+1}], v[{sp}:{sp+1}] op_sel_hi:[1,0]")
        a(f"v_pk_mul_f32 v[{M+i}:{M+i+1}], v[{M+i}:{M+i+1}], v[{sm}:{sm+1}] op_sel_hi:[1,0]")
def transpose4(a, R):
    for i in range(4):
        a(f"v_permlane32_swap_b32 v{R+i}, v{R+8+i}"); a(f"v_permlane32_swap_b32 v{R+4+i}, v{R+12+i}")
    for i in range(4):
        a(f"v_permlane16_swap_b32 v{R+i}, v{R+4+i}"); a(f"v_permlane16_swap_b32 v{R+8+i}, v{R+12+i}")

class Qkv:
    NS = 6; SLOT = 16384; RB = PA; IMG = PA + 6 * 16384; RS = 224; STAT = PA + 6 * 16384 + 128 * 224
    def __init__(self, k, L): self.k = k; self.L = L; assert self.STAT + 512 <= 163840 and self.RB % 256 == 0
    def pre(self):
        a = self.k.a; L = self.L; RB, SLOT = self.RB, self.SLOT
        xin = [XT1, XT3][L]
        a(f"s_and_b32 s20, s{W}, 1"); a(f"s_lshr_b32 s21, s{W}, 1")
        if L == 0:
            a(f"s_mul_i32 s27, s20, {44*1024}"); a(f"s_add_u32 s27, s27, {Conv.WST}"); a("v_lshl_add_u32 v5, v1, 4, s27")
            for i in range(44): a(f"ds_read_b128 a[{16+4*i}:{19+4*i}], v5 offset:{1024*i}")
            a("s_waitcnt lgkmcnt(0)")
            a("s_cmp_eq_u32 s21, 1"); a("s_cbranch_scc0 L_cs")
            for r in range(12, 16): a(f"v_mov_b32 v{r}, 0x3f803f80")
            for s_ in range(16):
                for j in range(3): a(f"v_mfma_f32_16x16x32_bf16 v[{16+4*j}:{19+4*j}], a[{(3*s_+j)*4}:{(3*s_+j)*4+3}], v[12:15], " + ("0" if s_ == 0 else f"v[{16+4*j}:{19+4*j}]"))
            a("s_mul_i32 s27, s20, 192"); a(f"s_add_u32 s27, s27, {CSB}"); a("v_lshl_add_u32 v5, v4, 4, s27")
            for j in range(3): a(f"ds_write_b128 v5, v[{16+4*j}:{19+4*j}] offset:{64*j}")
            a.label("L_cs")
            a("s_bfe_u32 s35, s2, 0x20003"); a("s_lshl_b32 s35, s35, 2"); a(f"s_add_u32 s35, s35, s{W}"); a("s_lshl_b32 s35, s35, 15"); a(f"s_add_u32 s35, s35, {WO}")
            if OPT.get("rot", 1): a("s_bfe_u32 s42, s2, 0x20005"); a("s_lshl_b32 s42, s42, 11")
            else: a("s_mov_b32 s42, 0")
        a("s_and_b32 s25, s2, 7"); a("s_lshl_b32 s25, s25, 1"); a("s_bfe_u32 s26, s2, 0x10003"); a("s_add_u32 s25, s25, s26")
        a("s_lshr_b32 s26, s2, 4")
        a("v_lshrrev_b32 v5, 1, v3"); a("v_xor_b32 v5, v5, v4"); a("v_lshlrev_b32 v5, 5, v5"); a("v_lshl_add_u32 v5, v4, 8, v5")
        a("v_and_b32 v6, 1, v0"); a("v_lshl_add_u32 v5, v6, 4, v5"); a("v_xor_b32 v6, 0x80, v5")
        a(f"s_lshl_b32 s28, s{W}, 12"); a("s_lshl_b32 s27, s25, 17"); a("s_add_u32 s28, s28, s27"); a(f"s_add_u32 s28, s28, {xin}")
        a(f"s_lshl_b32 s34, s{W}, 12"); a(f"s_add_u32 s34, s34, {RB}")
        a("v_lshlrev_b32 v7, 4, v1")
        a("v_lshrrev_b32 v8, 2, v1")
        a("v_and_b32 v9, 7, v8"); a(f"s_lshl_b32 s27, s{W}, 1"); a("v_xor_b32 v9, s27, v9"); a("v_lshlrev_b32 v9, 5, v9")
        a("v_lshl_add_u32 v8, v8, 8, v9"); a("v_and_b32 v9, 3, v0"); a("v_lshl_add_u32 v8, v9, 3, v8"); a(f"v_add_u32 v8, {RB}, v8")
        for t in range(1, 4): a(f"v_xor_b32 v{8+t}, {32*t}, v8")
        for t in range(4): a(f"v_add_u32 v{12+t}, {3*SLOT}, v{8+t}")
        a(f"s_lshl_b32 s27, s{W}, 7"); a(f"s_add_u32 s27, s27, {self.STAT}"); a("v_lshl_add_u32 v184, v3, 2, s27")
        a("s_lshl_b32 s27, s20, 5"); a("v_xor_b32 v185, s27, v1"); a("s_lshl_b32 s27, s21, 6"); a("v_add_u32 v185, s27, v185")
        a(f"v_lshlrev_b32 v186, 2, v185"); a(f"v_add_u32 v186, {self.STAT}, v186")
        a("s_mul_i32 s27, s20, 192"); a(f"s_add_u32 s27, s27, {CSB}"); a("v_mov_b32 v187, s27")
        a("s_mov_b32 s56, 0xcccccccc"); a("s_mov_b32 s57, s56"); a("s_mov_b32 s58, 0xaaaaaaaa"); a("s_mov_b32 s59, s58")
    def run(self):
        k = self.k; a = k.a; L = self.L; NS, SLOT, IMG, RS = self.NS, self.SLOT, self.IMG, self.RS
        kv = KV[L]; phiq = PHIQ[L]
        def dma1(c, i):
            if i == 0: a(f"s_add_u32 m0, s34, {(c % NS) * SLOT}")
            k.v(f"buffer_load_dwordx4 v{5 + i % 2}, s[4:7], s28 offen offset:{1024*i} sc1 lds", f"x{c}")
            if c < 7 and i == 3: a(f"s_add_u32 s28, s28, 16384")
        UP = OPT.get("q_up", 2)
        for c in range(UP):
            for i in range(4): dma1(c, i)
        wo = [0]
        def wo_load(n=1):
            if L != 0: return
            for _ in range(n):
                i = wo[0]
                if i >= 32: return
                p, w_, b_ = i // 8, (i // 2) % 4, i % 2
                if i % 2 == 0: a(f"s_xor_b32 s43, s42, {p*2048}"); a("s_add_u32 s43, s43, s35"); (a(f"s_add_u32 s43, s43, {w_*8192}") if w_ else None)
                k.v(f"buffer_load_dwordx4 {wo_reg(i)}, v7, s[4:7], s43 offen offset:{1024*b_}", "wo")
                wo[0] += 1
        ACC = [16, 32, 48]; AS2 = 64; FX = [72, 88]; CS = 136
        def reads(s_):
            c = s_ // 2; sl = c % NS; b = s_ % 2; base = 8 if sl < 3 else 12; o = (sl % 3) * SLOT + (s_ % 2) * 8192
            Lr = []
            for t in range(4):
                Lr.append(f"ds_read_b64_tr_b16 v[{FX[b]+4*t}:{FX[b]+4*t+1}], v{base+t} offset:{o}")
                Lr.append(f"ds_read_b64_tr_b16 v[{FX[b]+4*t+2}:{FX[b]+4*t+3}], v{base+t} offset:{o+4096}")
            return Lr
        sched = {}
        nxtc = UP
        FAST = OPT.get("q_fast", 0)
        for s_ in range(16):
            if nxtc < 8 and (FAST or nxtc <= s_ // 2 + 3) and (nxtc < NS or s_ >= 2*(nxtc - NS) + 2): sched[s_] = nxtc; nxtc += 1
        sync = {1: 1, 3: 2, 5: 4, 9: 7} if FAST == 1 else ({1: 1, 3: 2, 5: 3, 7: 5, 11: 7} if FAST == 2 else {2*c+1: c+1 for c in range(7)})
        k.wait("x0"); a("s_barrier")
        k.stamp(f"q{L}_x0", 2)
        for t in reads(0): a(t)
        for s_ in range(16):
            b = s_ % 2; c = s_ // 2; first = s_ == 0
            nxt = reads(s_+1) if s_ < 15 else [f"ds_read_b128 v[{CS+4*i}:{CS+4*i+3}], v187 offset:{16*i}" for i in range(12)]
            M = []
            for t in range(4):
                x = f"v[{FX[b]+4*t}:{FX[b]+4*t+3}]"
                if t < 2: M.append(f"v_mfma_f32_16x16x32_bf16 v[{AS2+4*t}:{AS2+4*t+3}], {x}, {x}, " + ("0" if first else f"v[{AS2+4*t}:{AS2+4*t+3}]"))
                for j in range(3):
                    d = ACC[j] + 4*t
                    M.append(f"v_mfma_f32_16x16x32_bf16 v[{d}:{d+3}], a[{(3*s_+j)*4}:{(3*s_+j)*4+3}], {x}, " + ("0" if first else f"v[{d}:{d+3}]"))
            if not first: a("s_waitcnt lgkmcnt(0)")
            rd0 = 1 if s_ in sync else 0
            for i, m in enumerate(M):
                if first and i in (0, 4, 8, 11): a(f"s_waitcnt lgkmcnt({ {0: 6, 4: 4+4, 8: 2+8, 11: 8}[i] })")
                a(m)
                if rd0 and i == rd0:
                    k.wait(f"x{sync[s_]}"); a("s_barrier")
                if 0 <= i - rd0 < len(nxt): a(nxt[i - rd0])
                if s_ in sched and i in (2, 5, 8, 11): dma1(sched[s_], (i - 2) // 3)
                if s_ >= OPT.get("wo_from", 9) and i in (5, 12): wo_load()
        k.stamp(f"q{L}_mm")
        for u in range(2):
            r = AS2 + 4*u
            a(f"v_cndmask_b32 v{r}, v{r}, v{r+2}, s[56:57]"); a(f"v_cndmask_b32 v{r+1}, v{r+1}, v{r+3}, s[56:57]"); a(f"v_cndmask_b32 v{r}, v{r}, v{r+1}, s[58:59]")
        a("s_mov_b32 exec_lo, 0x00f0000f"); a("s_mov_b32 exec_hi, 0xf0000f00")
        a(f"ds_write_b32 v184, v{AS2}"); a(f"ds_write_b32 v184, v{AS2+4} offset:64")
        a("s_mov_b64 exec, -1")
        transpose4(a, ACC[0]); wo_load(2)
        a("s_waitcnt lgkmcnt(0)"); a("s_barrier")
        MU, S2, R, C, TK, TQ = 64, 66, 66, 76, 68, 72
        a(f"ds_read_b32 v{S2}, v186")
        a(f"v_mul_f32 v{MU}, {f32(1/512)}, v{ACC[0]}")
        transpose4(a, ACC[1]); wo_load(2)
        def centre(j):
            for i in range(0, 16, 2): a(f"v_pk_fma_f32 v[{ACC[j]+i}:{ACC[j]+i+1}], v[{CS+16*j+i}:{CS+16*j+i+1}], v[{MU}:{MU+1}], v[{ACC[j]+i}:{ACC[j]+i+1}] op_sel_hi:[1,0,1] neg_lo:[0,1,0] neg_hi:[0,1,0]")
        centre(1)
        a("s_waitcnt lgkmcnt(0)")
        a(f"v_mov_b32 v{C}, {f32(1e-5)}"); a(f"v_fmac_f32 v{C}, {f32(1/512)}, v{S2}"); a(f"v_fma_f32 v{S2}, -v{MU}, v{MU}, v{C}"); a(f"v_max_f32 v{S2}, {f32(1e-5)}, v{S2}")
        a(f"v_rsq_f32 v{R}, v{S2}")
        sm_minmax(a, ACC[1], TK)
        a(f"v_mul_f32 v{C}, {hex(LOG2E)}, v{R}")
        P, M_ = 80, 96; O = 112; FV, FP = 136, 152
        EPI = OPT.get("epi", 0)
        def k_part():
            sm_exp(a, ACC[1], P, M_, C, TK, lambda: wo_load())
            sm_norm(a, P, M_, TK); wo_load(2)
            a(f"v_mul_u32_u24 v5, {RS}, v185"); a("s_lshl_b32 s27, s20, 6"); a(f"s_add_u32 s27, s27, {IMG}"); a("v_add_u32 v8, s27, v5")
            a("s_lshl_b32 s27, s20, 5"); a(f"s_add_u32 s27, s27, {IMG + 128}"); a("v_add_u32 v9, s27, v5")
            for h in range(4):
                src = P if h < 2 else M_ - 16
                for i in range(4): a(f"v_cvt_pk_bf16_f32 v{ACC[1]+4*h+i}, v{src+8*h+2*i}, v{src+8*h+2*i+1}")
                a(f"ds_write_b128 v8, v[{ACC[1]+4*h}:{ACC[1]+4*h+3}] offset:{16*h}")
            wo_load(2); transpose4(a, ACC[2]); centre(2)
            for i in range(8): a(f"v_pk_mul_f32 v[{ACC[2]+2*i}:{ACC[2]+2*i+1}], v[{ACC[2]+2*i}:{ACC[2]+2*i+1}], v[{R}:{R+1}] op_sel_hi:[1,0]")
            for h in range(2):
                for i in range(4): a(f"v_cvt_pk_bf16_f32 v{128+4*h+i}, v{ACC[2]+8*h+2*i}, v{ACC[2]+8*h+2*i+1}")
                a(f"ds_write_b128 v9, v[{128+4*h}:{131+4*h}] offset:{16*h}")
            wo_load(32)
            a("v_lshrrev_b32 v5, 2, v1"); a(f"v_mul_u32_u24 v5, {RS}, v5"); a("v_and_b32 v10, 3, v0"); a("v_lshl_add_u32 v5, v10, 3, v5")
            a("v_add_u32 v8, s27, v5")
            a("s_lshl_b32 s27, s20, 6"); a("s_lshl_b32 s28, s21, 5"); a("s_add_u32 s27, s27, s28"); a(f"s_add_u32 s27, s27, {IMG}"); a("v_add_u32 v9, s27, v5")
            for r in range(12, 16): a(f"v_mov_b32 v{r}, 0x3f803f80")
            a("s_lshl_b32 s30, s26, 1"); a("s_add_u32 s30, s30, s20"); a("s_lshl_b32 s30, s30, 1"); a("s_add_u32 s30, s30, s21")
            a("s_lshl_b32 s31, s30, 7"); a(f"s_add_u32 s31, s31, {kv + 65536}"); a("s_lshl_b32 s30, s30, 10"); a(f"s_add_u32 s30, s30, {kv}")
            a("v_lshlrev_b32 v10, 2, v3"); a("v_lshl_add_u32 v11, v4, 8, v10")
        def kv_reads():
            k.stamp(f"q{L}_img", 2)
            a("s_waitcnt lgkmcnt(0)"); a("s_barrier")
            for ks in range(4):
                for hf in range(2):
                    a(f"ds_read_b64_tr_b16 v[{FV+4*ks+2*hf}:{FV+4*ks+2*hf+1}], v8 offset:{(32*ks+16*hf)*RS}")
                    a(f"ds_read_b64_tr_b16 v[{FP+4*ks+2*hf}:{FP+4*ks+2*hf+1}], v9 offset:{(32*ks+16*hf)*RS}")
        def kv_mfma():
            for ks in range(4):
                a(f"s_waitcnt lgkmcnt({12 - 4*ks})")
                a(f"v_mfma_f32_16x16x32_bf16 v[168:171], v[{FV+4*ks}:{FV+4*ks+3}], v[{FP+4*ks}:{FP+4*ks+3}], " + ("0" if ks == 0 else "v[168:171]"))
                a(f"v_mfma_f32_16x16x32_bf16 v[172:175], v[12:15], v[{FP+4*ks}:{FP+4*ks+3}], " + ("0" if ks == 0 else "v[172:175]"))
        def kv_out():
            for x_, y_ in ((168, 170), (169, 171)): a(f"v_mov_b32 v{x_+8}, v{x_}")
            for x_, y_ in ((168, 170), (169, 171)): a(f"v_mov_b32_dpp v{x_}, v{y_} row_ror:8 row_mask:0xf bank_mask:0xc")
            for x_, y_ in ((168, 170), (169, 171)): a(f"v_mov_b32_dpp v{y_}, v{x_+8} row_ror:8 row_mask:0xf bank_mask:0x3")
            for x_, y_ in ((168, 169), (170, 171)): a(f"v_mov_b32 v{x_+8}, v{x_}")
            for x_, y_ in ((168, 169), (170, 171)): a(f"v_mov_b32_dpp v{x_}, v{y_} row_ror:4 row_mask:0xf bank_mask:0xa")
            for x_, y_ in ((168, 169), (170, 171)): a(f"v_mov_b32_dpp v{y_}, v{x_+8} row_ror:12 row_mask:0xf bank_mask:0x5")
            for i in range(4): k.v(f"buffer_atomic_add_f32 v{168+i}, v11, s[4:7], s30 offen offset:{64*i}")
            a("s_mov_b64 exec, 0xffff")
            k.v("buffer_atomic_add_f32 v172, v10, s[4:7], s31 offen")
            a("s_mov_b64 exec, -1")
            k.stamp(f"q{L}_kv", 2)
        def q_exp():
            sm_minmax(a, ACC[0], TQ); sm_exp(a, ACC[0], P, M_, C, TQ)
        def q_out():
            a("v_lshrrev_b32 v2, 5, v185"); a("v_lshlrev_b32 v2, 16, v2"); a("v_and_b32 v6, 31, v185"); a("v_lshl_add_u32 v2, v6, 4, v2")
            a("s_lshl_b32 s29, s26, 1"); a("s_add_u32 s29, s29, s20"); a("s_lshl_b32 s29, s29, 11"); a("s_lshl_b32 s22, s25, 18"); a("s_add_u32 s29, s29, s22"); a(f"s_add_u32 s29, s29, {phiq}")
            for g in range(4):
                a(f"v_cvt_pk_bf16_f32 v{O+4*g}, v{P+4*g}, v{P+4*g+1}"); a(f"v_cvt_pk_bf16_f32 v{O+4*g+1}, v{P+4*g+2}, v{P+4*g+3}")
                a(f"v_cvt_pk_bf16_f32 v{O+4*g+2}, v{M_+4*g}, v{M_+4*g+1}"); a(f"v_cvt_pk_bf16_f32 v{O+4*g+3}, v{M_+4*g+2}, v{M_+4*g+3}")
                k.v(f"buffer_store_dwordx4 v[{O+4*g}:{O+4*g+3}], v2, s[4:7], s29 offen offset:{512*g} sc1")
        if EPI == 0:
            k_part(); centre(0); kv_reads(); kv_mfma(); kv_out(); q_exp(); sm_norm(a, P, M_, TQ); q_out()
        elif EPI == 1:
            centre(0); q_exp(); sm_norm(a, P, M_, TQ); q_out(); k_part(); kv_reads(); kv_mfma(); kv_out()
        elif EPI == 2:
            k_part(); centre(0); q_exp(); kv_reads(); sm_norm(a, P, M_, TQ); kv_mfma(); q_out(); kv_out()
        elif EPI == 3:
            k_part(); centre(0); sm_minmax(a, ACC[0], TQ); kv_reads(); sm_exp(a, ACC[0], P, M_, C, TQ); kv_mfma(); sm_norm(a, P, M_, TQ); kv_out(); q_out()

class Outp:
    ORS = 1040; OB = PA; RB = PA + 32 * 1040; TB = PA + 32 * 1040 + 4 * 2048; TRS = 72; ZB = PA + 32 * 1040 + 4 * 2048 + 10240; SB = PA + 32 * 1040 + 4 * 2048 + 10240 + 2048
    def __init__(self, k, L): self.k = k; self.L = L
    def pre(self):
        k = self.k; a = k.a; L = self.L; ORS = self.ORS
        xin = [XT1, XT3][L]; kv = KV[L]; phiq = PHIQ[L]
        a("s_and_b32 s25, s2, 7"); a("s_lshl_b32 s25, s25, 3"); a("s_lshr_b32 s26, s2, 5"); a("s_add_u32 s25, s25, s26")
        a("s_bfe_u32 s26, s2, 0x20003"); a("s_lshl_b32 s26, s26, 2"); a(f"s_add_u32 s26, s26, s{W}")
        a("v_lshrrev_b32 v9, 2, v1"); a("v_lshlrev_b32 v9, 8, v9"); a("v_and_b32 v10, 3, v0"); a("v_lshl_add_u32 v9, v10, 4, v9")
        a("s_lshr_b32 s30, s25, 2"); a("s_lshl_b32 s30, s30, 17"); a("s_and_b32 s31, s25, 3"); a("s_lshl_b32 s31, s31, 6"); a("s_add_u32 s30, s30, s31")
        a("s_lshl_b32 s31, s26, 13"); a("s_add_u32 s30, s30, s31"); a(f"s_add_u32 s30, s30, {xin}")
        a(f"s_add_u32 s31, s30, {16*256 - 1024}")
        a(f"s_lshl_b32 s34, s{W}, 11"); a(f"s_add_u32 s34, s34, {self.RB}"); a("s_mov_b32 m0, s34")
        k.v("buffer_load_dwordx4 v9, s[4:7], s30 offen sc1 lds", "res"); k.v("buffer_load_dwordx4 v9, s[4:7], s31 offen offset:1024 sc1 lds", "res")
        a("v_lshrrev_b32 v5, 2, v1"); a("v_lshlrev_b32 v5, 7, v5"); a("v_lshl_add_u32 v5, v10, 4, v5")
        a("s_lshr_b32 s27, s42, 10"); a("v_lshrrev_b32 v11, 3, v1"); a("v_xor_b32 v11, s27, v11")
        a("v_lshrrev_b32 v7, 2, v11"); a("v_lshlrev_b32 v7, 8, v7"); a("v_and_b32 v11, 3, v11"); a("v_lshl_add_u32 v11, v11, 4, v7"); a("v_lshl_add_u32 v11, v10, 6, v11")
        a("v_bfe_u32 v7, v0, 2, 1"); a("v_lshl_add_u32 v11, v7, 3, v11"); a(f"s_lshl_b32 s27, s{W}, 9"); a(f"s_add_u32 s27, s27, {self.ZB}"); a("v_add_u32 v11, s27, v11")
        a("v_lshlrev_b32 v187, 4, v10"); a("v_lshl_add_u32 v187, v4, 6, v187"); a("v_add_u32 v187, s27, v187")
        a("v_lshlrev_b32 v6, 4, v10"); a("v_lshl_add_u32 v6, v4, 6, v6"); a("v_lshrrev_b32 v7, 2, v3"); a("v_lshl_add_u32 v6, v7, 8, v6")
        a("v_lshlrev_b32 v7, 4, v3"); a("v_lshl_add_u32 v7, v4, 9, v7")
        a(f"s_lshl_b32 s27, s{W}, 11"); a(f"s_add_u32 s27, s27, {kv + 65536}")
        a(f"s_lshl_b32 s28, s{W}, 14"); a("s_lshl_b32 s29, s25, 16"); a("s_add_u32 s29, s29, s28"); a(f"s_add_u32 s29, s29, {phiq}"); a(f"s_add_u32 s28, s28, {kv}")
        a("s_lshl_b32 s43, s42, 1")
        for p in range(4):
            a(f"s_xor_b32 s35, s43, {p*4096}"); a(f"s_add_u32 s{52+p}, s29, s35"); a(f"s_add_u32 s{44+p}, s28, s35")
        a(f"v_mul_u32_u24 v10, {ORS}, v3"); a("v_lshl_add_u32 v10, v4, 4, v10"); a(f"s_lshl_b32 s35, s{W}, 6"); a(f"s_add_u32 s35, s35, {self.OB}"); a("v_add_u32 v10, s35, v10")
        a("v_and_b32 v184, 31, v0"); a(f"v_mul_u32_u24 v185, {ORS}, v184"); a("v_lshrrev_b32 v186, 5, v1"); a("v_lshl_add_u32 v185, v186, 4, v185"); a(f"v_add_u32 v185, {self.OB}, v185")
        a("v_bfe_u32 v8, v0, 2, 2"); a("v_lshlrev_b32 v8, 6, v8"); a("v_lshl_add_u32 v8, v186, 8, v8"); a("v_and_b32 v9, 1, v4"); a("v_lshl_add_u32 v8, v9, 5, v8")
        a("v_and_b32 v9, 3, v0"); a("v_lshl_add_u32 v8, v9, 3, v8"); a("v_add_u32 v8, s34, v8")
        a(f"s_mov_b32 s35, {f32(1e-6)}")
    def run(self):
        k = self.k; a = k.a; L = self.L; ORS, TRS, TB = self.ORS, self.TRS, self.TB; final = L == 1
        ACC = 16; KVR = 32; PQ = 96; ZF = 160; NUM = 168; TMP = [12, 14, 2, 188]
        k.v("buffer_load_dwordx4 v[16:19], v5, s[4:7], s27 offen sc1", "z")
        def pair_loads(p):
            for h in (2*p, 2*p+1):
                for j in range(2): k.v(f"buffer_load_dwordx4 v[{KVR+8*h+4*j}:{KVR+8*h+4*j+3}], v6, s[4:7], s{44+p} offen offset:{2048*(h%2)+1024*j} sc1", f"p{p}")
                for t in range(2): k.v(f"buffer_load_dwordx4 v[{PQ+8*h+4*t}:{PQ+8*h+4*t+3}], v7, s[4:7], s{52+p} offen offset:{2048*(h%2)+256*t} sc1", f"p{p}")
        PRE = OPT.get("o_pre", 2)
        for p in range(PRE):
            pair_loads(p)
            if p < PRE - 1 and OPT.get("o_bar", 1): a("s_barrier")
        k.wait("z")
        a("v_cvt_pk_bf16_f32 v16, v16, v17"); a("v_cvt_pk_bf16_f32 v17, v18, v19"); a("ds_write_b64 v11, v[16:17]")
        a("s_waitcnt lgkmcnt(0)")
        for grp in range(2): a(f"ds_read_b128 v[{ZF+4*grp}:{ZF+4*grp+3}], v187 offset:{256*grp}")
        k.stamp(f"o{L}_z", 2)
        fbr = lambda p, i: (KVR + 16*p + 4*i) if i < 4 else (PQ + 16*p + 4*(i-4))
        for p in range(4):
            k.wait(f"p{p}")
            for u in range(2):
                kr = KVR + 16*p + 8*u
                for i in range(4): a(f"v_cvt_pk_bf16_f32 v{kr+i}, v{kr+2*i}, v{kr+2*i+1}")
            if p + PRE < 4: pair_loads(p + PRE)
            if p == 0: a("s_waitcnt lgkmcnt(0)")
            for u in range(2):
                h = 2*p + u; kr = KVR + 8*h
                for t in range(2): a(f"v_mfma_f32_16x16x32_bf16 v[{NUM+8*u+4*t}:{NUM+8*u+4*t+3}], v[{kr}:{kr+3}], v[{PQ+8*h+4*t}:{PQ+8*h+4*t+3}], 0")
            for u in range(2):
                h = 2*p + u; kr = KVR + 8*h
                for t in range(2): a(f"v_mfma_f32_16x16x32_bf16 v[{kr+4-4*t}:{kr+7-4*t}], v[{ZF+4*(h//4)}:{ZF+4*(h//4)+3}], v[{PQ+8*h+4*t}:{PQ+8*h+4*t+3}], 0")
            V = []
            ut = [(u, t) for u in range(2) for t in range(2)]
            for n_, (u, t) in enumerate(ut): V.append(f"v_add_f32 v{TMP[n_]}, s35, v{KVR+16*p+8*u+4-4*t+((2*p+u)%4)}")
            for n_ in range(4): V.append(f"v_rcp_f32 v{TMP[n_]}, v{TMP[n_]}")
            oq = PQ + 16*p
            for t in range(2):
                for u in range(2):
                    n_ = 2*u + t; b = NUM + 8*u + 4*t
                    for i in range(4): V.append(f"v_mul_f32 v{b+i}, v{b+i}, v{TMP[n_]}")
                    for i in range(2): V.append(f"v_cvt_pk_bf16_f32 v{oq+4*t+2*u+i}, v{b+2*i}, v{b+2*i+1}")
                V.append(f"ds_write_b128 v10, v[{oq+4*t}:{oq+4*t+3}] offset:{16*ORS*t + 256*p}")
            rd = lambda q: [f"ds_read_b128 v[{fbr(q,i)}:{fbr(q,i)+3}], v185 offset:{256*q + 32*i}" for i in range(8)]
            big = lambda q, i: f"v_mfma_f32_32x32x16_bf16 v[{ACC}:{ACC+15}], {wo_reg(8*q+i)}, v[{fbr(q,i)}:{fbr(q,i)+3}], " + ("0" if 8*q+i == 0 else f"v[{ACC}:{ACC+15}]")
            if p >= 1: a("s_waitcnt lgkmcnt(0)"); a("s_barrier")
            per = [4, 3, 4, 5, 4, 5, 4, 5]; vi = 0
            for i in range(8):
                if p >= 2: a(big(p-2, i))
                if p >= 1: a(rd(p-1)[i])
                for t_ in V[vi:vi+per[i]]: a(t_)
                vi += per[i]
            assert vi == len(V)
        k.stamp(f"o{L}_o", 2)
        RR = 160; XR = 32
        a("s_waitcnt lgkmcnt(0)"); a("s_barrier")
        tail = rd(3) + [f"ds_read_b64_tr_b16 v[{RR+2*i}:{RR+2*i+1}], v8 offset:{512*i}" for i in range(4)]
        for i in range(8):
            a(big(2, i))
            for t_ in tail[2*i:2*i+2]: a(t_)
        a("s_waitcnt lgkmcnt(0)")
        for i in range(8):
            a(big(3, i)); unpack(a, XR+2*i, XR+2*i+1, RR+i)
        k.stamp(f"o{L}_mm", 2)
        T8 = list(range(48, 56))
        for i in range(8): a(f"v_pk_add_f32 v[{ACC+2*i}:{ACC+2*i+1}], v[{ACC+2*i}:{ACC+2*i+1}], v[{XR+2*i}:{XR+2*i+1}]")
        for i in range(8): a(f"v_cvt_pk_bf16_f32 v{T8[i]}, v{ACC+2*i}, v{ACC+2*i+1}")
        if final:
            a(f"s_mul_i32 s27, s{W}, {32*80}"); a(f"s_add_u32 s27, s27, {TB}")
            a(f"v_mul_u32_u24 v8, 80, v184"); a("v_lshl_add_u32 v8, v186, 3, v8"); a("v_add_u32 v8, s27, v8")
            for i in range(4): a(f"ds_write_b64 v8, v[{T8[2*i]}:{T8[2*i]+1}] offset:{16*i}")
            a("v_lshrrev_b32 v5, 2, v1"); a("v_mul_u32_u24 v8, 80, v5"); a("v_lshl_add_u32 v8, v9, 4, v8"); a("v_add_u32 v8, s27, v8")
            a("v_lshlrev_b32 v5, 10, v5"); a("v_lshl_add_u32 v5, v9, 4, v5")
            a("s_lshl_b32 s27, s25, 15"); a("s_lshl_b32 s28, s26, 6"); a("s_add_u32 s27, s27, s28"); a("s_add_u32 s28, s27, 16384")
            a("s_waitcnt lgkmcnt(0)")
            for p in range(2): a(f"ds_read_b128 v[{RR+4*p}:{RR+4*p+3}], v8 offset:{16*80*p}")
            for p in range(2):
                a(f"s_waitcnt lgkmcnt({1-p})"); k.v(f"buffer_store_dwordx4 v[{RR+4*p}:{RR+4*p+3}], v5, s[8:11], s{27+p} offen")
        else:
            a(f"s_mul_i32 s27, s{W}, {32*TRS}"); a(f"s_add_u32 s27, s27, {TB}")
            a(f"v_mul_u32_u24 v8, {TRS}, v184"); a("v_lshl_add_u32 v8, v186, 3, v8"); a("v_add_u32 v8, s27, v8")
            for i in range(4): a(f"ds_write_b64 v8, v[{T8[2*i]}:{T8[2*i]+1}] offset:{16*i}")
            a("v_bfe_u32 v8, v0, 2, 2"); a("v_lshl_add_u32 v8, v4, 3, v8"); a(f"v_mul_u32_u24 v8, {TRS}, v8"); a("v_lshl_add_u32 v8, v9, 3, v8"); a("v_add_u32 v8, s27, v8")
            for i in range(8): unpack(a, XR+2*i, XR+2*i+1, T8[i])
            a("s_waitcnt lgkmcnt(0)")
            for p in range(2):
                for hf in range(2): a(f"ds_read_b64_tr_b16 v[{RR+4*p+2*hf}:{RR+4*p+2*hf+1}], v8 offset:{32*p + 4*TRS*hf}")
            a("v_lshlrev_b32 v5, 6, v3"); a("v_lshl_add_u32 v5, v4, 4, v5")
            a("s_lshl_b32 s27, s25, 15"); a("s_lshl_b32 s28, s26, 11"); a("s_add_u32 s27, s27, s28"); a(f"s_add_u32 s27, s27, {X2B}")
            a(f"v_pk_add_f32 v[12:13], v[{XR}:{XR+1}], v[{XR+2}:{XR+3}]"); a(f"v_pk_mul_f32 v[14:15], v[{XR}:{XR+1}], v[{XR}:{XR+1}]")
            a(f"v_pk_fma_f32 v[14:15], v[{XR+2}:{XR+3}], v[{XR+2}:{XR+3}], v[14:15]")
            for i in range(2, 8):
                a(f"v_pk_add_f32 v[12:13], v[12:13], v[{XR+2*i}:{XR+2*i+1}]"); a(f"v_pk_fma_f32 v[14:15], v[{XR+2*i}:{XR+2*i+1}], v[{XR+2*i}:{XR+2*i+1}], v[14:15]")
                if i == 4:
                    a("s_waitcnt lgkmcnt(2)"); k.v(f"buffer_store_dwordx4 v[{RR}:{RR+3}], v5, s[4:7], s27 offen sc1")
                    a("s_waitcnt lgkmcnt(0)"); k.v(f"buffer_store_dwordx4 v[{RR+4}:{RR+7}], v5, s[4:7], s27 offen offset:1024 sc1")
            a("v_add_f32 v12, v12, v13"); a("v_add_f32 v14, v14, v15")
            a("v_lshlrev_b32 v13, 2, v9"); a("v_lshl_add_u32 v13, v186, 13, v13"); a("v_bfe_u32 v15, v0, 2, 1"); a("v_lshl_add_u32 v13, v15, 12, v13")
            a("v_bfe_u32 v15, v0, 3, 2"); a("v_lshl_add_u32 v13, v15, 4, v13"); a("s_lshl_b32 s28, s25, 6"); a(f"s_add_u32 s28, s28, {ST3}")
            a("v_permlane32_swap_b32 v12, v14"); a("v_add_f32 v12, v12, v14")
            a(f"s_lshl_b32 s27, s{W}, 2"); a(f"s_add_u32 s27, s27, {self.SB}"); a("v_lshl_add_u32 v14, v1, 4, s27"); a("ds_write_b32 v14, v12")
            a(f"v_lshlrev_b32 v14, 4, v1"); a(f"v_add_u32 v14, {self.SB}, v14")
            a("s_waitcnt lgkmcnt(0)"); a("s_barrier")
            a(f"s_cmp_eq_u32 s{W}, 3"); a("s_cbranch_scc0 L_ost")
            a("ds_read_b128 v[16:19], v14"); a("s_waitcnt lgkmcnt(0)")
            a("v_add_f32 v16, v16, v17"); a("v_add_f32 v18, v18, v19"); a("v_add_f32 v12, v16, v18")
            k.v("buffer_atomic_add_f32 v12, v13, s[4:7], s28 offen")
            a.label("L_ost")

def build():
    name = NAME + "_kernel"
    k = K(); a = k.a
    a.raw(kernel_header(name))
    a("s_cmp_ge_u32 s2, 256"); a("s_cbranch_scc1 L_end")
    if PROF: a("s_memrealtime s[96:97]"); a(f"v_mov_b32 v{PV}, 0"); k.stamp("start")
    ph = [Conv(k, 0), Qkv(k, 0), Outp(k, 0), Conv(k, 1), Qkv(k, 1), Outp(k, 1)]
    phase0(k, ph[0].pre)
    for i, p in enumerate(ph):
        a.walk_begin(f"wk{i}"); p.run()
        if i < 5: grid_barrier(k, i + 1, ph[i+1].pre)
    if PROF:
        k.stamp("issued"); a("s_waitcnt vmcnt(0)"); k.stamp("end")
        a("s_memrealtime s[98:99]"); a("s_waitcnt lgkmcnt(0)"); a(f"v_writelane_b32 v{PV}, s96, 62"); a(f"v_writelane_b32 v{PV}, s98, 63")
        a("s_lshl_b32 s27, s2, 10"); a(f"s_add_u32 s27, s27, {STAMP}"); a("v_lshlrev_b32 v5, 2, v0")
        a(f"buffer_store_dword v{PV}, v5, s[4:7], s27 offen")
    a.label("L_end"); a("s_endpgm")
    s = "; S4D convolution / Hedgehog linear attention stack as one persistent kernel (256 workgroups, one per CU)\n"
    s += "; generated by a hand-written generator script\n"
    s += "; @launch grid=(256,1,1) block=(256,1,1) lds=163840\n"
    s += '.amdgcn_target "amdgcn-amd-amdhsa--gfx950"\n.text\n'
    body = a.render()
    if OPT.get("walk", 1):
        body, info, size = place_page_stubs(body, s); print("stubs", info, "bytes after L_main", size)
    s += body + kernel_desc(name, 256, 256) + "\n"
    return s, k.names

if __name__ == "__main__":
    out = f"cdna_kernels/{NAME}.s"
    for arg in sys.argv[1:]:
        if arg == "-p": PROF = True; out = "prof4.s"
        elif "=" in arg: kk, vv = arg.split("="); OPT[kk] = int(vv)
        else: out = arg
    s, names = build()
    open(out, "w").write(s)
    if PROF: json.dump(names, open(out.replace(".s", ".json"), "w"))
```

```python
import sys, struct, json
from asmlib import *

NAME = "interleave_layers__ssm_conv_s4d__linear_kernel_hedgehog__prompt"
PROF = False
OPT = {}
X0B = 0x000000
XT1 = 0x420000; XT3 = 0x820000
X2B = 0x620000
WF = 0xA20000; WO = 0xBA0000
PHIQ = [0xC20000 - 0x0, 0x1020000 - 0x20000 + 0x20000]
ZERO = 0x1420000; KVSZ = 65536 + 8192; ZERO_SZ = 2 * KVSZ + 16384
KV = [ZERO, ZERO + KVSZ]
ST3 = ZERO + 2 * KVSZ
BAR = 0x1470000; GS = 256; GOFF = BAR + 0x1000
STAMP = 0x1480000
WS_USED = 0x14C0000
RBS = 16384 + 256
LOG2E = 0x3fb8aa3b; INV2PI = 0x3e22f983
CSB = 33280
PA = 33792
W = 24
MEMB = 191; PV = 190; B0, B1 = 188, 189
SPIN = 400000
def f32(x): return "0x%08x" % struct.unpack("<I", struct.pack("<f", x))[0]

class K:
    def __init__(self):
        self.a = Asm(); self.vm = []; self.names = []
    def __call__(self, t): self.a(t)
    def v(self, text, tag=None):
        self.a(text); self.vm.append(tag)
    def wait(self, tag, lgkm=None):
        idx = max(i for i, t in enumerate(self.vm) if t == tag)
        n = len(self.vm) - 1 - idx
        assert n <= 63, n
        self.a(f"s_waitcnt vmcnt({n})" + (f" lgkmcnt({lgkm})" if lgkm is not None else ""))
    def drained(self): self.vm = []
    def stamp(self, name, lvl=1):
        if not PROF or lvl > OPT.get("plvl", 1): return
        if name in self.names: i = self.names.index(name)
        else: i = len(self.names); self.names.append(name)
        assert i < 60
        self.a("s_memtime s[98:99]"); self.a("s_waitcnt lgkmcnt(0)"); self.a(f"v_writelane_b32 v{PV}, s98, {i}")

def unpack(a, lo, hi, src):
    a(f"v_lshlrev_b32 v{lo}, 16, v{src}"); a(f"v_and_b32 v{hi}, 0xffff0000, v{src}")
def rnd_pairs(a, regs, tmp):
    n = len(regs)
    for i in range(0, n, 2): a(f"v_cvt_pk_bf16_f32 v{tmp[i//2]}, v{regs[i]}, v{regs[i+1]}")
    for i in range(0, n, 2): unpack(a, regs[i], regs[i+1], tmp[i//2])
def cmul_ops(d, z, e, t):
    return [f"v_pk_mul_f32 v[{t}:{t+1}], v[{z}:{z+1}], v[{e}:{e+1}] op_sel:[0,0] op_sel_hi:[1,0]",
            f"v_pk_fma_f32 v[{d}:{d+1}], v[{z}:{z+1}], v[{e}:{e+1}], v[{t}:{t+1}] op_sel:[1,1,0] op_sel_hi:[0,1,1] neg_lo:[1,0,0]"]
def wo_reg(i):
    return f"a[{192+4*i}:{195+4*i}]" if i < 16 else f"v[{192+4*(i-16)}:{195+4*(i-16)}]"

def bar_signal(k, e):
    a = k.a
    a(f"s_cmp_eq_u32 s{W}, 1"); a(f"s_cbranch_scc0 L_bs{e}")
    a(f"v_mov_b32 v{B0}, {(2 << e) - 1}"); a(f"v_mov_b32 v{B1}, 0")
    a("s_mov_b64 exec, 1"); a(f"buffer_store_byte v{B0}, v{B1}, s[4:7], s38 offen"); a("s_mov_b64 exec, -1")
    a.label(f"L_bs{e}")
def bar_leader(k, e):
    a = k.a
    a(f"s_cmp_eq_u32 s33, 1"); a(f"s_cbranch_scc0 L_bl{e}")
    a(f"v_lshlrev_b32 v{B0}, {e}, v{MEMB}"); a(f"v_lshlrev_b32 v{B1}, 2, v1"); a("s_mov_b32 s23, 0")
    a.label(f"L_blp{e}")
    a(f"buffer_load_dword v2, v{B1}, s[4:7], s39 offen sc1"); a("s_add_u32 s23, s23, 1"); a(f"s_cmp_gt_u32 s23, {SPIN}"); a(f"s_cbranch_scc1 L_blq{e}")
    a("s_waitcnt vmcnt(0)"); a(f"v_and_b32 v2, v2, v{B0}"); a(f"v_cmp_ne_u32 vcc, v2, v{B0}"); a("s_nop 4"); a(f"s_cbranch_vccnz L_blp{e}")
    a.label(f"L_blq{e}")
    a("s_waitcnt vmcnt(0)")
    a(f"v_mov_b32 v{B0}, {e + 1}"); a(f"v_mul_u32_u24 v{B1}, {8*GS}, v1")
    a("s_mov_b64 exec, s[36:37]"); a(f"buffer_store_dword v{B0}, v{B1}, s[4:7], s40 offen sc1"); a("s_mov_b64 exec, -1")
    a.label(f"L_bl{e}")
def bar_wait(k, e):
    a = k.a
    a(f"s_cmp_eq_u32 s{W}, 0"); a(f"s_cbranch_scc0 L_bw{e}")
    a(f"v_mul_u32_u24 v{B1}, {GS}, v1"); a("s_mov_b32 s23, 0"); a("s_mov_b64 exec, s[36:37]")
    a.label(f"L_bwp{e}")
    a(f"buffer_load_dword v2, v{B1}, s[4:7], s41 offen sc1"); a("s_add_u32 s23, s23, 1"); a(f"s_cmp_gt_u32 s23, {SPIN}"); a(f"s_cbranch_scc1 L_bwq{e}")
    a("s_waitcnt vmcnt(0)"); a(f"v_cmp_gt_u32 vcc, {e + 1}, v2"); a("s_nop 4"); a("s_and_b64 exec, exec, vcc"); a(f"s_cbranch_execnz L_bwp{e}")
    a.label(f"L_bwq{e}")
    a("s_waitcnt vmcnt(0)"); a("s_mov_b64 exec, -1")
    a.label(f"L_bw{e}")
    a("s_waitcnt lgkmcnt(0)"); a("s_barrier")
def walker(k, name, wave):
    a = k.a
    if not OPT.get("walk", 1): return
    a(f"s_cmp_eq_u32 s{W}, {wave}"); a(f"s_cbranch_scc0 L_{name}_skip")
    a("s_mov_b64 exec, 0"); a(f"s_branch @WALK({name})")
    a.label(f"L_{name}_ret"); a("s_mov_b64 exec, -1")
    a.label(f"L_{name}_skip")
def grid_barrier(k, e, pre):
    k.stamp(f"b{e}_iss")
    k("s_waitcnt vmcnt(0) lgkmcnt(0)"); k.drained(); k("s_barrier")
    k.stamp(f"b{e}_arr")
    bar_signal(k, e); walker(k, f'wk{e}', 1); bar_leader(k, e); pre(); bar_wait(k, e)
    k.stamp(f"b{e}_rel")

def phase0(k, pre):
    a = k.a
    a("s_load_dwordx4 s[64:67], s[0:1], 96")
    a("s_load_dwordx16 s[44:59], s[0:1], 0")
    a("s_load_dwordx8 s[68:75], s[0:1], 64")
    a("v_lshrrev_b32 v2, 6, v0"); a("v_and_b32 v1, 63, v0"); a(f"v_readfirstlane_b32 s{W}, v2")
    a("v_and_b32 v3, 15, v0"); a("v_bfe_u32 v4, v0, 4, 2")
    if OPT.get("cpf", 1):
        a("s_getpc_b64 s[76:77]"); a.label("L_pc")
        a("s_add_u32 s76, s76, L_main-L_pc"); a("s_addc_u32 s77, s77, 0")
        if OPT.get("cpf", 1) == 1:
            a("s_lshr_b32 s78, s2, 3"); a("s_and_b32 s78, s78, 3"); a("s_mul_i32 s78, s78, 16384"); a("v_lshl_add_u32 v104, v0, 6, s78")
        else:
            a("v_lshlrev_b32 v104, 7, v0"); a("v_add_u32 v106, 0x8000, v104"); a("v_min_u32 v106, L_end-L_main, v106"); a("global_load_dword v107, v106, s[76:77]")
        a("v_min_u32 v104, L_end-L_main, v104")
        a("global_load_dword v105, v104, s[76:77]")
    a("s_getreg_b32 s32, hwreg(HW_REG_XCC_ID, 0, 4)"); a("s_and_b32 s32, s32, 7")
    a("s_and_b32 s18, s2, 7"); a("s_lshl_b32 s18, s18, 5"); a("s_lshr_b32 s25, s2, 3"); a("s_add_u32 s18, s18, s25")
    a("s_lshl_b32 s39, s32, 8"); a(f"s_add_u32 s39, s39, {BAR}"); a("s_add_u32 s38, s39, s2")
    a(f"s_mul_i32 s40, s32, {GS}"); a(f"s_add_u32 s40, s40, {GOFF}"); a(f"s_mul_i32 s41, s32, {8*GS}"); a(f"s_add_u32 s41, s41, {GOFF}")
    a("s_mov_b32 s33, 0"); a("s_mov_b64 s[36:37], 0")
    a("s_lshl_b32 s25, s18, 9"); a("v_lshl_add_u32 v5, v0, 1, s25")
    a(f"s_lshr_b32 s26, s{W}, 1"); a("s_lshl_b32 s27, s18, 1"); a("s_add_u32 s27, s27, s26"); a("s_lshl_b32 s27, s27, 1"); a("v_mov_b32 v6, s27")
    a("s_lshl_b32 s29, s2, 13"); a("v_lshlrev_b32 v7, 4, v1"); a("v_mov_b32 v8, 0")
    a(f"s_lshl_b32 s30, s{W}, 11"); a("s_add_u32 s30, s30, s29"); a("v_add_u32 v9, s30, v7")
    for r in range(56, 60): a(f"v_mov_b32 v{r}, 0")
    a(f"v_mov_b32 v{MEMB}, 0")
    a("s_and_b32 s19, s2, 15"); a("s_lshr_b32 s20, s2, 4"); a("s_cmp_lt_u32 s19, 12")
    a("s_cselect_b32 s31, 3, 1"); a("s_cselect_b32 s27, 0, 12"); a("s_lshl_b32 s31, s31, 10"); a("s_sub_u32 s21, s19, s27")
    a("s_lshl_b32 s27, s20, 5"); a("v_add_u32 v52, s27, v3"); a("v_mul_lo_u32 v52, v52, s31"); a("v_lshl_add_u32 v52, v4, 4, v52")
    a("s_lshl_b32 s27, s21, 8"); a(f"s_lshl_b32 s28, s{W}, 6"); a("s_add_u32 s27, s27, s28"); a("v_add_u32 v52, s27, v52")
    a("s_lshl_b32 s27, s31, 4"); a("v_add_u32 v53, s27, v52")
    a("s_and_b32 s22, s19, 3"); a("s_lshl_b32 s22, s22, 3"); a(f"s_lshl_b32 s27, s{W}, 1"); a("s_add_u32 s22, s22, s27")
    a("s_lshl_b32 s27, s22, 9"); a("v_add_u32 v54, s27, v7")
    a("s_waitcnt lgkmcnt(0)")
    k.stamp("karg")
    a("s_mov_b32 s4, s66"); a("s_mov_b32 s5, s67"); a(f"s_mov_b32 s6, {hex(WS_USED)}"); a("s_mov_b32 s7, 0x20000")
    a(f"s_cmp_eq_u32 s{W}, 3"); a("s_cbranch_scc0 L_p0a")
    a("s_mov_b64 exec, 1")
    a("buffer_store_byte v56, v56, s[4:7], s38 offen")
    a(f"s_mul_i32 s27, s2, {GS}"); a(f"s_add_u32 s27, s27, {GOFF}")
    a("s_cmp_lt_u32 s2, 64"); a("s_cbranch_scc0 L_p0b")
    a("buffer_store_dword v56, v56, s[4:7], s27 offen sc1")
    a.label("L_p0b")
    a("s_mov_b64 exec, -1")
    a.label("L_p0a")
    k.vm.append("clr")
    k.v("global_load_dwordx4 v[16:19], v9, s[44:45]", "x"); k.v("global_load_dwordx4 v[20:23], v9, s[44:45] offset:1024", "x")
    a("s_cmp_lt_u32 s19, 12"); a("s_cselect_b32 s34, s68, s72"); a("s_cselect_b32 s35, s69, s73")
    k.v("global_load_dwordx4 v[32:35], v52, s[34:35]", "w"); k.v("global_load_dwordx4 v[36:39], v53, s[34:35]", "w")
    k.v("global_load_dwordx4 v[40:43], v54, s[70:71]", "w")
    for i, sp in enumerate([46, 48, 50, 52]): k.v(f"global_load_ushort v{10+i}, v5, s[{sp}:{sp+1}]", "ssm")
    k.v("global_load_ushort v14, v6, s[54:55]", "ssm"); k.v("global_load_ushort v15, v6, s[56:57]", "ssm")
    a("s_mov_b32 s8, s74"); a("s_mov_b32 s9, s75"); a("s_mov_b32 s10, 0x200000"); a("s_mov_b32 s11, 0x20000")
    a("s_mov_b32 s12, s64"); a("s_mov_b32 s13, s65"); a("s_mov_b32 s14, 256"); a("s_mov_b32 s15, 0x20000")
    if OPT.get("tlb", 0):
        a("v_lshlrev_b32 v104, 20, v1"); a("v_add_u32 v104, 0x1ff80, v104")
        k.v("buffer_load_dword v105, v104, s[4:7], 0 offen sc1", "ssm"); k.v("buffer_load_dword v106, v104, s[8:11], 0 offen sc1", "ssm")
    a("s_branch L_main"); a.raw(".p2align 12"); a.label("L_main"); a.walk_begin("wkp")
    walker(k, "wkp", 2)
    k.stamp("iss", 2)
    a(f"s_cmp_eq_u32 s{W}, 3"); a("s_cbranch_scc0 L_p0g")
    a("s_lshl_b32 s27, s32, 5"); a("s_lshr_b32 s28, s2, 5"); a("s_lshl_b32 s28, s28, 2"); a("s_add_u32 s27, s27, s28")
    a("s_and_b32 s28, s2, 31"); a("s_lshl_b32 s28, 1, s28"); a("v_mov_b32 v55, s28")
    k.wait("clr")
    a("s_mov_b64 exec, 1"); a("buffer_atomic_or v55, v56, s[12:15], s27 offen"); a("s_mov_b64 exec, -1")
    a("s_branch L_p0h")
    a.label("L_p0g")
    a(f"s_mul_i32 s27, s2, {ZERO_SZ//256}"); a(f"s_add_u32 s27, s27, {ZERO}"); a("v_lshlrev_b32 v55, 4, v0"); a(f"v_cmp_gt_u32 vcc, {ZERO_SZ//4096}, v0")
    a("v_mov_b32 v60, 0x7f000000"); a("v_cndmask_b32 v55, v60, v55, vcc")
    a("buffer_store_dwordx4 v[56:59], v55, s[4:7], s27 offen sc1")
    a.label("L_p0h")
    k.vm.append("z")
    IM = PA + 12544; TB = IM + 81920; TS = 6400; GA = 108
    a("v_lshlrev_b32 v55, 3, v0")
    for j in range(12): a(f"v_add_u32 v{GA+j}, {j-3}, v55")
    for j in range(12): a(f"v_cvt_f32_i32 v{GA+j}, v{GA+j}")
    rnd_pairs(a, list(range(GA, GA+12)), list(range(120, 126)))
    for j in range(11): a(f"v_cvt_i32_f32 v{GA+j}, v{GA+j}")
    for j in range(3): a(f"v_min_u32 v{GA+j}, 3071, v{GA+j}")
    a(f"s_mov_b32 s27, {TB}")
    for j in range(11):
        a(f"v_lshrrev_b32 v120, 6, v{GA+j}"); a(f"v_lshl_add_u32 v{GA+j}, v{GA+j}, 1, s27"); a(f"v_lshl_add_u32 v{GA+j}, v120, 2, v{GA+j}")
    XL = PA; SL = PA + 8192; PL = PA + 8192 + 64
    a(f"s_lshl_b32 s27, s{W}, 11"); a(f"s_add_u32 s27, s27, {XL}"); a("v_add_u32 v9, s27, v7")
    a(f"s_lshl_b32 s27, s{W}, 10"); a(f"s_add_u32 s27, s27, {PL}"); a("v_add_u32 v53, s27, v7")
    a("v_lshrrev_b32 v54, 2, v1"); a("v_and_b32 v54, 3, v54"); a("v_lshlrev_b32 v54, 5, v54"); a("v_lshl_add_u32 v54, v4, 8, v54")
    a("v_and_b32 v55, 3, v0"); a("v_lshl_add_u32 v54, v55, 3, v54"); a("v_add_u32 v54, s27, v54")
    a(f"s_lshl_b32 s27, s{W}, 4"); a(f"s_add_u32 s27, s27, {SL}"); a("v_mov_b32 v55, s27")
    a("s_mov_b32 s60, 0x05040100"); a("s_mov_b32 s61, 0x07060302"); a("s_mov_b32 s62, 0x3f803f80")
    k.wait("x")
    k.stamp("x_in", 2)
    a("ds_write_b128 v9, v[16:19]"); a("ds_write_b128 v9, v[20:23] offset:1024")
    for j in range(4):
        for r in range(2):
            src = 16 + 4*r + j
            a(f"v_dot2_f32_bf16 v{24+r}, v{src}, s62, {'0' if j == 0 else 'v%d' % (24+r)}")
            a(f"v_dot2_f32_bf16 v{26+r}, v{src}, v{src}, {'0' if j == 0 else 'v%d' % (26+r)}")
    for m in ["row_shr:1", "row_shr:2", "row_shr:4", "row_shr:8"]:
        for r in range(24, 28): a(f"v_add_f32_dpp v{r}, v{r}, v{r} {m} row_mask:0xf bank_mask:0xf bound_ctrl:1")
    for r in range(24, 28): a(f"v_add_f32_dpp v{r}, v{r}, v{r} row_bcast:15 row_mask:0xa bank_mask:0xf")
    for r in range(24, 28): a(f"v_add_f32_dpp v{r}, v{r}, v{r} row_bcast:31 row_mask:0xc bank_mask:0xf")
    for r in range(2):
        a(f"v_mul_f32 v{24+r}, {f32(1/512)}, v{24+r}"); a(f"v_mov_b32 v{28+2*r}, {f32(1e-5)}"); a(f"v_fmac_f32 v{28+2*r}, {f32(1/512)}, v{26+r}")
    for r in range(2): a(f"v_fma_f32 v{28+2*r}, -v{24+r}, v{24+r}, v{28+2*r}")
    for r in range(2): a(f"v_max_f32 v{28+2*r}, {f32(1e-5)}, v{28+2*r}")
    for r in range(2): a(f"v_rsq_f32 v{28+2*r}, v{28+2*r}")
    for r in range(2): a(f"v_mul_f32 v{29+2*r}, -v{24+r}, v{28+2*r}")
    a("s_mov_b32 exec_lo, 0"); a("s_mov_b32 exec_hi, 0x80000000")
    a("ds_write_b128 v55, v[28:31]")
    a("s_mov_b64 exec, -1")
    k.wait("w")
    a("ds_write_b128 v53, v[40:43]")
    a(f"v_lshlrev_b32 v9, 2, v0"); a(f"v_mov_b32 v55, {SL}")
    a("s_waitcnt lgkmcnt(0)"); a("s_barrier")
    k.stamp("w_in", 2)
    for i in range(8): a(f"ds_read_b32 v{16+i}, v9 offset:{XL + 1024*i}")
    for i in range(4): a(f"ds_read_b128 v[{72+4*i}:{75+4*i}], v55 offset:{16*i}")
    a("ds_read_b64_tr_b16 v[40:41], v54"); a("ds_read_b64_tr_b16 v[42:43], v54 offset:128")
    a("v_lshlrev_b32 v55, 6, v3"); a("v_lshl_add_u32 v55, v4, 4, v55"); a(f"s_mul_i32 s29, s2, {RBS}"); a(f"s_lshl_b32 s27, s{W}, 12"); a("s_add_u32 s29, s29, s27")
    RC = 144
    a("s_waitcnt lgkmcnt(6)")
    for j in range(4):
        a(f"v_perm_b32 v{RC+j}, v{17+2*j}, v{16+2*j}, s60"); a(f"v_perm_b32 v{RC+4+j}, v{17+2*j}, v{16+2*j}, s61")
    for i in range(8): unpack(a, 88+2*i, 89+2*i, 16+i)
    a("s_waitcnt lgkmcnt(2)")
    for i in range(8): a(f"v_pk_fma_f32 v[{88+2*i}:{89+2*i}], v[{88+2*i}:{89+2*i}], v[{72+2*i}:{73+2*i}], v[{72+2*i}:{73+2*i}] op_sel:[0,0,1] op_sel_hi:[1,0,1]")
    for j in range(4):
        a(f"v_cvt_pk_bf16_f32 v{RC+8+j}, v{88+4*j}, v{90+4*j}"); a(f"v_cvt_pk_bf16_f32 v{RC+12+j}, v{89+4*j}, v{91+4*j}")
    transpose4(a, RC)
    for j in range(4): k.v(f"buffer_store_dwordx4 v[{RC+4*j}:{RC+4*j+3}], v55, s[4:7], s29 offen offset:{1024*j} sc1")
    a("s_waitcnt lgkmcnt(0)")
    a("s_cmp_lt_u32 s19, 8"); a("s_cbranch_scc1 L_p0i")
    a("v_and_b32 v44, 1, v3"); a("v_lshlrev_b32 v44, 4, v44"); a("v_mov_b32 v45, 0x3f80"); a("v_lshlrev_b32 v44, v44, v45")
    a("v_and_b32 v45, 1, v4"); a("v_lshlrev_b32 v45, 2, v45"); a("v_lshrrev_b32 v46, 1, v3"); a("v_sub_u32 v45, v46, v45")
    for i in range(4): a(f"v_cmp_eq_u32 vcc, {i}, v45"); a(f"v_cndmask_b32 v{40+i}, 0, v44, vcc")
    a.label("L_p0i")
    a("s_mov_b32 s60, 0"); a("s_mov_b32 s61, -1")
    for i in range(4): a(f"v_cndmask_b32 v{44+i}, 0, v{40+i}, s[60:61]")
    for i in range(4): a(f"v_cndmask_b32 v{40+i}, v{40+i}, 0, s[60:61]")
    D0 = 16
    for u in range(2):
        for h in range(2): a(f"v_mfma_f32_16x16x32_bf16 v[{D0+8*u+4*h}:{D0+8*u+4*h+3}], v[{32+4*h}:{35+4*h}], v[{40+4*u}:{43+4*u}], 0")
    a("s_cmp_lt_u32 s19, 12"); a("s_cbranch_scc0 L_p0j")
    a("s_lshl_b32 s27, s22, 4"); a("s_add_u32 s27, s27, s20"); a("s_mul_i32 s27, s27, 3"); a("s_lshr_b32 s28, s19, 2"); a("s_add_u32 s27, s27, s28")
    a("s_lshl_b32 s27, s27, 10"); a(f"s_add_u32 s27, s27, {WF}"); a("s_add_u32 s28, s27, 49152")
    a("v_lshlrev_b32 v52, 4, v1")
    a("s_branch L_p0k")
    a.label("L_p0j")
    a("s_lshl_b32 s27, s21, 2"); a(f"s_add_u32 s27, s27, s{W}"); a("s_lshl_b32 s27, s27, 4"); a("s_add_u32 s27, s27, s20"); a("s_lshl_b32 s27, s27, 11")
    a(f"s_add_u32 s27, s27, {WO}"); a("s_add_u32 s28, s27, 256")
    a("v_lshlrev_b32 v52, 4, v3"); a("v_lshl_add_u32 v52, v4, 9, v52")
    a.label("L_p0k")
    a("s_nop 4")
    a("s_cmp_lt_u32 s19, 4"); a("s_cbranch_scc0 L_p0l")
    for i in range(16): a(f"v_subrev_f32_dpp v{32+i}, v{D0+i}, v{D0+i} row_newbcast:0 row_mask:0xf bank_mask:0xf")
    a("s_mov_b32 s60, 0x00010001"); a("s_mov_b32 s61, s60")
    for i in range(16): a(f"v_cndmask_b32 v{D0+i}, v{32+i}, 1.0, s[60:61]")
    a.label("L_p0l")
    for u in range(2):
        for i in range(4): a(f"v_cvt_pk_bf16_f32 v{48+4*u+i if u == 0 else 68+i}, v{D0+8*u+2*i}, v{D0+8*u+2*i+1}")
        k.v(f"buffer_store_dwordx4 v[{48 if u == 0 else 68}:{51 if u == 0 else 71}], v52, s[4:7], s{27+u} offen sc1")
    k.stamp("pub")
    k.wait("ssm")
    a("v_and_b32 v54, 127, v0"); a("v_mul_u32_u24 v54, 160, v54"); a("s_mul_i32 s27, s26, 40960"); a(f"s_add_u32 s27, s27, {IM}"); a("v_add_u32 v54, s27, v54")
    for r in range(10, 16): a(f"v_lshlrev_b32 v{r}, 16, v{r}")
    a(f"v_mul_f32 v10, {hex(LOG2E)}, v10"); a(f"v_mul_f32 v14, {hex(LOG2E)}, v14")
    a("v_exp_f32 v10, v10"); a("v_exp_f32 v14, v14")
    a("v_cvt_pk_bf16_f32 v9, v10, v14"); unpack(a, 10, 14, 9)
    a("v_mul_f32 v10, v10, v14"); a("v_mul_f32 v11, v11, v14")
    a(f"v_mul_f32 v10, {hex(LOG2E | 0x80000000)}, v10"); a(f"v_mul_f32 v11, {hex(INV2PI)}, v11")
    E = {1: 16, 8: 18, 128: 20}; T0 = {1: 22, 8: 24, 128: 26}
    for s_, t in T0.items(): a(f"v_mul_f32 v{t}, {f32(s_)}, v10"); a(f"v_mul_f32 v{t+1}, {f32(s_)}, v11")
    for s_, t in T0.items(): a(f"v_fract_f32 v{t+1}, v{t+1}")
    for s_, t in T0.items(): a(f"v_exp_f32 v{t}, v{t}"); a(f"v_cos_f32 v{E[s_]}, v{t+1}"); a(f"v_sin_f32 v{E[s_]+1}, v{t+1}")
    for s_, t in T0.items(): a(f"v_pk_mul_f32 v[{E[s_]}:{E[s_]+1}], v[{E[s_]}:{E[s_]+1}], v[{t}:{t+1}] op_sel:[0,0] op_sel_hi:[1,0]")
    E[2], E[16], E[256] = 28, 30, 32
    X = [72 + 2*j for j in range(8)]; Y = [88 + 2*j for j in range(8)]
    tmp = [34, 36, 38, 40]; ti = [0]
    def cm(d, z, e):
        t = tmp[ti[0] % 4]; ti[0] += 1
        return cmul_ops(d, z, e, t)
    def par(*pairs):
        for p in pairs: a(p[0])
        for p in pairs: a(p[1])
    SR, SI = [128, 136], [132, 140]; sb = [0]
    def pack(slot, r0, r1, neg):
        b = sb[0]; s = "-" if neg else ""
        a(f"v_cvt_pk_bf16_f32 v{SR[b]+slot}, v{r0}, v{r1}"); a(f"v_cvt_pk_bf16_f32 v{SI[b]+slot}, {s}v{r0+1}, {s}v{r1+1}")
    def flush(grp):
        b = sb[0]
        a(f"ds_write_b128 v54, v[{SR[b]}:{SR[b]+3}] offset:{16*grp}"); a(f"ds_write_b128 v54, v[{SI[b]}:{SI[b]+3}] offset:{20480+16*grp}")
        sb[0] ^= 1
    a(f"v_mov_b32 v{X[0]}, v12"); a(f"v_mov_b32 v{X[0]+1}, v13"); a(f"v_mov_b32 v{Y[0]}, 1.0"); a(f"v_mov_b32 v{Y[0]+1}, 0")
    a(f"v_mov_b32 v{Y[1]}, v{E[8]}"); a(f"v_mov_b32 v{Y[1]+1}, v{E[8]+1}")
    par(cm(E[2], E[1], E[1]), cm(E[16], E[8], E[8]), cm(E[256], E[128], E[128]), cm(X[1], X[0], E[1]))
    for j in (2, 4, 6): par(cm(X[j], X[j-2], E[2]), cm(X[j+1], X[j-1], E[2]), cm(Y[j], Y[j-2], E[16]), cm(Y[j+1], Y[j-1], E[16]))
    for j in range(4): pack(j, X[2*j], X[2*j+1], True)
    flush(0)
    par(*[cm(X[j], X[j], E[128]) for j in range(4)]); par(*[cm(X[j], X[j], E[128]) for j in range(4, 8)])
    for j in range(4): pack(j, Y[2*j], Y[2*j+1], False)
    flush(6)
    a("s_waitcnt vmcnt(0)"); a("s_barrier"); k.drained()
    k.stamp("b0_arr")
    bar_signal(k, 0)
    for j in range(4): pack(j, X[2*j], X[2*j+1], True)
    flush(1)
    par(cm(Y[0], Y[6], E[16]), cm(Y[1], Y[7], E[16]), cm(X[1], X[0], E[256]), cm(X[3], X[2], E[256]))
    par(cm(X[5], X[4], E[256]), cm(X[7], X[6], E[256]), cm(X[0], X[0], E[128]), cm(X[2], X[2], E[128]))
    par(cm(X[4], X[4], E[128]), cm(X[6], X[6], E[128]), cm(Y[2], Y[0], E[16]), cm(Y[3], Y[1], E[16]))
    pack(0, X[0], X[2], True); pack(1, X[4], X[6], True); pack(2, X[1], X[3], True); pack(3, X[5], X[7], True)
    flush(2)
    par(cm(X[0], X[0], E[256]), cm(X[4], X[4], E[256]), cm(X[1], X[1], E[256]), cm(X[5], X[5], E[256]))
    par(cm(Y[4], Y[2], E[16]), cm(Y[5], Y[3], E[16]))
    pack(0, X[0], X[4], True); pack(1, X[1], X[5], True)
    par(cm(X[0], X[0], E[256]), cm(X[4], X[4], E[256]), cm(X[1], X[1], E[256]), cm(X[5], X[5], E[256]))
    par(cm(Y[6], Y[4], E[16]), cm(Y[7], Y[5], E[16]))
    pack(2, X[0], X[4], True); pack(3, X[1], X[5], True)
    flush(3)
    par(cm(X[0], X[0], E[256]), cm(X[1], X[1], E[256]), cm(E[2], E[256], E[256]))
    for j in range(4): pack(j, Y[2*j], Y[2*j+1], False)
    flush(7)
    par(cm(X[2], X[0], E[256]), cm(X[3], X[1], E[256]), cm(X[4], X[0], E[2]), cm(X[5], X[1], E[2]))
    par(cm(X[6], X[2], E[2]), cm(X[7], X[3], E[2]), cm(Y[0], X[4], E[2]))
    for j in range(4): pack(j, X[2*j], X[2*j+1], True)
    flush(4)
    pack(0, Y[0], Y[0], True)
    b = sb[0]; a(f"ds_write_b32 v54, v{SR[b]} offset:80"); a(f"ds_write_b32 v54, v{SI[b]} offset:{20480+80}")
    a(f"v_and_b32 v55, 1, v0"); a(f"v_mul_u32_u24 v55, {TS}, v55"); a(f"v_add_u32 v55, {TB + 6140 + 4*47}, v55"); a("ds_write_b32 v55, v56")
    a("v_lshrrev_b32 v55, 1, v3"); a("v_mul_u32_u24 v55, 4160, v55"); a("v_and_b32 v53, 1, v0"); a("v_lshl_add_u32 v55, v53, 4, v55"); a("ds_write_b128 v55, v[56:59]")
    a(f"s_and_b32 s25, s{W}, 1")
    a("v_lshrrev_b32 v54, 2, v1"); a("v_mul_u32_u24 v54, 160, v54"); a("v_and_b32 v55, 3, v0"); a("v_lshl_add_u32 v54, v55, 3, v54"); a("v_add_u32 v54, s27, v54")
    a("s_lshl_b32 s28, s25, 6"); a("v_add_u32 v55, s28, v54")
    a("v_and_b32 v24, 7, v3"); a("v_lshrrev_b32 v25, 3, v3"); a("v_lshl_add_u32 v24, v25, 7, v24")
    a("v_lshlrev_b32 v26, 7, v3"); a("v_add_u32 v26, 1024, v26")
    a("s_cmp_eq_u32 s25, 0"); a("s_cselect_b64 vcc, -1, 0"); a("v_cndmask_b32 v24, v26, v24, vcc")
    a("s_cselect_b64 s[60:61], 1, 0"); a("v_cndmask_b32 v15, 0, v15, s[60:61]")
    a("v_lshrrev_b32 v25, 2, v3"); a("v_lshlrev_b32 v25, 7, v25"); a("v_and_b32 v26, 3, v3"); a("v_lshl_add_u32 v25, v26, 1, v25"); a("v_add_u32 v25, 256, v25")
    a("v_lshrrev_b32 v26, 1, v3"); a("v_lshlrev_b32 v26, 7, v26"); a("v_and_b32 v27, 1, v3"); a("v_lshl_add_u32 v26, v27, 2, v26")
    a("v_cmp_gt_u32 vcc, 8, v3"); a("v_cndmask_b32 v25, v26, v25, vcc")
    a(f"s_mul_i32 s28, s26, {TS}"); a(f"s_add_u32 s28, s28, {TB}")
    for r in (24, 25):
        a(f"v_lshl_add_u32 v{r}, v4, 5, v{r}"); a(f"v_lshrrev_b32 v26, 6, v{r}"); a(f"v_lshl_add_u32 v{r}, v{r}, 1, s28"); a(f"v_lshl_add_u32 v{r}, v26, 2, v{r}")
    a("v_add_f32 v14, v14, v14")
    k.stamp("st1")
    a("s_waitcnt lgkmcnt(0)"); a("s_barrier")
    a(f"s_cmp_eq_u32 s{W}, 0"); a("s_cbranch_scc0 L_p0m")
    a("v_lshlrev_b32 v9, 2, v1"); a("buffer_load_dword v8, v9, s[12:15], 0 offen sc1")
    a.label("L_p0m")
    FY, FX0, FX1 = 128, 192, 224
    def frag(dst, vb, s_, col):
        o = (s_ // 4) * 20480 + (s_ % 4) * 32 * 160 + col
        a(f"ds_read_b64_tr_b16 v[{dst}:{dst+1}], v{vb} offset:{o}"); a(f"ds_read_b64_tr_b16 v[{dst+2}:{dst+3}], v{vb} offset:{o + 16*160}")
    def mm(s_):
        c0 = "0" if s_ == 0 else "v[28:31]"; c1 = "0" if s_ == 0 else "v[16:19]"
        a(f"v_mfma_f32_16x16x32_bf16 v[28:31], v[{FY+4*s_}:{FY+4*s_+3}], v[{FX0+4*s_}:{FX0+4*s_+3}], {c0}")
        a(f"v_mfma_f32_16x16x32_bf16 v[16:19], v[{FY+4*s_}:{FY+4*s_+3}], v[{FX1+4*s_}:{FX1+4*s_+3}], {c1}")
    for s_ in range(8):
        frag(FY+4*s_, 54, s_, 96); frag(FX0+4*s_, 55, s_, 0); frag(FX1+4*s_, 55, s_, 32)
        if s_ >= 2: a("s_waitcnt lgkmcnt(12)"); mm(s_ - 2)
    a("s_waitcnt lgkmcnt(6)"); mm(6); a("s_waitcnt lgkmcnt(0)"); mm(7)
    def twrite(acc, addr, skip):
        for i in range(4):
            if skip and i == 0: a(f"v_fma_f32 v{acc}, v{acc}, v14, v15")
            else: a(f"v_mul_f32 v{acc+i}, v{acc+i}, v14")
        a(f"v_cvt_pk_bf16_f32 v{acc}, v{acc}, v{acc+1}"); a(f"v_cvt_pk_bf16_f32 v{acc+2}, v{acc+2}, v{acc+3}")
        a(f"ds_write_b16 v{addr}, v{acc}"); a(f"ds_write_b16_d16_hi v{addr}, v{acc} offset:16")
        a(f"ds_write_b16 v{addr}, v{acc+2} offset:32"); a(f"ds_write_b16_d16_hi v{addr}, v{acc+2} offset:48")
    twrite(28, 24, True)
    a("s_cmp_eq_u32 s25, 0"); a("s_cbranch_scc0 L_p0n")
    twrite(16, 25, False)
    a.label("L_p0n")
    k.stamp("st2", 2)
    a("s_waitcnt lgkmcnt(0)"); a("s_barrier")
    for c in range(2):
        for j in range(11): a(f"ds_read_u16 v{16+12*c+j}, v{GA+j} offset:{TS*c}")
    a(f"s_cmp_eq_u32 s{W}, 0"); a("s_cbranch_scc0 L_regx")
    a("s_mov_b32 s23, 0")
    a.label("L_reg")
    a("s_waitcnt vmcnt(0)")
    a("v_bcnt_u32_b32 v12, v8, 0")
    for m in ["row_shr:1", "row_shr:2", "row_shr:4", "row_shr:8"]: a(f"v_add_u32_dpp v12, v12, v12 {m} row_mask:0xf bank_mask:0xf bound_ctrl:1")
    a("v_add_u32_dpp v12, v12, v12 row_bcast:15 row_mask:0xa bank_mask:0xf"); a("v_add_u32_dpp v12, v12, v12 row_bcast:31 row_mask:0xc bank_mask:0xf")
    a("v_readlane_b32 s28, v12, 63"); a("s_cmp_eq_u32 s28, 256"); a("s_cbranch_scc1 L_regq")
    a("s_sleep 8")
    a("buffer_load_dword v8, v9, s[12:15], 0 offen sc1")
    a("s_add_u32 s23, s23, 1"); a(f"s_cmp_gt_u32 s23, {SPIN}"); a("s_cbranch_scc0 L_reg")
    a("s_waitcnt vmcnt(0)")
    a.label("L_regq")
    a("v_cmp_ne_u32 vcc, 0, v8"); a("s_mov_b64 s[28:29], vcc")
    a("v_lshlrev_b32 v12, 3, v1"); a("v_lshrrev_b64 v[10:11], v12, s[28:29]"); a("v_and_b32 v10, 0xff, v10")
    a("v_cmp_ne_u32 vcc, 0, v10"); a("s_nop 1"); a("s_and_b32 s36, vcc_lo, 0xff")
    a("s_lshl_b32 s28, s32, 3"); a("v_lshrrev_b32 v12, 3, v1"); a("v_add_u32 v12, s28, v12"); a("v_lshlrev_b32 v12, 2, v12")
    a("ds_bpermute_b32 v13, v12, v8"); a("v_and_b32 v12, 7, v1"); a("v_lshlrev_b32 v12, 2, v12"); a("s_waitcnt lgkmcnt(0)")
    a("v_lshrrev_b32 v13, v12, v13"); a("v_and_b32 v13, 15, v13")
    a("v_cmp_ne_u32 vcc, 0, v13"); a("s_nop 1"); a("s_ff1_i32_b64 s28, vcc"); a("s_and_b32 s28, s28, 63")
    a("s_nop 3"); a("v_readlane_b32 s29, v13, s28"); a("s_nop 1"); a("s_ff1_i32_b32 s29, s29"); a("s_lshl_b32 s28, s28, 2"); a("s_add_u32 s28, s28, s29")
    a("s_cmp_eq_u32 s28, s2"); a("s_cselect_b32 s33, 1, 0")
    a("s_mov_b32 s28, 0x00204081"); a("v_mul_lo_u32 v13, v13, s28"); a(f"v_and_b32 v{MEMB}, 0x01010101, v13")
    a.label("L_regx")
    k.stamp("reg", 2)
    bar_leader(k, 0)
    a("v_lshlrev_b32 v72, 4, v0")
    for c in range(2):
        a(f"s_waitcnt lgkmcnt({11 if c == 0 else 4})")
        for e in range(4):
            o = 40 + 16*c + 4*e
            for j in range(4):
                lo = 16 + 12*c + 3 - e + 2*j
                a(f"v_lshl_or_b32 v{o+j}, v{lo+1}, 16, v{lo}")
            a(f"ds_write_b128 v72, v[{o}:{o+3}] offset:{(4*c+e)*4160 + 32}")
    k.stamp("st3")
    a("s_waitcnt lgkmcnt(0)"); a("s_barrier")
    walker(k, "wk0", 1); pre()
    bar_wait(k, 0)
    k.stamp("b0_rel")

class Conv:
    UB = PA; RAWB = PA + 9216; XB = PA + 9216 + 8192; WST = PA + 9216 + 8192 + 16384
    ACC = 16; FA = [60, 124]; FB = [92, 156]; VA, VB = 9, 11
    def __init__(self, k, L): self.k = k; self.L = L
    def ra(self, b, rr, q):
        F = self.FA[b] + 4*q
        return [f"ds_read_b64_tr_b16 v[{F}:{F+1}], v{self.VA} offset:{8+512*q+64*rr}", f"ds_read_b64_tr_b16 v[{F+2}:{F+3}], v{self.VA} offset:{512*q+64*rr}"]
    def rb(self, b, rr, j):
        F = self.FB[b] + 4*j
        return [f"ds_read_b128 v[{F}:{F+3}], v{self.VB} offset:{512*j+64*(3-rr)}"]
    def pre(self):
        a = self.k.a; L = self.L; UB = self.UB
        xout = XT1 if L == 0 else XT3
        a(f"s_lshr_b32 s25, s{W}, 1"); a(f"s_and_b32 s26, s{W}, 1")
        if L == 0:
            a("v_lshrrev_b32 v5, 2, v1"); a(f"v_mul_u32_u24 v6, {RBS}, v5"); a("v_and_b32 v7, 3, v0"); a("v_lshl_add_u32 v6, v7, 4, v6")
            a(f"s_mul_i32 s28, s{W}, {64*RBS}"); a("s_lshl_b32 s27, s18, 6"); a("s_add_u32 s28, s28, s27")
            for j in range(1, 4): a(f"s_add_u32 s{28+j}, s28, {j*16*RBS}")
            a("s_mov_b32 s44, s28")
            a(f"v_mov_b32 v10, {self.RAWB}"); a(f"v_mov_b32 v11, {self.RAWB + 4096}"); a("v_cmp_eq_u32 vcc, 1, v7"); a("v_cndmask_b32 v10, v10, v11, vcc")
            a(f"v_mov_b32 v11, {UB + 512}"); a("v_cmp_eq_u32 vcc, 2, v7"); a("v_cndmask_b32 v10, v10, v11, vcc")
            a(f"v_mov_b32 v11, {UB + 4608 + 512}"); a("v_cmp_eq_u32 vcc, 3, v7"); a("v_cndmask_b32 v10, v10, v11, vcc")
            a("v_lshl_add_u32 v10, v5, 4, v10"); a(f"s_lshl_b32 s27, s{W}, 10"); a("v_add_u32 v10, s27, v10")
            a("s_lshr_b32 s35, s2, 4"); a("s_lshl_b32 s35, s35, 1"); a("s_add_u32 s35, s35, s26"); a("s_mul_i32 s35, s35, 49152"); a(f"s_add_u32 s35, s35, {WF}")
            a(f"s_mul_i32 s27, s25, {22*1024}"); a("s_add_u32 s45, s35, s27"); a("s_add_u32 s45, s45, 4096")
            a(f"s_mul_i32 s46, s26, {44*1024}"); a("s_add_u32 s46, s46, s27"); a(f"s_add_u32 s46, s46, {self.WST}")
        else:
            a("v_lshrrev_b32 v6, 2, v0"); a("v_lshlrev_b32 v6, 15, v6"); a("v_and_b32 v7, 3, v0"); a("v_lshl_add_u32 v6, v7, 4, v6")
            a("s_lshl_b32 s31, s18, 7"); a(f"s_add_u32 s31, s31, {X2B}")
            a("v_lshlrev_b32 v10, 4, v0")
            for j in range(4): a(f"s_mov_b32 s{44+j}, {ST3 + 4096*j}")
        a("v_lshlrev_b32 v7, 4, v1")
        for r in range(12, 16): a(f"v_mov_b32 v{r}, 0")
        a("v_lshrrev_b32 v9, 5, v1"); a("v_mul_u32_u24 v9, 4608, v9"); a("v_and_b32 v11, 31, v0"); a("v_lshl_add_u32 v9, v11, 4, v9")
        a(f"ds_write_b128 v9, v[12:15] offset:{UB}")
        a("v_lshrrev_b32 v9, 2, v3"); a("v_mul_u32_u24 v9, 4160, v9"); a("v_and_b32 v11, 3, v0"); a("v_lshl_add_u32 v9, v11, 3, v9")
        a("v_lshlrev_b32 v11, 4, v4"); a("v_sub_u32 v9, v9, v11")
        a("s_mul_i32 s27, s25, 16640"); a("s_lshl_b32 s28, s26, 8"); a("s_add_u32 s27, s27, s28"); a("s_add_u32 s27, s27, 56")
        a("v_add_u32 v9, s27, v9")
        a("v_lshl_add_u32 v11, v3, 5, v11")
        a("s_mul_i32 s27, s25, 4608"); a("s_sub_u32 s27, s27, s28"); a(f"s_add_u32 s27, s27, {UB + 480 - 192}")
        a("v_add_u32 v11, s27, v11")
        for q in range(8):
            for t in self.ra(0, 0, q): a(t)
        a(f"s_lshl_b32 s27, s{W}, 11"); a(f"s_add_u32 s27, s27, {self.RAWB}"); a("v_lshlrev_b32 v8, 5, v3"); a("v_lshl_add_u32 v8, v4, 3, v8"); a("v_add_u32 v8, s27, v8")
        a(f"s_lshl_b32 s27, s{W}, 12"); a(f"s_add_u32 s27, s27, {self.XB}"); a("v_add_u32 v48, s27, v7"); a("v_xor_b32 v49, 0x1000, v48") if self.XB % 8192 == 0 else (
            a(f"s_xor_b32 s27, s{W}, 1"), a("s_lshl_b32 s27, s27, 12"), a(f"s_add_u32 s27, s27, {self.XB}"), a("v_add_u32 v49, s27, v7"))
        a("v_and_b32 v50, 1, v4"); a("v_lshlrev_b32 v50, 18, v50"); a("v_lshrrev_b32 v51, 3, v3"); a("v_lshl_add_u32 v50, v51, 17, v50")
        a("v_and_b32 v51, 7, v3"); a("v_lshl_add_u32 v50, v51, 5, v50"); a("v_lshrrev_b32 v51, 1, v4"); a("v_lshl_add_u32 v50, v51, 4, v50")
        a("s_lshl_b32 s34, s18, 9"); a("s_lshl_b32 s27, s25, 8"); a("s_add_u32 s34, s34, s27"); a("s_lshl_b32 s27, s26, 20"); a("s_add_u32 s34, s34, s27")
        a(f"s_add_u32 s34, s34, {xout}"); a(f"s_add_u32 s43, s34, {1 << 19}")
        a(f"v_mov_b32 v12, {f32(1/512)}"); a(f"v_mov_b32 v14, {f32(1e-5)}")
    def run(self):
        k = self.k; a = k.a; L = self.L; UB, RAWB = self.UB, self.RAWB; ACC, FA, FB = self.ACC, self.FA, self.FB
        S1, S2, XA = 16, 24, 32
        wq = [0]
        def wq_load(n=1):
            if L != 0: return
            for _ in range(n):
                i = wq[0]
                if i >= 22: return
                if i % 4 == 0: a(f"s_add_u32 m0, s46, {1024*i}")
                k.v(f"buffer_load_dwordx4 v7, s[4:7], s45 offen offset:{1024*(i%4)} lds", "wq")
                if i % 4 == 3: a("s_add_u32 s45, s45, 4096")
                wq[0] += 1
        if L == 0:
            for j in range(4): k.v(f"buffer_load_dwordx4 v[{16+4*j}:{19+4*j}], v6, s[4:7], s{44 if j == 0 else 28+j} offen sc1", f"r{j}")
            for j in range(4):
                k.wait(f"r{j}"); a(f"ds_write_b128 v10, v[{16+4*j}:{19+4*j}] offset:{256*j}")
            for i in range(4): k.v(f"buffer_load_dwordx4 a[{4*i}:{4*i+3}], v7, s[4:7], s35 offen offset:{1024*i}", "wq")
        else:
            for j in range(4): k.v(f"buffer_load_dwordx4 v[{S1+4*j}:{S1+4*j+3}], v10, s[4:7], s{44+j} offen sc1", "st")
            k.v(f"buffer_load_dwordx4 v[{XA}:{XA+3}], v6, s[4:7], s31 offen sc1", "x"); k.v(f"buffer_load_dwordx4 v[{XA+4}:{XA+7}], v6, s[4:7], s31 offen offset:64 sc1", "x")
            k.wait("st")
            k.stamp(f"c{L}_st", 2)
            for i in range(0, 8, 2): a(f"v_pk_mul_f32 v[{S1+i}:{S1+i+1}], v[{S1+i}:{S1+i+1}], v[12:13] op_sel_hi:[1,0]")
            for i in range(0, 8, 2): a(f"v_pk_fma_f32 v[{S2+i}:{S2+i+1}], v[{S2+i}:{S2+i+1}], v[12:13], v[14:15] op_sel_hi:[1,0,0]")
            for i in range(0, 8, 2): a(f"v_pk_fma_f32 v[{S2+i}:{S2+i+1}], v[{S1+i}:{S1+i+1}], v[{S1+i}:{S1+i+1}], v[{S2+i}:{S2+i+1}] neg_lo:[1,0,0] neg_hi:[1,0,0]")
            for i in range(8): a(f"v_max_f32 v{S2+i}, v14, v{S2+i}")
            for i in range(8): a(f"v_rsq_f32 v{S2+i}, v{S2+i}")
            for i in range(0, 8, 2): a(f"v_pk_mul_f32 v[{S1+i}:{S1+i+1}], v[{S1+i}:{S1+i+1}], v[{S2+i}:{S2+i+1}] neg_lo:[1,0] neg_hi:[1,0]")
            k.wait("x")
            for c in range(2):
                x = 40
                for j in range(4): unpack(a, x+2*j, x+2*j+1, XA+4*c+j)
                for j in range(4): a(f"v_pk_fma_f32 v[{x+2*j}:{x+2*j+1}], v[{x+2*j}:{x+2*j+1}], v[{S2+2*j}:{S2+2*j+1}], v[{S1+2*j}:{S1+2*j+1}]")
                for j in range(4): a(f"v_cvt_pk_bf16_f32 v{52+4*c+j}, v{x+2*j}, v{x+2*j+1}")
                a(f"ds_write_b128 v10, v[{52+4*c}:{55+4*c}] offset:{UB + 4608*c + 512}")
            for c in range(2): a(f"ds_write_b128 v10, v[{XA+4*c}:{XA+4*c+3}] offset:{RAWB + 4096*c}")
        def reads(rr):
            b = rr % 2; Lr = self.ra(b, rr, 0)
            for j in range(8): Lr += self.rb(b, rr, j)
            for q in range(1, 8): Lr += self.ra(b, rr, q)
            return Lr
        def mf(b, q, jt, first=False):
            d = ACC + 4*jt
            return f"v_mfma_f32_16x16x32_bf16 v[{d}:{d+3}], v[{FA[b]+4*q}:{FA[b]+4*q+3}], v[{FB[b]+4*(jt-q)}:{FB[b]+4*(jt-q)+3}], " + ("0" if first else f"v[{d}:{d+3}]")
        k.stamp(f"c{L}_u", 2)
        a("s_waitcnt lgkmcnt(0)"); a("s_barrier")
        for j in range(8):
            for t in self.rb(0, 0, j): a(t)
        nm = 0; ev = OPT.get("wq_every", 5)
        for rr in range(3):
            b = rr % 2; nxt = reads(rr+1); kk = 0
            for q in range(8):
                for jt in range(q, 8):
                    if rr == 0 and q == 0: a("s_waitcnt lgkmcnt(7)")
                    elif q == 0 and jt == 0: a("s_waitcnt lgkmcnt(0)")
                    a(mf(b, q, jt, rr == 0 and q == 0))
                    if kk < len(nxt): a(nxt[kk])
                    kk += 1; nm += 1
                    if nm % ev == 0: wq_load()
        wq_load(48)
        RAW = 60; XR = 68; PT = 84; T8 = list(range(100, 108))
        vm0 = list(k.vm)
        a("s_waitcnt lgkmcnt(0)")
        a("s_cmp_eq_u32 s26, 0"); a(f"s_cbranch_scc0 L_c{L}h1")
        for rh in range(2):
            k.vm = list(vm0)
            if rh == 1: a.label(f"L_c{L}h1"); a.force_stub()
            own = list(range(4*rh, 4*rh+4)); send = list(range(4-4*rh, 8-4*rh))
            seq = [(q, jt) for q in range(8) for jt in send if q <= jt] + [(q, jt) for q in range(8) for jt in own if q <= jt]
            done_at = {jt: max(i for i, (q, j) in enumerate(seq) if j == jt) for jt in send}
            side = [f"ds_read_b64 v[{RAW+2*i}:{RAW+2*i+1}], v8 offset:{512*i}" for i in range(4)]
            up = []
            for i in range(8): up += [f"v_lshlrev_b32 v{XR+2*i}, 16, v{RAW+i}", f"v_and_b32 v{XR+2*i+1}, 0xffff0000, v{RAW+i}"]
            for i, (q, jt) in enumerate(seq):
                a(mf(1, q, jt))
                if i < 4: a(side[i])
                if i == 7: a("s_waitcnt lgkmcnt(0)")
                if 8 <= i < 24: a(up[i-8])
                for n_, js in enumerate(send):
                    if i == done_at[js] + 8: a(f"ds_write_b128 v48, v[{ACC+4*js}:{ACC+4*js+3}] offset:{1024*n_}")
            k.stamp(f"c{L}_mm", 2)
            a("s_waitcnt lgkmcnt(0)"); a("s_barrier")
            for i in range(4): a(f"ds_read_b128 v[{PT+4*i}:{PT+4*i+3}], v49 offset:{1024*i}")
            O = ACC + 16*rh
            for i in range(8): a(f"v_pk_add_f32 v[{O+2*i}:{O+2*i+1}], v[{O+2*i}:{O+2*i+1}], v[{XR+2*i}:{XR+2*i+1}]")
            for p in range(2):
                a(f"s_waitcnt lgkmcnt({2 - 2*p})")
                for i in range(4*p, 4*p+4): a(f"v_pk_add_f32 v[{O+2*i}:{O+2*i+1}], v[{O+2*i}:{O+2*i+1}], v[{PT+2*i}:{PT+2*i+1}]")
                for i in range(4*p, 4*p+4): a(f"v_cvt_pk_bf16_f32 v{T8[i]}, v{O+2*i}, v{O+2*i+1}")
                o = T8[4*p]
                a(f"v_permlane16_swap_b32 v{o}, v{o+2}"); a(f"v_permlane16_swap_b32 v{o+1}, v{o+3}")
                k.v(f"buffer_store_dwordx4 v[{o}:{o+3}], v50, s[4:7], s{34 if p == 0 else 43} offen sc1")
            if rh == 0: a(f"s_branch L_c{L}e")
        a.label(f"L_c{L}e")

def sm_minmax(a, acc, t):
    mx, mn = t, t + 2
    a(f"v_max3_f32 v{mx}, v{acc}, v{acc+1}, v{acc+2}"); a(f"v_min3_f32 v{mn}, v{acc}, v{acc+1}, v{acc+2}")
    for i in range(3, 15, 2):
        a(f"v_max3_f32 v{mx}, v{mx}, v{acc+i}, v{acc+i+1}"); a(f"v_min3_f32 v{mn}, v{mn}, v{acc+i}, v{acc+i+1}")
    a(f"v_max_f32 v{mx}, v{mx}, v{acc+15}"); a(f"v_min_f32 v{mn}, v{mn}, v{acc+15}")
def sm_exp(a, acc, P, M, c, t, hook=lambda: None):
    mx, mn = t, t + 2
    a(f"v_mul_f32 v{mx}, v{mx}, v{c}"); a(f"v_mul_f32 v{mn}, v{mn}, v{c}")
    for i in range(0, 16, 2):
        a(f"v_pk_fma_f32 v[{P+i}:{P+i+1}], v[{acc+i}:{acc+i+1}], v[{c}:{c+1}], v[{mx}:{mx+1}] op_sel_hi:[1,0,0] neg_lo:[0,0,1] neg_hi:[0,0,1]")
        a(f"v_pk_fma_f32 v[{M+i}:{M+i+1}], v[{acc+i}:{acc+i+1}], v[{c}:{c+1}], v[{mn}:{mn+1}] op_sel_hi:[1,0,0] neg_lo:[1,0,0] neg_hi:[1,0,0]")
    for i in range(16):
        a(f"v_exp_f32 v{P+i}, v{P+i}")
        if i % 4 == 3: hook()
    for i in range(16):
        a(f"v_exp_f32 v{M+i}, v{M+i}")
        if i % 4 == 3: hook()
def sm_norm(a, P, M, t):
    sp, sm = t, t + 2
    a(f"v_pk_add_f32 v[{sp}:{sp+1}], v[{P}:{P+1}], v[{P+2}:{P+3}]"); a(f"v_pk_add_f32 v[{sm}:{sm+1}], v[{M}:{M+1}], v[{M+2}:{M+3}]")
    for i in range(4, 16, 2):
        a(f"v_pk_add_f32 v[{sp}:{sp+1}], v[{sp}:{sp+1}], v[{P+i}:{P+i+1}]"); a(f"v_pk_add_f32 v[{sm}:{sm+1}], v[{sm}:{sm+1}], v[{M+i}:{M+i+1}]")
    a(f"v_add_f32 v{sp}, v{sp}, v{sp+1}"); a(f"v_add_f32 v{sm}, v{sm}, v{sm+1}")
    a(f"v_rcp_f32 v{sp}, v{sp}"); a(f"v_rcp_f32 v{sm}, v{sm}")
    for i in range(0, 16, 2):
        a(f"v_pk_mul_f32 v[{P+i}:{P+i+1}], v[{P+i}:{P+i+1}], v[{sp}:{sp+1}] op_sel_hi:[1,0]")
        a(f"v_pk_mul_f32 v[{M+i}:{M+i+1}], v[{M+i}:{M+i+1}], v[{sm}:{sm+1}] op_sel_hi:[1,0]")
def transpose4(a, R):
    for i in range(4):
        a(f"v_permlane32_swap_b32 v{R+i}, v{R+8+i}"); a(f"v_permlane32_swap_b32 v{R+4+i}, v{R+12+i}")
    for i in range(4):
        a(f"v_permlane16_swap_b32 v{R+i}, v{R+4+i}"); a(f"v_permlane16_swap_b32 v{R+8+i}, v{R+12+i}")

class Qkv:
    NS = 6; SLOT = 16384; RB = PA; IMG = PA + 6 * 16384; RS = 224; STAT = PA + 6 * 16384 + 128 * 224
    def __init__(self, k, L): self.k = k; self.L = L; assert self.STAT + 512 <= 163840 and self.RB % 256 == 0
    def pre(self):
        a = self.k.a; L = self.L; RB, SLOT = self.RB, self.SLOT
        xin = [XT1, XT3][L]
        a(f"s_and_b32 s20, s{W}, 1"); a(f"s_lshr_b32 s21, s{W}, 1")
        if L == 0:
            a(f"s_mul_i32 s27, s20, {44*1024}"); a(f"s_add_u32 s27, s27, {Conv.WST}"); a("v_lshl_add_u32 v5, v1, 4, s27")
            for i in range(44): a(f"ds_read_b128 a[{16+4*i}:{19+4*i}], v5 offset:{1024*i}")
            a("s_waitcnt lgkmcnt(0)")
            a("s_cmp_eq_u32 s21, 1"); a("s_cbranch_scc0 L_cs")
            for r in range(12, 16): a(f"v_mov_b32 v{r}, 0x3f803f80")
            for s_ in range(16):
                for j in range(3): a(f"v_mfma_f32_16x16x32_bf16 v[{16+4*j}:{19+4*j}], a[{(3*s_+j)*4}:{(3*s_+j)*4+3}], v[12:15], " + ("0" if s_ == 0 else f"v[{16+4*j}:{19+4*j}]"))
            a("s_mul_i32 s27, s20, 192"); a(f"s_add_u32 s27, s27, {CSB}"); a("v_lshl_add_u32 v5, v4, 4, s27")
            for j in range(3): a(f"ds_write_b128 v5, v[{16+4*j}:{19+4*j}] offset:{64*j}")
            a.label("L_cs")
            a("s_bfe_u32 s35, s2, 0x20003"); a("s_lshl_b32 s35, s35, 2"); a(f"s_add_u32 s35, s35, s{W}"); a("s_lshl_b32 s35, s35, 15"); a(f"s_add_u32 s35, s35, {WO}")
            if OPT.get("rot", 1): a("s_bfe_u32 s42, s2, 0x20005"); a("s_lshl_b32 s42, s42, 11")
            else: a("s_mov_b32 s42, 0")
        a("s_and_b32 s25, s2, 7"); a("s_lshl_b32 s25, s25, 1"); a("s_bfe_u32 s26, s2, 0x10003"); a("s_add_u32 s25, s25, s26")
        a("s_lshr_b32 s26, s2, 4")
        a("v_lshrrev_b32 v5, 1, v3"); a("v_xor_b32 v5, v5, v4"); a("v_lshlrev_b32 v5, 5, v5"); a("v_lshl_add_u32 v5, v4, 8, v5")
        a("v_and_b32 v6, 1, v0"); a("v_lshl_add_u32 v5, v6, 4, v5"); a("v_xor_b32 v6, 0x80, v5")
        a(f"s_lshl_b32 s28, s{W}, 12"); a("s_lshl_b32 s27, s25, 17"); a("s_add_u32 s28, s28, s27"); a(f"s_add_u32 s28, s28, {xin}")
        a(f"s_lshl_b32 s34, s{W}, 12"); a(f"s_add_u32 s34, s34, {RB}")
        a("v_lshlrev_b32 v7, 4, v1")
        a("v_lshrrev_b32 v8, 2, v1")
        a("v_and_b32 v9, 7, v8"); a(f"s_lshl_b32 s27, s{W}, 1"); a("v_xor_b32 v9, s27, v9"); a("v_lshlrev_b32 v9, 5, v9")
        a("v_lshl_add_u32 v8, v8, 8, v9"); a("v_and_b32 v9, 3, v0"); a("v_lshl_add_u32 v8, v9, 3, v8"); a(f"v_add_u32 v8, {RB}, v8")
        for t in range(1, 4): a(f"v_xor_b32 v{8+t}, {32*t}, v8")
        for t in range(4): a(f"v_add_u32 v{12+t}, {3*SLOT}, v{8+t}")
        a(f"s_lshl_b32 s27, s{W}, 7"); a(f"s_add_u32 s27, s27, {self.STAT}"); a("v_lshl_add_u32 v184, v3, 2, s27")
        a("s_lshl_b32 s27, s20, 5"); a("v_xor_b32 v185, s27, v1"); a("s_lshl_b32 s27, s21, 6"); a("v_add_u32 v185, s27, v185")
        a(f"v_lshlrev_b32 v186, 2, v185"); a(f"v_add_u32 v186, {self.STAT}, v186")
        a("s_mul_i32 s27, s20, 192"); a(f"s_add_u32 s27, s27, {CSB}"); a("v_mov_b32 v187, s27")
        a("s_mov_b32 s56, 0xcccccccc"); a("s_mov_b32 s57, s56"); a("s_mov_b32 s58, 0xaaaaaaaa"); a("s_mov_b32 s59, s58")
    def run(self):
        k = self.k; a = k.a; L = self.L; NS, SLOT, IMG, RS = self.NS, self.SLOT, self.IMG, self.RS
        kv = KV[L]; phiq = PHIQ[L]
        def dma1(c, i):
            if i == 0: a(f"s_add_u32 m0, s34, {(c % NS) * SLOT}")
            k.v(f"buffer_load_dwordx4 v{5 + i % 2}, s[4:7], s28 offen offset:{1024*i} sc1 lds", f"x{c}")
            if c < 7 and i == 3: a(f"s_add_u32 s28, s28, 16384")
        UP = OPT.get("q_up", 2)
        for c in range(UP):
            for i in range(4): dma1(c, i)
        wo = [0]
        def wo_load(n=1):
            if L != 0: return
            for _ in range(n):
                i = wo[0]
                if i >= 32: return
                p, w_, b_ = i // 8, (i // 2) % 4, i % 2
                if i % 2 == 0: a(f"s_xor_b32 s43, s42, {p*2048}"); a("s_add_u32 s43, s43, s35"); (a(f"s_add_u32 s43, s43, {w_*8192}") if w_ else None)
                k.v(f"buffer_load_dwordx4 {wo_reg(i)}, v7, s[4:7], s43 offen offset:{1024*b_}", "wo")
                wo[0] += 1
        ACC = [16, 32, 48]; AS2 = 64; FX = [72, 88]; CS = 136
        def reads(s_):
            c = s_ // 2; sl = c % NS; b = s_ % 2; base = 8 if sl < 3 else 12; o = (sl % 3) * SLOT + (s_ % 2) * 8192
            Lr = []
            for t in range(4):
                Lr.append(f"ds_read_b64_tr_b16 v[{FX[b]+4*t}:{FX[b]+4*t+1}], v{base+t} offset:{o}")
                Lr.append(f"ds_read_b64_tr_b16 v[{FX[b]+4*t+2}:{FX[b]+4*t+3}], v{base+t} offset:{o+4096}")
            return Lr
        sched = {}
        nxtc = UP
        FAST = OPT.get("q_fast", 0)
        for s_ in range(16):
            if nxtc < 8 and (FAST or nxtc <= s_ // 2 + 3) and (nxtc < NS or s_ >= 2*(nxtc - NS) + 2): sched[s_] = nxtc; nxtc += 1
        sync = {1: 1, 3: 2, 5: 4, 9: 7} if FAST == 1 else ({1: 1, 3: 2, 5: 3, 7: 5, 11: 7} if FAST == 2 else {2*c+1: c+1 for c in range(7)})
        k.wait("x0"); a("s_barrier")
        k.stamp(f"q{L}_x0", 2)
        for t in reads(0): a(t)
        for s_ in range(16):
            b = s_ % 2; c = s_ // 2; first = s_ == 0
            nxt = reads(s_+1) if s_ < 15 else [f"ds_read_b128 v[{CS+4*i}:{CS+4*i+3}], v187 offset:{16*i}" for i in range(12)]
            M = []
            for t in range(4):
                x = f"v[{FX[b]+4*t}:{FX[b]+4*t+3}]"
                if t < 2: M.append(f"v_mfma_f32_16x16x32_bf16 v[{AS2+4*t}:{AS2+4*t+3}], {x}, {x}, " + ("0" if first else f"v[{AS2+4*t}:{AS2+4*t+3}]"))
                for j in range(3):
                    d = ACC[j] + 4*t
                    M.append(f"v_mfma_f32_16x16x32_bf16 v[{d}:{d+3}], a[{(3*s_+j)*4}:{(3*s_+j)*4+3}], {x}, " + ("0" if first else f"v[{d}:{d+3}]"))
            if not first: a("s_waitcnt lgkmcnt(0)")
            rd0 = 1 if s_ in sync else 0
            for i, m in enumerate(M):
                if first and i in (0, 4, 8, 11): a(f"s_waitcnt lgkmcnt({ {0: 6, 4: 4+4, 8: 2+8, 11: 8}[i] })")
                a(m)
                if rd0 and i == rd0:
                    k.wait(f"x{sync[s_]}"); a("s_barrier")
                if 0 <= i - rd0 < len(nxt): a(nxt[i - rd0])
                if s_ in sched and i in (2, 5, 8, 11): dma1(sched[s_], (i - 2) // 3)
                if s_ >= OPT.get("wo_from", 9) and i in (5, 12): wo_load()
        k.stamp(f"q{L}_mm")
        for u in range(2):
            r = AS2 + 4*u
            a(f"v_cndmask_b32 v{r}, v{r}, v{r+2}, s[56:57]"); a(f"v_cndmask_b32 v{r+1}, v{r+1}, v{r+3}, s[56:57]"); a(f"v_cndmask_b32 v{r}, v{r}, v{r+1}, s[58:59]")
        a("s_mov_b32 exec_lo, 0x00f0000f"); a("s_mov_b32 exec_hi, 0xf0000f00")
        a(f"ds_write_b32 v184, v{AS2}"); a(f"ds_write_b32 v184, v{AS2+4} offset:64")
        a("s_mov_b64 exec, -1")
        transpose4(a, ACC[0]); wo_load(2)
        a("s_waitcnt lgkmcnt(0)"); a("s_barrier")
        MU, S2, R, C, TK, TQ = 64, 66, 66, 76, 68, 72
        a(f"ds_read_b32 v{S2}, v186")
        a(f"v_mul_f32 v{MU}, {f32(1/512)}, v{ACC[0]}")
        transpose4(a, ACC[1]); wo_load(2)
        def centre(j):
            for i in range(0, 16, 2): a(f"v_pk_fma_f32 v[{ACC[j]+i}:{ACC[j]+i+1}], v[{CS+16*j+i}:{CS+16*j+i+1}], v[{MU}:{MU+1}], v[{ACC[j]+i}:{ACC[j]+i+1}] op_sel_hi:[1,0,1] neg_lo:[0,1,0] neg_hi:[0,1,0]")
        centre(1)
        a("s_waitcnt lgkmcnt(0)")
        a(f"v_mov_b32 v{C}, {f32(1e-5)}"); a(f"v_fmac_f32 v{C}, {f32(1/512)}, v{S2}"); a(f"v_fma_f32 v{S2}, -v{MU}, v{MU}, v{C}"); a(f"v_max_f32 v{S2}, {f32(1e-5)}, v{S2}")
        a(f"v_rsq_f32 v{R}, v{S2}")
        sm_minmax(a, ACC[1], TK)
        a(f"v_mul_f32 v{C}, {hex(LOG2E)}, v{R}")
        P, M_ = 80, 96; O = 112; FV, FP = 136, 152
        EPI = OPT.get("epi", 0)
        def k_part():
            sm_exp(a, ACC[1], P, M_, C, TK, lambda: wo_load())
            sm_norm(a, P, M_, TK); wo_load(2)
            a(f"v_mul_u32_u24 v5, {RS}, v185"); a("s_lshl_b32 s27, s20, 6"); a(f"s_add_u32 s27, s27, {IMG}"); a("v_add_u32 v8, s27, v5")
            a("s_lshl_b32 s27, s20, 5"); a(f"s_add_u32 s27, s27, {IMG + 128}"); a("v_add_u32 v9, s27, v5")
            for h in range(4):
                src = P if h < 2 else M_ - 16
                for i in range(4): a(f"v_cvt_pk_bf16_f32 v{ACC[1]+4*h+i}, v{src+8*h+2*i}, v{src+8*h+2*i+1}")
                a(f"ds_write_b128 v8, v[{ACC[1]+4*h}:{ACC[1]+4*h+3}] offset:{16*h}")
            wo_load(2); transpose4(a, ACC[2]); centre(2)
            for i in range(8): a(f"v_pk_mul_f32 v[{ACC[2]+2*i}:{ACC[2]+2*i+1}], v[{ACC[2]+2*i}:{ACC[2]+2*i+1}], v[{R}:{R+1}] op_sel_hi:[1,0]")
            for h in range(2):
                for i in range(4): a(f"v_cvt_pk_bf16_f32 v{128+4*h+i}, v{ACC[2]+8*h+2*i}, v{ACC[2]+8*h+2*i+1}")
                a(f"ds_write_b128 v9, v[{128+4*h}:{131+4*h}] offset:{16*h}")
            wo_load(32)
            a("v_lshrrev_b32 v5, 2, v1"); a(f"v_mul_u32_u24 v5, {RS}, v5"); a("v_and_b32 v10, 3, v0"); a("v_lshl_add_u32 v5, v10, 3, v5")
            a("v_add_u32 v8, s27, v5")
            a("s_lshl_b32 s27, s20, 6"); a("s_lshl_b32 s28, s21, 5"); a("s_add_u32 s27, s27, s28"); a(f"s_add_u32 s27, s27, {IMG}"); a("v_add_u32 v9, s27, v5")
            for r in range(12, 16): a(f"v_mov_b32 v{r}, 0x3f803f80")
            a("s_lshl_b32 s30, s26, 1"); a("s_add_u32 s30, s30, s20"); a("s_lshl_b32 s30, s30, 1"); a("s_add_u32 s30, s30, s21")
            a("s_lshl_b32 s31, s30, 7"); a(f"s_add_u32 s31, s31, {kv + 65536}"); a("s_lshl_b32 s30, s30, 10"); a(f"s_add_u32 s30, s30, {kv}")
            a("v_lshlrev_b32 v10, 2, v3"); a("v_lshl_add_u32 v11, v4, 8, v10")
        def kv_reads():
            k.stamp(f"q{L}_img", 2)
            a("s_waitcnt lgkmcnt(0)"); a("s_barrier")
            for ks in range(4):
                for hf in range(2):
                    a(f"ds_read_b64_tr_b16 v[{FV+4*ks+2*hf}:{FV+4*ks+2*hf+1}], v8 offset:{(32*ks+16*hf)*RS}")
                    a(f"ds_read_b64_tr_b16 v[{FP+4*ks+2*hf}:{FP+4*ks+2*hf+1}], v9 offset:{(32*ks+16*hf)*RS}")
        def kv_mfma():
            for ks in range(4):
                a(f"s_waitcnt lgkmcnt({12 - 4*ks})")
                a(f"v_mfma_f32_16x16x32_bf16 v[168:171], v[{FV+4*ks}:{FV+4*ks+3}], v[{FP+4*ks}:{FP+4*ks+3}], " + ("0" if ks == 0 else "v[168:171]"))
                a(f"v_mfma_f32_16x16x32_bf16 v[172:175], v[12:15], v[{FP+4*ks}:{FP+4*ks+3}], " + ("0" if ks == 0 else "v[172:175]"))
        def kv_out():
            for x_, y_ in ((168, 170), (169, 171)): a(f"v_mov_b32 v{x_+8}, v{x_}")
            for x_, y_ in ((168, 170), (169, 171)): a(f"v_mov_b32_dpp v{x_}, v{y_} row_ror:8 row_mask:0xf bank_mask:0xc")
            for x_, y_ in ((168, 170), (169, 171)): a(f"v_mov_b32_dpp v{y_}, v{x_+8} row_ror:8 row_mask:0xf bank_mask:0x3")
            for x_, y_ in ((168, 169), (170, 171)): a(f"v_mov_b32 v{x_+8}, v{x_}")
            for x_, y_ in ((168, 169), (170, 171)): a(f"v_mov_b32_dpp v{x_}, v{y_} row_ror:4 row_mask:0xf bank_mask:0xa")
            for x_, y_ in ((168, 169), (170, 171)): a(f"v_mov_b32_dpp v{y_}, v{x_+8} row_ror:12 row_mask:0xf bank_mask:0x5")
            for i in range(4): k.v(f"buffer_atomic_add_f32 v{168+i}, v11, s[4:7], s30 offen offset:{64*i}")
            a("s_mov_b64 exec, 0xffff")
            k.v("buffer_atomic_add_f32 v172, v10, s[4:7], s31 offen")
            a("s_mov_b64 exec, -1")
            k.stamp(f"q{L}_kv", 2)
        def q_exp():
            sm_minmax(a, ACC[0], TQ); sm_exp(a, ACC[0], P, M_, C, TQ)
        def q_out():
            a("v_lshrrev_b32 v2, 5, v185"); a("v_lshlrev_b32 v2, 16, v2"); a("v_and_b32 v6, 31, v185"); a("v_lshl_add_u32 v2, v6, 4, v2")
            a("s_lshl_b32 s29, s26, 1"); a("s_add_u32 s29, s29, s20"); a("s_lshl_b32 s29, s29, 11"); a("s_lshl_b32 s22, s25, 18"); a("s_add_u32 s29, s29, s22"); a(f"s_add_u32 s29, s29, {phiq}")
            for g in range(4):
                a(f"v_cvt_pk_bf16_f32 v{O+4*g}, v{P+4*g}, v{P+4*g+1}"); a(f"v_cvt_pk_bf16_f32 v{O+4*g+1}, v{P+4*g+2}, v{P+4*g+3}")
                a(f"v_cvt_pk_bf16_f32 v{O+4*g+2}, v{M_+4*g}, v{M_+4*g+1}"); a(f"v_cvt_pk_bf16_f32 v{O+4*g+3}, v{M_+4*g+2}, v{M_+4*g+3}")
                k.v(f"buffer_store_dwordx4 v[{O+4*g}:{O+4*g+3}], v2, s[4:7], s29 offen offset:{512*g} sc1")
        if EPI == 0:
            k_part(); centre(0); kv_reads(); kv_mfma(); kv_out(); q_exp(); sm_norm(a, P, M_, TQ); q_out()
        elif EPI == 1:
            centre(0); q_exp(); sm_norm(a, P, M_, TQ); q_out(); k_part(); kv_reads(); kv_mfma(); kv_out()
        elif EPI == 2:
            k_part(); centre(0); q_exp(); kv_reads(); sm_norm(a, P, M_, TQ); kv_mfma(); q_out(); kv_out()
        elif EPI == 3:
            k_part(); centre(0); sm_minmax(a, ACC[0], TQ); kv_reads(); sm_exp(a, ACC[0], P, M_, C, TQ); kv_mfma(); sm_norm(a, P, M_, TQ); kv_out(); q_out()

class Outp:
    ORS = 1040; OB = PA; RB = PA + 32 * 1040; TB = PA + 32 * 1040 + 4 * 2048; TRS = 72; ZB = PA + 32 * 1040 + 4 * 2048 + 10240; SB = PA + 32 * 1040 + 4 * 2048 + 10240 + 2048
    def __init__(self, k, L): self.k = k; self.L = L
    def pre(self):
        k = self.k; a = k.a; L = self.L; ORS = self.ORS
        xin = [XT1, XT3][L]; kv = KV[L]; phiq = PHIQ[L]
        a("s_and_b32 s25, s2, 7"); a("s_lshl_b32 s25, s25, 3"); a("s_lshr_b32 s26, s2, 5"); a("s_add_u32 s25, s25, s26")
        a("s_bfe_u32 s26, s2, 0x20003"); a("s_lshl_b32 s26, s26, 2"); a(f"s_add_u32 s26, s26, s{W}")
        a("v_lshrrev_b32 v9, 2, v1"); a("v_lshlrev_b32 v9, 8, v9"); a("v_and_b32 v10, 3, v0"); a("v_lshl_add_u32 v9, v10, 4, v9")
        a("s_lshr_b32 s30, s25, 2"); a("s_lshl_b32 s30, s30, 17"); a("s_and_b32 s31, s25, 3"); a("s_lshl_b32 s31, s31, 6"); a("s_add_u32 s30, s30, s31")
        a("s_lshl_b32 s31, s26, 13"); a("s_add_u32 s30, s30, s31"); a(f"s_add_u32 s30, s30, {xin}")
        a(f"s_add_u32 s31, s30, {16*256 - 1024}")
        a(f"s_lshl_b32 s34, s{W}, 11"); a(f"s_add_u32 s34, s34, {self.RB}"); a("s_mov_b32 m0, s34")
        k.v("buffer_load_dwordx4 v9, s[4:7], s30 offen sc1 lds", "res"); k.v("buffer_load_dwordx4 v9, s[4:7], s31 offen offset:1024 sc1 lds", "res")
        a("v_lshrrev_b32 v5, 2, v1"); a("v_lshlrev_b32 v5, 7, v5"); a("v_lshl_add_u32 v5, v10, 4, v5")
        a("s_lshr_b32 s27, s42, 10"); a("v_lshrrev_b32 v11, 3, v1"); a("v_xor_b32 v11, s27, v11")
        a("v_lshrrev_b32 v7, 2, v11"); a("v_lshlrev_b32 v7, 8, v7"); a("v_and_b32 v11, 3, v11"); a("v_lshl_add_u32 v11, v11, 4, v7"); a("v_lshl_add_u32 v11, v10, 6, v11")
        a("v_bfe_u32 v7, v0, 2, 1"); a("v_lshl_add_u32 v11, v7, 3, v11"); a(f"s_lshl_b32 s27, s{W}, 9"); a(f"s_add_u32 s27, s27, {self.ZB}"); a("v_add_u32 v11, s27, v11")
        a("v_lshlrev_b32 v187, 4, v10"); a("v_lshl_add_u32 v187, v4, 6, v187"); a("v_add_u32 v187, s27, v187")
        a("v_lshlrev_b32 v6, 4, v10"); a("v_lshl_add_u32 v6, v4, 6, v6"); a("v_lshrrev_b32 v7, 2, v3"); a("v_lshl_add_u32 v6, v7, 8, v6")
        a("v_lshlrev_b32 v7, 4, v3"); a("v_lshl_add_u32 v7, v4, 9, v7")
        a(f"s_lshl_b32 s27, s{W}, 11"); a(f"s_add_u32 s27, s27, {kv + 65536}")
        a(f"s_lshl_b32 s28, s{W}, 14"); a("s_lshl_b32 s29, s25, 16"); a("s_add_u32 s29, s29, s28"); a(f"s_add_u32 s29, s29, {phiq}"); a(f"s_add_u32 s28, s28, {kv}")
        a("s_lshl_b32 s43, s42, 1")
        for p in range(4):
            a(f"s_xor_b32 s35, s43, {p*4096}"); a(f"s_add_u32 s{52+p}, s29, s35"); a(f"s_add_u32 s{44+p}, s28, s35")
        a(f"v_mul_u32_u24 v10, {ORS}, v3"); a("v_lshl_add_u32 v10, v4, 4, v10"); a(f"s_lshl_b32 s35, s{W}, 6"); a(f"s_add_u32 s35, s35, {self.OB}"); a("v_add_u32 v10, s35, v10")
        a("v_and_b32 v184, 31, v0"); a(f"v_mul_u32_u24 v185, {ORS}, v184"); a("v_lshrrev_b32 v186, 5, v1"); a("v_lshl_add_u32 v185, v186, 4, v185"); a(f"v_add_u32 v185, {self.OB}, v185")
        a("v_bfe_u32 v8, v0, 2, 2"); a("v_lshlrev_b32 v8, 6, v8"); a("v_lshl_add_u32 v8, v186, 8, v8"); a("v_and_b32 v9, 1, v4"); a("v_lshl_add_u32 v8, v9, 5, v8")
        a("v_and_b32 v9, 3, v0"); a("v_lshl_add_u32 v8, v9, 3, v8"); a("v_add_u32 v8, s34, v8")
        a(f"s_mov_b32 s35, {f32(1e-6)}")
    def run(self):
        k = self.k; a = k.a; L = self.L; ORS, TRS, TB = self.ORS, self.TRS, self.TB; final = L == 1
        ACC = 16; KVR = 32; PQ = 96; ZF = 160; NUM = 168; TMP = [12, 14, 2, 188]
        k.v("buffer_load_dwordx4 v[16:19], v5, s[4:7], s27 offen sc1", "z")
        def pair_loads(p):
            for h in (2*p, 2*p+1):
                for j in range(2): k.v(f"buffer_load_dwordx4 v[{KVR+8*h+4*j}:{KVR+8*h+4*j+3}], v6, s[4:7], s{44+p} offen offset:{2048*(h%2)+1024*j} sc1", f"p{p}")
                for t in range(2): k.v(f"buffer_load_dwordx4 v[{PQ+8*h+4*t}:{PQ+8*h+4*t+3}], v7, s[4:7], s{52+p} offen offset:{2048*(h%2)+256*t} sc1", f"p{p}")
        PRE = OPT.get("o_pre", 2)
        for p in range(PRE):
            pair_loads(p)
            if p < PRE - 1 and OPT.get("o_bar", 1): a("s_barrier")
        k.wait("z")
        a("v_cvt_pk_bf16_f32 v16, v16, v17"); a("v_cvt_pk_bf16_f32 v17, v18, v19"); a("ds_write_b64 v11, v[16:17]")
        a("s_waitcnt lgkmcnt(0)")
        for grp in range(2): a(f"ds_read_b128 v[{ZF+4*grp}:{ZF+4*grp+3}], v187 offset:{256*grp}")
        k.stamp(f"o{L}_z", 2)
        fbr = lambda p, i: (KVR + 16*p + 4*i) if i < 4 else (PQ + 16*p + 4*(i-4))
        for p in range(4):
            k.wait(f"p{p}")
            for u in range(2):
                kr = KVR + 16*p + 8*u
                for i in range(4): a(f"v_cvt_pk_bf16_f32 v{kr+i}, v{kr+2*i}, v{kr+2*i+1}")
            if p + PRE < 4: pair_loads(p + PRE)
            if p == 0: a("s_waitcnt lgkmcnt(0)")
            for u in range(2):
                h = 2*p + u; kr = KVR + 8*h
                for t in range(2): a(f"v_mfma_f32_16x16x32_bf16 v[{NUM+8*u+4*t}:{NUM+8*u+4*t+3}], v[{kr}:{kr+3}], v[{PQ+8*h+4*t}:{PQ+8*h+4*t+3}], 0")
            for u in range(2):
                h = 2*p + u; kr = KVR + 8*h
                for t in range(2): a(f"v_mfma_f32_16x16x32_bf16 v[{kr+4-4*t}:{kr+7-4*t}], v[{ZF+4*(h//4)}:{ZF+4*(h//4)+3}], v[{PQ+8*h+4*t}:{PQ+8*h+4*t+3}], 0")
            V = []
            ut = [(u, t) for u in range(2) for t in range(2)]
            for n_, (u, t) in enumerate(ut): V.append(f"v_add_f32 v{TMP[n_]}, s35, v{KVR+16*p+8*u+4-4*t+((2*p+u)%4)}")
            for n_ in range(4): V.append(f"v_rcp_f32 v{TMP[n_]}, v{TMP[n_]}")
            oq = PQ + 16*p
            for t in range(2):
                for u in range(2):
                    n_ = 2*u + t; b = NUM + 8*u + 4*t
                    for i in range(4): V.append(f"v_mul_f32 v{b+i}, v{b+i}, v{TMP[n_]}")
                    for i in range(2): V.append(f"v_cvt_pk_bf16_f32 v{oq+4*t+2*u+i}, v{b+2*i}, v{b+2*i+1}")
                V.append(f"ds_write_b128 v10, v[{oq+4*t}:{oq+4*t+3}] offset:{16*ORS*t + 256*p}")
            rd = lambda q: [f"ds_read_b128 v[{fbr(q,i)}:{fbr(q,i)+3}], v185 offset:{256*q + 32*i}" for i in range(8)]
            big = lambda q, i: f"v_mfma_f32_32x32x16_bf16 v[{ACC}:{ACC+15}], {wo_reg(8*q+i)}, v[{fbr(q,i)}:{fbr(q,i)+3}], " + ("0" if 8*q+i == 0 else f"v[{ACC}:{ACC+15}]")
            if p >= 1: a("s_waitcnt lgkmcnt(0)"); a("s_barrier")
            per = [4, 3, 4, 5, 4, 5, 4, 5]; vi = 0
            for i in range(8):
                if p >= 2: a(big(p-2, i))
                if p >= 1: a(rd(p-1)[i])
                for t_ in V[vi:vi+per[i]]: a(t_)
                vi += per[i]
            assert vi == len(V)
        k.stamp(f"o{L}_o", 2)
        RR = 160; XR = 32
        a("s_waitcnt lgkmcnt(0)"); a("s_barrier")
        tail = rd(3) + [f"ds_read_b64_tr_b16 v[{RR+2*i}:{RR+2*i+1}], v8 offset:{512*i}" for i in range(4)]
        for i in range(8):
            a(big(2, i))
            for t_ in tail[2*i:2*i+2]: a(t_)
        a("s_waitcnt lgkmcnt(0)")
        for i in range(8):
            a(big(3, i)); unpack(a, XR+2*i, XR+2*i+1, RR+i)
        k.stamp(f"o{L}_mm", 2)
        T8 = list(range(48, 56))
        for i in range(8): a(f"v_pk_add_f32 v[{ACC+2*i}:{ACC+2*i+1}], v[{ACC+2*i}:{ACC+2*i+1}], v[{XR+2*i}:{XR+2*i+1}]")
        for i in range(8): a(f"v_cvt_pk_bf16_f32 v{T8[i]}, v{ACC+2*i}, v{ACC+2*i+1}")
        if final:
            a(f"s_mul_i32 s27, s{W}, {32*80}"); a(f"s_add_u32 s27, s27, {TB}")
            a(f"v_mul_u32_u24 v8, 80, v184"); a("v_lshl_add_u32 v8, v186, 3, v8"); a("v_add_u32 v8, s27, v8")
            for i in range(4): a(f"ds_write_b64 v8, v[{T8[2*i]}:{T8[2*i]+1}] offset:{16*i}")
            a("v_lshrrev_b32 v5, 2, v1"); a("v_mul_u32_u24 v8, 80, v5"); a("v_lshl_add_u32 v8, v9, 4, v8"); a("v_add_u32 v8, s27, v8")
            a("v_lshlrev_b32 v5, 10, v5"); a("v_lshl_add_u32 v5, v9, 4, v5")
            a("s_lshl_b32 s27, s25, 15"); a("s_lshl_b32 s28, s26, 6"); a("s_add_u32 s27, s27, s28"); a("s_add_u32 s28, s27, 16384")
            a("s_waitcnt lgkmcnt(0)")
            for p in range(2): a(f"ds_read_b128 v[{RR+4*p}:{RR+4*p+3}], v8 offset:{16*80*p}")
            for p in range(2):
                a(f"s_waitcnt lgkmcnt({1-p})"); k.v(f"buffer_store_dwordx4 v[{RR+4*p}:{RR+4*p+3}], v5, s[8:11], s{27+p} offen")
        else:
            a(f"s_mul_i32 s27, s{W}, {32*TRS}"); a(f"s_add_u32 s27, s27, {TB}")
            a(f"v_mul_u32_u24 v8, {TRS}, v184"); a("v_lshl_add_u32 v8, v186, 3, v8"); a("v_add_u32 v8, s27, v8")
            for i in range(4): a(f"ds_write_b64 v8, v[{T8[2*i]}:{T8[2*i]+1}] offset:{16*i}")
            a("v_bfe_u32 v8, v0, 2, 2"); a("v_lshl_add_u32 v8, v4, 3, v8"); a(f"v_mul_u32_u24 v8, {TRS}, v8"); a("v_lshl_add_u32 v8, v9, 3, v8"); a("v_add_u32 v8, s27, v8")
            for i in range(8): unpack(a, XR+2*i, XR+2*i+1, T8[i])
            a("s_waitcnt lgkmcnt(0)")
            for p in range(2):
                for hf in range(2): a(f"ds_read_b64_tr_b16 v[{RR+4*p+2*hf}:{RR+4*p+2*hf+1}], v8 offset:{32*p + 4*TRS*hf}")
            a("v_lshlrev_b32 v5, 6, v3"); a("v_lshl_add_u32 v5, v4, 4, v5")
            a("s_lshl_b32 s27, s25, 15"); a("s_lshl_b32 s28, s26, 11"); a("s_add_u32 s27, s27, s28"); a(f"s_add_u32 s27, s27, {X2B}")
            a(f"v_pk_add_f32 v[12:13], v[{XR}:{XR+1}], v[{XR+2}:{XR+3}]"); a(f"v_pk_mul_f32 v[14:15], v[{XR}:{XR+1}], v[{XR}:{XR+1}]")
            a(f"v_pk_fma_f32 v[14:15], v[{XR+2}:{XR+3}], v[{XR+2}:{XR+3}], v[14:15]")
            for i in range(2, 8):
                a(f"v_pk_add_f32 v[12:13], v[12:13], v[{XR+2*i}:{XR+2*i+1}]"); a(f"v_pk_fma_f32 v[14:15], v[{XR+2*i}:{XR+2*i+1}], v[{XR+2*i}:{XR+2*i+1}], v[14:15]")
                if i == 4:
                    a("s_waitcnt lgkmcnt(2)"); k.v(f"buffer_store_dwordx4 v[{RR}:{RR+3}], v5, s[4:7], s27 offen sc1")
                    a("s_waitcnt lgkmcnt(0)"); k.v(f"buffer_store_dwordx4 v[{RR+4}:{RR+7}], v5, s[4:7], s27 offen offset:1024 sc1")
            a("v_add_f32 v12, v12, v13"); a("v_add_f32 v14, v14, v15")
            a("v_lshlrev_b32 v13, 2, v9"); a("v_lshl_add_u32 v13, v186, 13, v13"); a("v_bfe_u32 v15, v0, 2, 1"); a("v_lshl_add_u32 v13, v15, 12, v13")
            a("v_bfe_u32 v15, v0, 3, 2"); a("v_lshl_add_u32 v13, v15, 4, v13"); a("s_lshl_b32 s28, s25, 6"); a(f"s_add_u32 s28, s28, {ST3}")
            a("v_permlane32_swap_b32 v12, v14"); a("v_add_f32 v12, v12, v14")
            a(f"s_lshl_b32 s27, s{W}, 2"); a(f"s_add_u32 s27, s27, {self.SB}"); a("v_lshl_add_u32 v14, v1, 4, s27"); a("ds_write_b32 v14, v12")
            a(f"v_lshlrev_b32 v14, 4, v1"); a(f"v_add_u32 v14, {self.SB}, v14")
            a("s_waitcnt lgkmcnt(0)"); a("s_barrier")
            a(f"s_cmp_eq_u32 s{W}, 3"); a("s_cbranch_scc0 L_ost")
            a("ds_read_b128 v[16:19], v14"); a("s_waitcnt lgkmcnt(0)")
            a("v_add_f32 v16, v16, v17"); a("v_add_f32 v18, v18, v19"); a("v_add_f32 v12, v16, v18")
            k.v("buffer_atomic_add_f32 v12, v13, s[4:7], s28 offen")
            a.label("L_ost")

def build():
    name = NAME + "_kernel"
    k = K(); a = k.a
    a.raw(kernel_header(name))
    a("s_cmp_ge_u32 s2, 256"); a("s_cbranch_scc1 L_end")
    if PROF: a("s_memrealtime s[96:97]"); a(f"v_mov_b32 v{PV}, 0"); k.stamp("start")
    ph = [Conv(k, 0), Qkv(k, 0), Outp(k, 0), Conv(k, 1), Qkv(k, 1), Outp(k, 1)]
    phase0(k, ph[0].pre)
    for i, p in enumerate(ph):
        a.walk_begin(f"wk{i}"); p.run()
        if i < 5: grid_barrier(k, i + 1, ph[i+1].pre)
    if PROF:
        k.stamp("issued"); a("s_waitcnt vmcnt(0)"); k.stamp("end")
        a("s_memrealtime s[98:99]"); a("s_waitcnt lgkmcnt(0)"); a(f"v_writelane_b32 v{PV}, s96, 62"); a(f"v_writelane_b32 v{PV}, s98, 63")
        a("s_lshl_b32 s27, s2, 10"); a(f"s_add_u32 s27, s27, {STAMP}"); a("v_lshlrev_b32 v5, 2, v0")
        a(f"buffer_store_dword v{PV}, v5, s[4:7], s27 offen")
    a.label("L_end"); a("s_endpgm")
    s = "; S4D convolution / Hedgehog linear attention stack as one persistent kernel (256 workgroups, one per CU)\n"
    s += "; generated by a hand-written generator script\n"
    s += "; @launch grid=(256,1,1) block=(256,1,1) lds=163840\n"
    s += '.amdgcn_target "amdgcn-amd-amdhsa--gfx950"\n.text\n'
    body = a.render()
    if OPT.get("walk", 1):
        body, info, size = place_page_stubs(body, s); print("stubs", info, "bytes after L_main", size)
    s += body + kernel_desc(name, 256, 256) + "\n"
    return s, k.names

if __name__ == "__main__":
    out = f"cdna_kernels/{NAME}.s"
    for arg in sys.argv[1:]:
        if arg == "-p": PROF = True; out = "prof4.s"
        elif "=" in arg: kk, vv = arg.split("="); OPT[kk] = int(vv)
        else: out = arg
    s, names = build()
    open(out, "w").write(s)
    if PROF: json.dump(names, open(out.replace(".s", ".json"), "w"))
```

```python
import sys, struct, json
from asmlib import *

NAME = "interleave_layers__ssm_conv_s4d__linear_kernel_hedgehog__prompt"
PROF = False
OPT = {}
X0B = 0x000000
XT1 = 0x420000; XT3 = 0x820000
X2B = 0x620000
WF = 0xA20000; WO = 0xBA0000
PHIQ = [0xC20000 - 0x0, 0x1020000 - 0x20000 + 0x20000]
ZERO = 0x1420000; KVSZ = 65536 + 8192; ZERO_SZ = 2 * KVSZ + 16384
KV = [ZERO, ZERO + KVSZ]
ST3 = ZERO + 2 * KVSZ
BAR = 0x1470000; GS = 256; GOFF = BAR + 0x1000
STAMP = 0x1480000
WS_USED = 0x14C0000
RBS = 16384 + 256
LOG2E = 0x3fb8aa3b; INV2PI = 0x3e22f983
CSB = 33280
PA = 33792
W = 24
MEMB = 191; PV = 190; B0, B1 = 188, 189
SPIN = 400000
def f32(x): return "0x%08x" % struct.unpack("<I", struct.pack("<f", x))[0]

class K:
    def __init__(self):
        self.a = Asm(); self.vm = []; self.names = []
    def __call__(self, t): self.a(t)
    def v(self, text, tag=None):
        self.a(text); self.vm.append(tag)
    def wait(self, tag, lgkm=None):
        idx = max(i for i, t in enumerate(self.vm) if t == tag)
        n = len(self.vm) - 1 - idx
        assert n <= 63, n
        self.a(f"s_waitcnt vmcnt({n})" + (f" lgkmcnt({lgkm})" if lgkm is not None else ""))
    def drained(self): self.vm = []
    def stamp(self, name, lvl=1):
        if not PROF or lvl > OPT.get("plvl", 1): return
        if name in self.names: i = self.names.index(name)
        else: i = len(self.names); self.names.append(name)
        assert i < 60
        self.a("s_memtime s[98:99]"); self.a("s_waitcnt lgkmcnt(0)"); self.a(f"v_writelane_b32 v{PV}, s98, {i}")

def unpack(a, lo, hi, src):
    a(f"v_lshlrev_b32 v{lo}, 16, v{src}"); a(f"v_and_b32 v{hi}, 0xffff0000, v{src}")
def rnd_pairs(a, regs, tmp):
    n = len(regs)
    for i in range(0, n, 2): a(f"v_cvt_pk_bf16_f32 v{tmp[i//2]}, v{regs[i]}, v{regs[i+1]}")
    for i in range(0, n, 2): unpack(a, regs[i], regs[i+1], tmp[i//2])
def cmul_ops(d, z, e, t):
    return [f"v_pk_mul_f32 v[{t}:{t+1}], v[{z}:{z+1}], v[{e}:{e+1}] op_sel:[0,0] op_sel_hi:[1,0]",
            f"v_pk_fma_f32 v[{d}:{d+1}], v[{z}:{z+1}], v[{e}:{e+1}], v[{t}:{t+1}] op_sel:[1,1,0] op_sel_hi:[0,1,1] neg_lo:[1,0,0]"]
def wo_reg(i):
    return f"a[{192+4*i}:{195+4*i}]" if i < 16 else f"v[{192+4*(i-16)}:{195+4*(i-16)}]"

def bar_signal(k, e):
    a = k.a
    a(f"s_cmp_eq_u32 s{W}, 1"); a(f"s_cbranch_scc0 L_bs{e}")
    a(f"v_mov_b32 v{B0}, {(2 << e) - 1}"); a(f"v_mov_b32 v{B1}, 0")
    a("s_mov_b64 exec, 1"); a(f"buffer_store_byte v{B0}, v{B1}, s[4:7], s38 offen"); a("s_mov_b64 exec, -1")
    a.label(f"L_bs{e}")
def bar_leader(k, e):
    a = k.a
    a(f"s_cmp_eq_u32 s33, 1"); a(f"s_cbranch_scc0 L_bl{e}")
    a(f"v_lshlrev_b32 v{B0}, {e}, v{MEMB}"); a(f"v_lshlrev_b32 v{B1}, 2, v1"); a("s_mov_b32 s23, 0")
    a.label(f"L_blp{e}")
    a(f"buffer_load_dword v2, v{B1}, s[4:7], s39 offen sc1"); a("s_add_u32 s23, s23, 1"); a(f"s_cmp_gt_u32 s23, {SPIN}"); a(f"s_cbranch_scc1 L_blq{e}")
    a("s_waitcnt vmcnt(0)"); a(f"v_and_b32 v2, v2, v{B0}"); a(f"v_cmp_ne_u32 vcc, v2, v{B0}"); a("s_nop 4"); a(f"s_cbranch_vccnz L_blp{e}")
    a.label(f"L_blq{e}")
    a("s_waitcnt vmcnt(0)")
    a(f"v_mov_b32 v{B0}, {e + 1}"); a(f"v_mul_u32_u24 v{B1}, {8*GS}, v1")
    a("s_mov_b64 exec, s[36:37]"); a(f"buffer_store_dword v{B0}, v{B1}, s[4:7], s40 offen sc1"); a("s_mov_b64 exec, -1")
    a.label(f"L_bl{e}")
def bar_wait(k, e):
    a = k.a
    a(f"s_cmp_eq_u32 s{W}, 0"); a(f"s_cbranch_scc0 L_bw{e}")
    a(f"v_mul_u32_u24 v{B1}, {GS}, v1"); a("s_mov_b32 s23, 0"); a("s_mov_b64 exec, s[36:37]")
    a.label(f"L_bwp{e}")
    a(f"buffer_load_dword v2, v{B1}, s[4:7], s41 offen sc1"); a("s_add_u32 s23, s23, 1"); a(f"s_cmp_gt_u32 s23, {SPIN}"); a(f"s_cbranch_scc1 L_bwq{e}")
    a("s_waitcnt vmcnt(0)"); a(f"v_cmp_gt_u32 vcc, {e + 1}, v2"); a("s_nop 4"); a("s_and_b64 exec, exec, vcc"); a(f"s_cbranch_execnz L_bwp{e}")
    a.label(f"L_bwq{e}")
    a("s_waitcnt vmcnt(0)"); a("s_mov_b64 exec, -1")
    a.label(f"L_bw{e}")
    a("s_waitcnt lgkmcnt(0)"); a("s_barrier")
def walker(k, name, wave):
    a = k.a
    if not OPT.get("walk", 1): return
    a(f"s_cmp_eq_u32 s{W}, {wave}"); a(f"s_cbranch_scc0 L_{name}_skip")
    a("s_mov_b64 exec, 0"); a(f"s_branch @WALK({name})")
    a.label(f"L_{name}_ret"); a("s_mov_b64 exec, -1")
    a.label(f"L_{name}_skip")
def grid_barrier(k, e, pre):
    k.stamp(f"b{e}_iss")
    k("s_waitcnt vmcnt(0) lgkmcnt(0)"); k.drained(); k("s_barrier")
    k.stamp(f"b{e}_arr")
    bar_signal(k, e); walker(k, f'wk{e}', 1); bar_leader(k, e); pre(); bar_wait(k, e)
    k.stamp(f"b{e}_rel")

def phase0(k, pre):
    a = k.a
    a("s_load_dwordx4 s[64:67], s[0:1], 96")
    a("s_load_dwordx16 s[44:59], s[0:1], 0")
    a("s_load_dwordx8 s[68:75], s[0:1], 64")
    a("v_lshrrev_b32 v2, 6, v0"); a("v_and_b32 v1, 63, v0"); a(f"v_readfirstlane_b32 s{W}, v2")
    a("v_and_b32 v3, 15, v0"); a("v_bfe_u32 v4, v0, 4, 2")
    if OPT.get("cpf", 1):
        a("s_getpc_b64 s[76:77]"); a.label("L_pc")
        a("s_add_u32 s76, s76, L_main-L_pc"); a("s_addc_u32 s77, s77, 0")
        if OPT.get("cpf", 1) == 1:
            a("s_lshr_b32 s78, s2, 3"); a("s_and_b32 s78, s78, 3"); a("s_mul_i32 s78, s78, 16384"); a("v_lshl_add_u32 v104, v0, 6, s78")
        else:
            a("v_lshlrev_b32 v104, 7, v0"); a("v_add_u32 v106, 0x8000, v104"); a("v_min_u32 v106, L_end-L_main, v106"); a("global_load_dword v107, v106, s[76:77]")
        a("v_min_u32 v104, L_end-L_main, v104")
        a("global_load_dword v105, v104, s[76:77]")
    a("s_getreg_b32 s32, hwreg(HW_REG_XCC_ID, 0, 4)"); a("s_and_b32 s32, s32, 7")
    a("s_and_b32 s18, s2, 7"); a("s_lshl_b32 s18, s18, 5"); a("s_lshr_b32 s25, s2, 3"); a("s_add_u32 s18, s18, s25")
    a("s_lshl_b32 s39, s32, 8"); a(f"s_add_u32 s39, s39, {BAR}"); a("s_add_u32 s38, s39, s2")
    a(f"s_mul_i32 s40, s32, {GS}"); a(f"s_add_u32 s40, s40, {GOFF}"); a(f"s_mul_i32 s41, s32, {8*GS}"); a(f"s_add_u32 s41, s41, {GOFF}")
    a("s_mov_b32 s33, 0"); a("s_mov_b64 s[36:37], 0")
    a("s_lshl_b32 s25, s18, 9"); a("v_lshl_add_u32 v5, v0, 1, s25")
    a(f"s_lshr_b32 s26, s{W}, 1"); a("s_lshl_b32 s27, s18, 1"); a("s_add_u32 s27, s27, s26"); a("s_lshl_b32 s27, s27, 1"); a("v_mov_b32 v6, s27")
    a("s_lshl_b32 s29, s2, 13"); a("v_lshlrev_b32 v7, 4, v1"); a("v_mov_b32 v8, 0")
    a(f"s_lshl_b32 s30, s{W}, 11"); a("s_add_u32 s30, s30, s29"); a("v_add_u32 v9, s30, v7")
    for r in range(56, 60): a(f"v_mov_b32 v{r}, 0")
    a(f"v_mov_b32 v{MEMB}, 0")
    a("s_and_b32 s19, s2, 15"); a("s_lshr_b32 s20, s2, 4"); a("s_cmp_lt_u32 s19, 12")
    a("s_cselect_b32 s31, 3, 1"); a("s_cselect_b32 s27, 0, 12"); a("s_lshl_b32 s31, s31, 10"); a("s_sub_u32 s21, s19, s27")
    a("s_lshl_b32 s27, s20, 5"); a("v_add_u32 v52, s27, v3"); a("v_mul_lo_u32 v52, v52, s31"); a("v_lshl_add_u32 v52, v4, 4, v52")
    a("s_lshl_b32 s27, s21, 8"); a(f"s_lshl_b32 s28, s{W}, 6"); a("s_add_u32 s27, s27, s28"); a("v_add_u32 v52, s27, v52")
    a("s_lshl_b32 s27, s31, 4"); a("v_add_u32 v53, s27, v52")
    a("s_and_b32 s22, s19, 3"); a("s_lshl_b32 s22, s22, 3"); a(f"s_lshl_b32 s27, s{W}, 1"); a("s_add_u32 s22, s22, s27")
    a("s_lshl_b32 s27, s22, 9"); a("v_add_u32 v54, s27, v7")
    a("s_waitcnt lgkmcnt(0)")
    k.stamp("karg")
    a("s_mov_b32 s4, s66"); a("s_mov_b32 s5, s67"); a(f"s_mov_b32 s6, {hex(WS_USED)}"); a("s_mov_b32 s7, 0x20000")
    a(f"s_cmp_eq_u32 s{W}, 3"); a("s_cbranch_scc0 L_p0a")
    a("s_mov_b64 exec, 1")
    a("buffer_store_byte v56, v56, s[4:7], s38 offen")
    a(f"s_mul_i32 s27, s2, {GS}"); a(f"s_add_u32 s27, s27, {GOFF}")
    a("s_cmp_lt_u32 s2, 64"); a("s_cbranch_scc0 L_p0b")
    a("buffer_store_dword v56, v56, s[4:7], s27 offen sc1")
    a.label("L_p0b")
    a("s_mov_b64 exec, -1")
    a.label("L_p0a")
    k.vm.append("clr")
    k.v("global_load_dwordx4 v[16:19], v9, s[44:45]", "x"); k.v("global_load_dwordx4 v[20:23], v9, s[44:45] offset:1024", "x")
    a("s_cmp_lt_u32 s19, 12"); a("s_cselect_b32 s34, s68, s72"); a("s_cselect_b32 s35, s69, s73")
    k.v("global_load_dwordx4 v[32:35], v52, s[34:35]", "w"); k.v("global_load_dwordx4 v[36:39], v53, s[34:35]", "w")
    k.v("global_load_dwordx4 v[40:43], v54, s[70:71]", "w")
    for i, sp in enumerate([46, 48, 50, 52]): k.v(f"global_load_ushort v{10+i}, v5, s[{sp}:{sp+1}]", "ssm")
    k.v("global_load_ushort v14, v6, s[54:55]", "ssm"); k.v("global_load_ushort v15, v6, s[56:57]", "ssm")
    a("s_mov_b32 s8, s74"); a("s_mov_b32 s9, s75"); a("s_mov_b32 s10, 0x200000"); a("s_mov_b32 s11, 0x20000")
    a("s_mov_b32 s12, s64"); a("s_mov_b32 s13, s65"); a("s_mov_b32 s14, 256"); a("s_mov_b32 s15, 0x20000")
    if OPT.get("tlb", 0):
        a("v_lshlrev_b32 v104, 20, v1"); a("v_add_u32 v104, 0x1ff80, v104")
        k.v("buffer_load_dword v105, v104, s[4:7], 0 offen sc1", "ssm"); k.v("buffer_load_dword v106, v104, s[8:11], 0 offen sc1", "ssm")
    a("s_branch L_main"); a.raw(".p2align 12"); a.label("L_main"); a.walk_begin("wkp")
    walker(k, "wkp", 2)
    k.stamp("iss", 2)
    a(f"s_cmp_eq_u32 s{W}, 3"); a("s_cbranch_scc0 L_p0g")
    a("s_lshl_b32 s27, s32, 5"); a("s_lshr_b32 s28, s2, 5"); a("s_lshl_b32 s28, s28, 2"); a("s_add_u32 s27, s27, s28")
    a("s_and_b32 s28, s2, 31"); a("s_lshl_b32 s28, 1, s28"); a("v_mov_b32 v55, s28")
    k.wait("clr")
    a("s_mov_b64 exec, 1"); a("buffer_atomic_or v55, v56, s[12:15], s27 offen"); a("s_mov_b64 exec, -1")
    a("s_branch L_p0h")
    a.label("L_p0g")
    a(f"s_mul_i32 s27, s2, {ZERO_SZ//256}"); a(f"s_add_u32 s27, s27, {ZERO}"); a("v_lshlrev_b32 v55, 4, v0"); a(f"v_cmp_gt_u32 vcc, {ZERO_SZ//4096}, v0")
    a("v_mov_b32 v60, 0x7f000000"); a("v_cndmask_b32 v55, v60, v55, vcc")
    a("buffer_store_dwordx4 v[56:59], v55, s[4:7], s27 offen sc1")
    a.label("L_p0h")
    k.vm.append("z")
    IM = PA + 12544; TB = IM + 81920; TS = 6400; GA = 108
    a("v_lshlrev_b32 v55, 3, v0")
    for j in range(12): a(f"v_add_u32 v{GA+j}, {j-3}, v55")
    for j in range(12): a(f"v_cvt_f32_i32 v{GA+j}, v{GA+j}")
    rnd_pairs(a, list(range(GA, GA+12)), list(range(120, 126)))
    for j in range(11): a(f"v_cvt_i32_f32 v{GA+j}, v{GA+j}")
    for j in range(3): a(f"v_min_u32 v{GA+j}, 3071, v{GA+j}")
    a(f"s_mov_b32 s27, {TB}")
    for j in range(11):
        a(f"v_lshrrev_b32 v120, 6, v{GA+j}"); a(f"v_lshl_add_u32 v{GA+j}, v{GA+j}, 1, s27"); a(f"v_lshl_add_u32 v{GA+j}, v120, 2, v{GA+j}")
    XL = PA; SL = PA + 8192; PL = PA + 8192 + 64
    a(f"s_lshl_b32 s27, s{W}, 11"); a(f"s_add_u32 s27, s27, {XL}"); a("v_add_u32 v9, s27, v7")
    a(f"s_lshl_b32 s27, s{W}, 10"); a(f"s_add_u32 s27, s27, {PL}"); a("v_add_u32 v53, s27, v7")
    a("v_lshrrev_b32 v54, 2, v1"); a("v_and_b32 v54, 3, v54"); a("v_lshlrev_b32 v54, 5, v54"); a("v_lshl_add_u32 v54, v4, 8, v54")
    a("v_and_b32 v55, 3, v0"); a("v_lshl_add_u32 v54, v55, 3, v54"); a("v_add_u32 v54, s27, v54")
    a(f"s_lshl_b32 s27, s{W}, 4"); a(f"s_add_u32 s27, s27, {SL}"); a("v_mov_b32 v55, s27")
    a("s_mov_b32 s60, 0x05040100"); a("s_mov_b32 s61, 0x07060302"); a("s_mov_b32 s62, 0x3f803f80")
    k.wait("x")
    k.stamp("x_in", 2)
    a("ds_write_b128 v9, v[16:19]"); a("ds_write_b128 v9, v[20:23] offset:1024")
    for j in range(4):
        for r in range(2):
            src = 16 + 4*r + j
            a(f"v_dot2_f32_bf16 v{24+r}, v{src}, s62, {'0' if j == 0 else 'v%d' % (24+r)}")
            a(f"v_dot2_f32_bf16 v{26+r}, v{src}, v{src}, {'0' if j == 0 else 'v%d' % (26+r)}")
    for m in ["row_shr:1", "row_shr:2", "row_shr:4", "row_shr:8"]:
        for r in range(24, 28): a(f"v_add_f32_dpp v{r}, v{r}, v{r} {m} row_mask:0xf bank_mask:0xf bound_ctrl:1")
    for r in range(24, 28): a(f"v_add_f32_dpp v{r}, v{r}, v{r} row_bcast:15 row_mask:0xa bank_mask:0xf")
    for r in range(24, 28): a(f"v_add_f32_dpp v{r}, v{r}, v{r} row_bcast:31 row_mask:0xc bank_mask:0xf")
    for r in range(2):
        a(f"v_mul_f32 v{24+r}, {f32(1/512)}, v{24+r}"); a(f"v_mov_b32 v{28+2*r}, {f32(1e-5)}"); a(f"v_fmac_f32 v{28+2*r}, {f32(1/512)}, v{26+r}")
    for r in range(2): a(f"v_fma_f32 v{28+2*r}, -v{24+r}, v{24+r}, v{28+2*r}")
    for r in range(2): a(f"v_max_f32 v{28+2*r}, {f32(1e-5)}, v{28+2*r}")
    for r in range(2): a(f"v_rsq_f32 v{28+2*r}, v{28+2*r}")
    for r in range(2): a(f"v_mul_f32 v{29+2*r}, -v{24+r}, v{28+2*r}")
    a("s_mov_b32 exec_lo, 0"); a("s_mov_b32 exec_hi, 0x80000000")
    a("ds_write_b128 v55, v[28:31]")
    a("s_mov_b64 exec, -1")
    k.wait("w")
    a("ds_write_b128 v53, v[40:43]")
    a(f"v_lshlrev_b32 v9, 2, v0"); a(f"v_mov_b32 v55, {SL}")
    a("s_waitcnt lgkmcnt(0)"); a("s_barrier")
    k.stamp("w_in", 2)
    for i in range(8): a(f"ds_read_b32 v{16+i}, v9 offset:{XL + 1024*i}")
    for i in range(4): a(f"ds_read_b128 v[{72+4*i}:{75+4*i}], v55 offset:{16*i}")
    a("ds_read_b64_tr_b16 v[40:41], v54"); a("ds_read_b64_tr_b16 v[42:43], v54 offset:128")
    a("v_lshlrev_b32 v55, 6, v3"); a("v_lshl_add_u32 v55, v4, 4, v55"); a(f"s_mul_i32 s29, s2, {RBS}"); a(f"s_lshl_b32 s27, s{W}, 12"); a("s_add_u32 s29, s29, s27")
    RC = 144
    a("s_waitcnt lgkmcnt(6)")
    for j in range(4):
        a(f"v_perm_b32 v{RC+j}, v{17+2*j}, v{16+2*j}, s60"); a(f"v_perm_b32 v{RC+4+j}, v{17+2*j}, v{16+2*j}, s61")
    for i in range(8): unpack(a, 88+2*i, 89+2*i, 16+i)
    a("s_waitcnt lgkmcnt(2)")
    for i in range(8): a(f"v_pk_fma_f32 v[{88+2*i}:{89+2*i}], v[{88+2*i}:{89+2*i}], v[{72+2*i}:{73+2*i}], v[{72+2*i}:{73+2*i}] op_sel:[0,0,1] op_sel_hi:[1,0,1]")
    for j in range(4):
        a(f"v_cvt_pk_bf16_f32 v{RC+8+j}, v{88+4*j}, v{90+4*j}"); a(f"v_cvt_pk_bf16_f32 v{RC+12+j}, v{89+4*j}, v{91+4*j}")
    transpose4(a, RC)
    for j in range(4): k.v(f"buffer_store_dwordx4 v[{RC+4*j}:{RC+4*j+3}], v55, s[4:7], s29 offen offset:{1024*j} sc1")
    a("s_waitcnt lgkmcnt(0)")
    a("s_cmp_lt_u32 s19, 8"); a("s_cbranch_scc1 L_p0i")
    a("v_and_b32 v44, 1, v3"); a("v_lshlrev_b32 v44, 4, v44"); a("v_mov_b32 v45, 0x3f80"); a("v_lshlrev_b32 v44, v44, v45")
    a("v_and_b32 v45, 1, v4"); a("v_lshlrev_b32 v45, 2, v45"); a("v_lshrrev_b32 v46, 1, v3"); a("v_sub_u32 v45, v46, v45")
    for i in range(4): a(f"v_cmp_eq_u32 vcc, {i}, v45"); a(f"v_cndmask_b32 v{40+i}, 0, v44, vcc")
    a.label("L_p0i")
    a("s_mov_b32 s60, 0"); a("s_mov_b32 s61, -1")
    for i in range(4): a(f"v_cndmask_b32 v{44+i}, 0, v{40+i}, s[60:61]")
    for i in range(4): a(f"v_cndmask_b32 v{40+i}, v{40+i}, 0, s[60:61]")
    D0 = 16
    for u in range(2):
        for h in range(2): a(f"v_mfma_f32_16x16x32_bf16 v[{D0+8*u+4*h}:{D0+8*u+4*h+3}], v[{32+4*h}:{35+4*h}], v[{40+4*u}:{43+4*u}], 0")
    a("s_cmp_lt_u32 s19, 12"); a("s_cbranch_scc0 L_p0j")
    a("s_lshl_b32 s27, s22, 4"); a("s_add_u32 s27, s27, s20"); a("s_mul_i32 s27, s27, 3"); a("s_lshr_b32 s28, s19, 2"); a("s_add_u32 s27, s27, s28")
    a("s_lshl_b32 s27, s27, 10"); a(f"s_add_u32 s27, s27, {WF}"); a("s_add_u32 s28, s27, 49152")
    a("v_lshlrev_b32 v52, 4, v1")
    a("s_branch L_p0k")
    a.label("L_p0j")
    a("s_lshl_b32 s27, s21, 2"); a(f"s_add_u32 s27, s27, s{W}"); a("s_lshl_b32 s27, s27, 4"); a("s_add_u32 s27, s27, s20"); a("s_lshl_b32 s27, s27, 11")
    a(f"s_add_u32 s27, s27, {WO}"); a("s_add_u32 s28, s27, 256")
    a("v_lshlrev_b32 v52, 4, v3"); a("v_lshl_add_u32 v52, v4, 9, v52")
    a.label("L_p0k")
    a("s_nop 4")
    a("s_cmp_lt_u32 s19, 4"); a("s_cbranch_scc0 L_p0l")
    for i in range(16): a(f"v_subrev_f32_dpp v{32+i}, v{D0+i}, v{D0+i} row_newbcast:0 row_mask:0xf bank_mask:0xf")
    a("s_mov_b32 s60, 0x00010001"); a("s_mov_b32 s61, s60")
    for i in range(16): a(f"v_cndmask_b32 v{D0+i}, v{32+i}, 1.0, s[60:61]")
    a.label("L_p0l")
    for u in range(2):
        for i in range(4): a(f"v_cvt_pk_bf16_f32 v{48+4*u+i if u == 0 else 68+i}, v{D0+8*u+2*i}, v{D0+8*u+2*i+1}")
        k.v(f"buffer_store_dwordx4 v[{48 if u == 0 else 68}:{51 if u == 0 else 71}], v52, s[4:7], s{27+u} offen sc1")
    k.stamp("pub")
    k.wait("ssm")
    a("v_and_b32 v54, 127, v0"); a("v_mul_u32_u24 v54, 160, v54"); a("s_mul_i32 s27, s26, 40960"); a(f"s_add_u32 s27, s27, {IM}"); a("v_add_u32 v54, s27, v54")
    for r in range(10, 16): a(f"v_lshlrev_b32 v{r}, 16, v{r}")
    a(f"v_mul_f32 v10, {hex(LOG2E)}, v10"); a(f"v_mul_f32 v14, {hex(LOG2E)}, v14")
    a("v_exp_f32 v10, v10"); a("v_exp_f32 v14, v14")
    a("v_cvt_pk_bf16_f32 v9, v10, v14"); unpack(a, 10, 14, 9)
    a("v_mul_f32 v10, v10, v14"); a("v_mul_f32 v11, v11, v14")
    a(f"v_mul_f32 v10, {hex(LOG2E | 0x80000000)}, v10"); a(f"v_mul_f32 v11, {hex(INV2PI)}, v11")
    E = {1: 16, 8: 18, 128: 20}; T0 = {1: 22, 8: 24, 128: 26}
    for s_, t in T0.items(): a(f"v_mul_f32 v{t}, {f32(s_)}, v10"); a(f"v_mul_f32 v{t+1}, {f32(s_)}, v11")
    for s_, t in T0.items(): a(f"v_fract_f32 v{t+1}, v{t+1}")
    for s_, t in T0.items(): a(f"v_exp_f32 v{t}, v{t}"); a(f"v_cos_f32 v{E[s_]}, v{t+1}"); a(f"v_sin_f32 v{E[s_]+1}, v{t+1}")
    for s_, t in T0.items(): a(f"v_pk_mul_f32 v[{E[s_]}:{E[s_]+1}], v[{E[s_]}:{E[s_]+1}], v[{t}:{t+1}] op_sel:[0,0] op_sel_hi:[1,0]")
    E[2], E[16], E[256] = 28, 30, 32
    X = [72 + 2*j for j in range(8)]; Y = [88 + 2*j for j in range(8)]
    tmp = [34, 36, 38, 40]; ti = [0]
    def cm(d, z, e):
        t = tmp[ti[0] % 4]; ti[0] += 1
        return cmul_ops(d, z, e, t)
    def par(*pairs):
        for p in pairs: a(p[0])
        for p in pairs: a(p[1])
    SR, SI = [128, 136], [132, 140]; sb = [0]
    def pack(slot, r0, r1, neg):
        b = sb[0]; s = "-" if neg else ""
        a(f"v_cvt_pk_bf16_f32 v{SR[b]+slot}, v{r0}, v{r1}"); a(f"v_cvt_pk_bf16_f32 v{SI[b]+slot}, {s}v{r0+1}, {s}v{r1+1}")
    def flush(grp):
        b = sb[0]
        a(f"ds_write_b128 v54, v[{SR[b]}:{SR[b]+3}] offset:{16*grp}"); a(f"ds_write_b128 v54, v[{SI[b]}:{SI[b]+3}] offset:{20480+16*grp}")
        sb[0] ^= 1
    a(f"v_mov_b32 v{X[0]}, v12"); a(f"v_mov_b32 v{X[0]+1}, v13"); a(f"v_mov_b32 v{Y[0]}, 1.0"); a(f"v_mov_b32 v{Y[0]+1}, 0")
    a(f"v_mov_b32 v{Y[1]}, v{E[8]}"); a(f"v_mov_b32 v{Y[1]+1}, v{E[8]+1}")
    par(cm(E[2], E[1], E[1]), cm(E[16], E[8], E[8]), cm(E[256], E[128], E[128]), cm(X[1], X[0], E[1]))
    for j in (2, 4, 6): par(cm(X[j], X[j-2], E[2]), cm(X[j+1], X[j-1], E[2]), cm(Y[j], Y[j-2], E[16]), cm(Y[j+1], Y[j-1], E[16]))
    for j in range(4): pack(j, X[2*j], X[2*j+1], True)
    flush(0)
    par(*[cm(X[j], X[j], E[128]) for j in range(4)]); par(*[cm(X[j], X[j], E[128]) for j in range(4, 8)])
    for j in range(4): pack(j, Y[2*j], Y[2*j+1], False)
    flush(6)
    a("s_waitcnt vmcnt(0)"); a("s_barrier"); k.drained()
    k.stamp("b0_arr")
    bar_signal(k, 0)
    for j in range(4): pack(j, X[2*j], X[2*j+1], True)
    flush(1)
    par(cm(Y[0], Y[6], E[16]), cm(Y[1], Y[7], E[16]), cm(X[1], X[0], E[256]), cm(X[3], X[2], E[256]))
    par(cm(X[5], X[4], E[256]), cm(X[7], X[6], E[256]), cm(X[0], X[0], E[128]), cm(X[2], X[2], E[128]))
    par(cm(X[4], X[4], E[128]), cm(X[6], X[6], E[128]), cm(Y[2], Y[0], E[16]), cm(Y[3], Y[1], E[16]))
    pack(0, X[0], X[2], True); pack(1, X[4], X[6], True); pack(2, X[1], X[3], True); pack(3, X[5], X[7], True)
    flush(2)
    par(cm(X[0], X[0], E[256]), cm(X[4], X[4], E[256]), cm(X[1], X[1], E[256]), cm(X[5], X[5], E[256]))
    par(cm(Y[4], Y[2], E[16]), cm(Y[5], Y[3], E[16]))
    pack(0, X[0], X[4], True); pack(1, X[1], X[5], True)
    par(cm(X[0], X[0], E[256]), cm(X[4], X[4], E[256]), cm(X[1], X[1], E[256]), cm(X[5], X[5], E[256]))
    par(cm(Y[6], Y[4], E[16]), cm(Y[7], Y[5], E[16]))
    pack(2, X[0], X[4], True); pack(3, X[1], X[5], True)
    flush(3)
    par(cm(X[0], X[0], E[256]), cm(X[1], X[1], E[256]), cm(E[2], E[256], E[256]))
    for j in range(4): pack(j, Y[2*j], Y[2*j+1], False)
    flush(7)
    par(cm(X[2], X[0], E[256]), cm(X[3], X[1], E[256]), cm(X[4], X[0], E[2]), cm(X[5], X[1], E[2]))
    par(cm(X[6], X[2], E[2]), cm(X[7], X[3], E[2]), cm(Y[0], X[4], E[2]))
    for j in range(4): pack(j, X[2*j], X[2*j+1], True)
    flush(4)
    pack(0, Y[0], Y[0], True)
    b = sb[0]; a(f"ds_write_b32 v54, v{SR[b]} offset:80"); a(f"ds_write_b32 v54, v{SI[b]} offset:{20480+80}")
    a(f"v_and_b32 v55, 1, v0"); a(f"v_mul_u32_u24 v55, {TS}, v55"); a(f"v_add_u32 v55, {TB + 6140 + 4*47}, v55"); a("ds_write_b32 v55, v56")
    a("v_lshrrev_b32 v55, 1, v3"); a("v_mul_u32_u24 v55, 4160, v55"); a("v_and_b32 v53, 1, v0"); a("v_lshl_add_u32 v55, v53, 4, v55"); a("ds_write_b128 v55, v[56:59]")
    a(f"s_and_b32 s25, s{W}, 1")
    a("v_lshrrev_b32 v54, 2, v1"); a("v_mul_u32_u24 v54, 160, v54"); a("v_and_b32 v55, 3, v0"); a("v_lshl_add_u32 v54, v55, 3, v54"); a("v_add_u32 v54, s27, v54")
    a("s_lshl_b32 s28, s25, 6"); a("v_add_u32 v55, s28, v54")
    a("v_and_b32 v24, 7, v3"); a("v_lshrrev_b32 v25, 3, v3"); a("v_lshl_add_u32 v24, v25, 7, v24")
    a("v_lshlrev_b32 v26, 7, v3"); a("v_add_u32 v26, 1024, v26")
    a("s_cmp_eq_u32 s25, 0"); a("s_cselect_b64 vcc, -1, 0"); a("v_cndmask_b32 v24, v26, v24, vcc")
    a("s_cselect_b64 s[60:61], 1, 0"); a("v_cndmask_b32 v15, 0, v15, s[60:61]")
    a("v_lshrrev_b32 v25, 2, v3"); a("v_lshlrev_b32 v25, 7, v25"); a("v_and_b32 v26, 3, v3"); a("v_lshl_add_u32 v25, v26, 1, v25"); a("v_add_u32 v25, 256, v25")
    a("v_lshrrev_b32 v26, 1, v3"); a("v_lshlrev_b32 v26, 7, v26"); a("v_and_b32 v27, 1, v3"); a("v_lshl_add_u32 v26, v27, 2, v26")
    a("v_cmp_gt_u32 vcc, 8, v3"); a("v_cndmask_b32 v25, v26, v25, vcc")
    a(f"s_mul_i32 s28, s26, {TS}"); a(f"s_add_u32 s28, s28, {TB}")
    for r in (24, 25):
        a(f"v_lshl_add_u32 v{r}, v4, 5, v{r}"); a(f"v_lshrrev_b32 v26, 6, v{r}"); a(f"v_lshl_add_u32 v{r}, v{r}, 1, s28"); a(f"v_lshl_add_u32 v{r}, v26, 2, v{r}")
    a("v_add_f32 v14, v14, v14")
    k.stamp("st1")
    a("s_waitcnt lgkmcnt(0)"); a("s_barrier")
    a(f"s_cmp_eq_u32 s{W}, 0"); a("s_cbranch_scc0 L_p0m")
    a("v_lshlrev_b32 v9, 2, v1"); a("buffer_load_dword v8, v9, s[12:15], 0 offen sc1")
    a.label("L_p0m")
    FY, FX0, FX1 = 128, 192, 224
    def frag(dst, vb, s_, col):
        o = (s_ // 4) * 20480 + (s_ % 4) * 32 * 160 + col
        a(f"ds_read_b64_tr_b16 v[{dst}:{dst+1}], v{vb} offset:{o}"); a(f"ds_read_b64_tr_b16 v[{dst+2}:{dst+3}], v{vb} offset:{o + 16*160}")
    def mm(s_):
        c0 = "0" if s_ == 0 else "v[28:31]"; c1 = "0" if s_ == 0 else "v[16:19]"
        a(f"v_mfma_f32_16x16x32_bf16 v[28:31], v[{FY+4*s_}:{FY+4*s_+3}], v[{FX0+4*s_}:{FX0+4*s_+3}], {c0}")
        a(f"v_mfma_f32_16x16x32_bf16 v[16:19], v[{FY+4*s_}:{FY+4*s_+3}], v[{FX1+4*s_}:{FX1+4*s_+3}], {c1}")
    for s_ in range(8):
        frag(FY+4*s_, 54, s_, 96); frag(FX0+4*s_, 55, s_, 0); frag(FX1+4*s_, 55, s_, 32)
        if s_ >= 2: a("s_waitcnt lgkmcnt(12)"); mm(s_ - 2)
    a("s_waitcnt lgkmcnt(6)"); mm(6); a("s_waitcnt lgkmcnt(0)"); mm(7)
    def twrite(acc, addr, skip):
        for i in range(4):
            if skip and i == 0: a(f"v_fma_f32 v{acc}, v{acc}, v14, v15")
            else: a(f"v_mul_f32 v{acc+i}, v{acc+i}, v14")
        a(f"v_cvt_pk_bf16_f32 v{acc}, v{acc}, v{acc+1}"); a(f"v_cvt_pk_bf16_f32 v{acc+2}, v{acc+2}, v{acc+3}")
        a(f"ds_write_b16 v{addr}, v{acc}"); a(f"ds_write_b16_d16_hi v{addr}, v{acc} offset:16")
        a(f"ds_write_b16 v{addr}, v{acc+2} offset:32"); a(f"ds_write_b16_d16_hi v{addr}, v{acc+2} offset:48")
    twrite(28, 24, True)
    a("s_cmp_eq_u32 s25, 0"); a("s_cbranch_scc0 L_p0n")
    twrite(16, 25, False)
    a.label("L_p0n")
    k.stamp("st2", 2)
    a("s_waitcnt lgkmcnt(0)"); a("s_barrier")
    for c in range(2):
        for j in range(11): a(f"ds_read_u16 v{16+12*c+j}, v{GA+j} offset:{TS*c}")
    a(f"s_cmp_eq_u32 s{W}, 0"); a("s_cbranch_scc0 L_regx")
    a("s_mov_b32 s23, 0")
    a.label("L_reg")
    a("s_waitcnt vmcnt(0)")
    a("v_bcnt_u32_b32 v12, v8, 0")
    for m in ["row_shr:1", "row_shr:2", "row_shr:4", "row_shr:8"]: a(f"v_add_u32_dpp v12, v12, v12 {m} row_mask:0xf bank_mask:0xf bound_ctrl:1")
    a("v_add_u32_dpp v12, v12, v12 row_bcast:15 row_mask:0xa bank_mask:0xf"); a("v_add_u32_dpp v12, v12, v12 row_bcast:31 row_mask:0xc bank_mask:0xf")
    a("v_readlane_b32 s28, v12, 63"); a("s_cmp_eq_u32 s28, 256"); a("s_cbranch_scc1 L_regq")
    a("s_sleep 8")
    a("buffer_load_dword v8, v9, s[12:15], 0 offen sc1")
    a("s_add_u32 s23, s23, 1"); a(f"s_cmp_gt_u32 s23, {SPIN}"); a("s_cbranch_scc0 L_reg")
    a("s_waitcnt vmcnt(0)")
    a.label("L_regq")
    a("v_cmp_ne_u32 vcc, 0, v8"); a("s_mov_b64 s[28:29], vcc")
    a("v_lshlrev_b32 v12, 3, v1"); a("v_lshrrev_b64 v[10:11], v12, s[28:29]"); a("v_and_b32 v10, 0xff, v10")
    a("v_cmp_ne_u32 vcc, 0, v10"); a("s_nop 1"); a("s_and_b32 s36, vcc_lo, 0xff")
    a("s_lshl_b32 s28, s32, 3"); a("v_lshrrev_b32 v12, 3, v1"); a("v_add_u32 v12, s28, v12"); a("v_lshlrev_b32 v12, 2, v12")
    a("ds_bpermute_b32 v13, v12, v8"); a("v_and_b32 v12, 7, v1"); a("v_lshlrev_b32 v12, 2, v12"); a("s_waitcnt lgkmcnt(0)")
    a("v_lshrrev_b32 v13, v12, v13"); a("v_and_b32 v13, 15, v13")
    a("v_cmp_ne_u32 vcc, 0, v13"); a("s_nop 1"); a("s_ff1_i32_b64 s28, vcc"); a("s_and_b32 s28, s28, 63")
    a("s_nop 3"); a("v_readlane_b32 s29, v13, s28"); a("s_nop 1"); a("s_ff1_i32_b32 s29, s29"); a("s_lshl_b32 s28, s28, 2"); a("s_add_u32 s28, s28, s29")
    a("s_cmp_eq_u32 s28, s2"); a("s_cselect_b32 s33, 1, 0")
    a("s_mov_b32 s28, 0x00204081"); a("v_mul_lo_u32 v13, v13, s28"); a(f"v_and_b32 v{MEMB}, 0x01010101, v13")
    a.label("L_regx")
    k.stamp("reg", 2)
    bar_leader(k, 0)
    a("v_lshlrev_b32 v72, 4, v0")
    for c in range(2):
        a(f"s_waitcnt lgkmcnt({11 if c == 0 else 4})")
        for e in range(4):
            o = 40 + 16*c + 4*e
            for j in range(4):
                lo = 16 + 12*c + 3 - e + 2*j
                a(f"v_lshl_or_b32 v{o+j}, v{lo+1}, 16, v{lo}")
            a(f"ds_write_b128 v72, v[{o}:{o+3}] offset:{(4*c+e)*4160 + 32}")
    k.stamp("st3")
    a("s_waitcnt lgkmcnt(0)"); a("s_barrier")
    walker(k, "wk0", 1); pre()
    bar_wait(k, 0)
    k.stamp("b0_rel")

class Conv:
    UB = PA; RAWB = PA + 9216; XB = PA + 9216 + 8192; WST = PA + 9216 + 8192 + 16384
    ACC = 16; FA = [60, 124]; FB = [92, 156]; VA, VB = 9, 11
    def __init__(self, k, L): self.k = k; self.L = L
    def ra(self, b, rr, q):
        F = self.FA[b] + 4*q
        return [f"ds_read_b64_tr_b16 v[{F}:{F+1}], v{self.VA} offset:{8+512*q+64*rr}", f"ds_read_b64_tr_b16 v[{F+2}:{F+3}], v{self.VA} offset:{512*q+64*rr}"]
    def rb(self, b, rr, j):
        F = self.FB[b] + 4*j
        return [f"ds_read_b128 v[{F}:{F+3}], v{self.VB} offset:{512*j+64*(3-rr)}"]
    def pre(self):
        a = self.k.a; L = self.L; UB = self.UB
        xout = XT1 if L == 0 else XT3
        a(f"s_lshr_b32 s25, s{W}, 1"); a(f"s_and_b32 s26, s{W}, 1")
        if L == 0:
            a("v_lshrrev_b32 v5, 2, v1"); a(f"v_mul_u32_u24 v6, {RBS}, v5"); a("v_and_b32 v7, 3, v0"); a("v_lshl_add_u32 v6, v7, 4, v6")
            a(f"s_mul_i32 s28, s{W}, {64*RBS}"); a("s_lshl_b32 s27, s18, 6"); a("s_add_u32 s28, s28, s27")
            for j in range(1, 4): a(f"s_add_u32 s{28+j}, s28, {j*16*RBS}")
            a("s_mov_b32 s44, s28")
            a(f"v_mov_b32 v10, {self.RAWB}"); a(f"v_mov_b32 v11, {self.RAWB + 4096}"); a("v_cmp_eq_u32 vcc, 1, v7"); a("v_cndmask_b32 v10, v10, v11, vcc")
            a(f"v_mov_b32 v11, {UB + 512}"); a("v_cmp_eq_u32 vcc, 2, v7"); a("v_cndmask_b32 v10, v10, v11, vcc")
            a(f"v_mov_b32 v11, {UB + 4608 + 512}"); a("v_cmp_eq_u32 vcc, 3, v7"); a("v_cndmask_b32 v10, v10, v11, vcc")
            a("v_lshl_add_u32 v10, v5, 4, v10"); a(f"s_lshl_b32 s27, s{W}, 10"); a("v_add_u32 v10, s27, v10")
            a("s_lshr_b32 s35, s2, 4"); a("s_lshl_b32 s35, s35, 1"); a("s_add_u32 s35, s35, s26"); a("s_mul_i32 s35, s35, 49152"); a(f"s_add_u32 s35, s35, {WF}")
            a(f"s_mul_i32 s27, s25, {22*1024}"); a("s_add_u32 s45, s35, s27"); a("s_add_u32 s45, s45, 4096")
            a(f"s_mul_i32 s46, s26, {44*1024}"); a("s_add_u32 s46, s46, s27"); a(f"s_add_u32 s46, s46, {self.WST}")
        else:
            a("v_lshrrev_b32 v6, 2, v0"); a("v_lshlrev_b32 v6, 15, v6"); a("v_and_b32 v7, 3, v0"); a("v_lshl_add_u32 v6, v7, 4, v6")
            a("s_lshl_b32 s31, s18, 7"); a(f"s_add_u32 s31, s31, {X2B}")
            a("v_lshlrev_b32 v10, 4, v0")
            for j in range(4): a(f"s_mov_b32 s{44+j}, {ST3 + 4096*j}")
        a("v_lshlrev_b32 v7, 4, v1")
        for r in range(12, 16): a(f"v_mov_b32 v{r}, 0")
        a("v_lshrrev_b32 v9, 5, v1"); a("v_mul_u32_u24 v9, 4608, v9"); a("v_and_b32 v11, 31, v0"); a("v_lshl_add_u32 v9, v11, 4, v9")
        a(f"ds_write_b128 v9, v[12:15] offset:{UB}")
        a("v_lshrrev_b32 v9, 2, v3"); a("v_mul_u32_u24 v9, 4160, v9"); a("v_and_b32 v11, 3, v0"); a("v_lshl_add_u32 v9, v11, 3, v9")
        a("v_lshlrev_b32 v11, 4, v4"); a("v_sub_u32 v9, v9, v11")
        a("s_mul_i32 s27, s25, 16640"); a("s_lshl_b32 s28, s26, 8"); a("s_add_u32 s27, s27, s28"); a("s_add_u32 s27, s27, 56")
        a("v_add_u32 v9, s27, v9")
        a("v_lshl_add_u32 v11, v3, 5, v11")
        a("s_mul_i32 s27, s25, 4608"); a("s_sub_u32 s27, s27, s28"); a(f"s_add_u32 s27, s27, {UB + 480 - 192}")
        a("v_add_u32 v11, s27, v11")
        for q in range(8):
            for t in self.ra(0, 0, q): a(t)
        a(f"s_lshl_b32 s27, s{W}, 11"); a(f"s_add_u32 s27, s27, {self.RAWB}"); a("v_lshlrev_b32 v8, 5, v3"); a("v_lshl_add_u32 v8, v4, 3, v8"); a("v_add_u32 v8, s27, v8")
        a(f"s_lshl_b32 s27, s{W}, 12"); a(f"s_add_u32 s27, s27, {self.XB}"); a("v_add_u32 v48, s27, v7"); a("v_xor_b32 v49, 0x1000, v48") if self.XB % 8192 == 0 else (
            a(f"s_xor_b32 s27, s{W}, 1"), a("s_lshl_b32 s27, s27, 12"), a(f"s_add_u32 s27, s27, {self.XB}"), a("v_add_u32 v49, s27, v7"))
        a("v_and_b32 v50, 1, v4"); a("v_lshlrev_b32 v50, 18, v50"); a("v_lshrrev_b32 v51, 3, v3"); a("v_lshl_add_u32 v50, v51, 17, v50")
        a("v_and_b32 v51, 7, v3"); a("v_lshl_add_u32 v50, v51, 5, v50"); a("v_lshrrev_b32 v51, 1, v4"); a("v_lshl_add_u32 v50, v51, 4, v50")
        a("s_lshl_b32 s34, s18, 9"); a("s_lshl_b32 s27, s25, 8"); a("s_add_u32 s34, s34, s27"); a("s_lshl_b32 s27, s26, 20"); a("s_add_u32 s34, s34, s27")
        a(f"s_add_u32 s34, s34, {xout}"); a(f"s_add_u32 s43, s34, {1 << 19}")
        a(f"v_mov_b32 v12, {f32(1/512)}"); a(f"v_mov_b32 v14, {f32(1e-5)}")
    def run(self):
        k = self.k; a = k.a; L = self.L; UB, RAWB = self.UB, self.RAWB; ACC, FA, FB = self.ACC, self.FA, self.FB
        S1, S2, XA = 16, 24, 32
        wq = [0]
        def wq_load(n=1):
            if L != 0: return
            for _ in range(n):
                i = wq[0]
                if i >= 22: return
                if i % 4 == 0: a(f"s_add_u32 m0, s46, {1024*i}")
                k.v(f"buffer_load_dwordx4 v7, s[4:7], s45 offen offset:{1024*(i%4)} lds", "wq")
                if i % 4 == 3: a("s_add_u32 s45, s45, 4096")
                wq[0] += 1
        if L == 0:
            for j in range(4): k.v(f"buffer_load_dwordx4 v[{16+4*j}:{19+4*j}], v6, s[4:7], s{44 if j == 0 else 28+j} offen sc1", f"r{j}")
            for j in range(4):
                k.wait(f"r{j}"); a(f"ds_write_b128 v10, v[{16+4*j}:{19+4*j}] offset:{256*j}")
            for i in range(4): k.v(f"buffer_load_dwordx4 a[{4*i}:{4*i+3}], v7, s[4:7], s35 offen offset:{1024*i}", "wq")
        else:
            for j in range(4): k.v(f"buffer_load_dwordx4 v[{S1+4*j}:{S1+4*j+3}], v10, s[4:7], s{44+j} offen sc1", "st")
            k.v(f"buffer_load_dwordx4 v[{XA}:{XA+3}], v6, s[4:7], s31 offen sc1", "x"); k.v(f"buffer_load_dwordx4 v[{XA+4}:{XA+7}], v6, s[4:7], s31 offen offset:64 sc1", "x")
            k.wait("st")
            k.stamp(f"c{L}_st", 2)
            for i in range(0, 8, 2): a(f"v_pk_mul_f32 v[{S1+i}:{S1+i+1}], v[{S1+i}:{S1+i+1}], v[12:13] op_sel_hi:[1,0]")
            for i in range(0, 8, 2): a(f"v_pk_fma_f32 v[{S2+i}:{S2+i+1}], v[{S2+i}:{S2+i+1}], v[12:13], v[14:15] op_sel_hi:[1,0,0]")
            for i in range(0, 8, 2): a(f"v_pk_fma_f32 v[{S2+i}:{S2+i+1}], v[{S1+i}:{S1+i+1}], v[{S1+i}:{S1+i+1}], v[{S2+i}:{S2+i+1}] neg_lo:[1,0,0] neg_hi:[1,0,0]")
            for i in range(8): a(f"v_max_f32 v{S2+i}, v14, v{S2+i}")
            for i in range(8): a(f"v_rsq_f32 v{S2+i}, v{S2+i}")
            for i in range(0, 8, 2): a(f"v_pk_mul_f32 v[{S1+i}:{S1+i+1}], v[{S1+i}:{S1+i+1}], v[{S2+i}:{S2+i+1}] neg_lo:[1,0] neg_hi:[1,0]")
            k.wait("x")
            for c in range(2):
                x = 40
                for j in range(4): unpack(a, x+2*j, x+2*j+1, XA+4*c+j)
                for j in range(4): a(f"v_pk_fma_f32 v[{x+2*j}:{x+2*j+1}], v[{x+2*j}:{x+2*j+1}], v[{S2+2*j}:{S2+2*j+1}], v[{S1+2*j}:{S1+2*j+1}]")
                for j in range(4): a(f"v_cvt_pk_bf16_f32 v{52+4*c+j}, v{x+2*j}, v{x+2*j+1}")
                a(f"ds_write_b128 v10, v[{52+4*c}:{55+4*c}] offset:{UB + 4608*c + 512}")
            for c in range(2): a(f"ds_write_b128 v10, v[{XA+4*c}:{XA+4*c+3}] offset:{RAWB + 4096*c}")
        def reads(rr):
            b = rr % 2; Lr = self.ra(b, rr, 0)
            for j in range(8): Lr += self.rb(b, rr, j)
            for q in range(1, 8): Lr += self.ra(b, rr, q)
            return Lr
        def mf(b, q, jt, first=False):
            d = ACC + 4*jt
            return f"v_mfma_f32_16x16x32_bf16 v[{d}:{d+3}], v[{FA[b]+4*q}:{FA[b]+4*q+3}], v[{FB[b]+4*(jt-q)}:{FB[b]+4*(jt-q)+3}], " + ("0" if first else f"v[{d}:{d+3}]")
        k.stamp(f"c{L}_u", 2)
        a("s_waitcnt lgkmcnt(0)"); a("s_barrier")
        for j in range(8):
            for t in self.rb(0, 0, j): a(t)
        nm = 0; ev = OPT.get("wq_every", 5)
        for rr in range(3):
            b = rr % 2; nxt = reads(rr+1); kk = 0
            for q in range(8):
                for jt in range(q, 8):
                    if rr == 0 and q == 0: a("s_waitcnt lgkmcnt(7)")
                    elif q == 0 and jt == 0: a("s_waitcnt lgkmcnt(0)")
                    a(mf(b, q, jt, rr == 0 and q == 0))
                    if kk < len(nxt): a(nxt[kk])
                    kk += 1; nm += 1
                    if nm % ev == 0: wq_load()
        wq_load(48)
        RAW = 60; XR = 68; PT = 84; T8 = list(range(100, 108))
        vm0 = list(k.vm)
        a("s_waitcnt lgkmcnt(0)")
        a("s_cmp_eq_u32 s26, 0"); a(f"s_cbranch_scc0 L_c{L}h1")
        for rh in range(2):
            k.vm = list(vm0)
            if rh == 1: a.label(f"L_c{L}h1"); a.force_stub()
            own = list(range(4*rh, 4*rh+4)); send = list(range(4-4*rh, 8-4*rh))
            seq = [(q, jt) for q in range(8) for jt in send if q <= jt] + [(q, jt) for q in range(8) for jt in own if q <= jt]
            done_at = {jt: max(i for i, (q, j) in enumerate(seq) if j == jt) for jt in send}
            side = [f"ds_read_b64 v[{RAW+2*i}:{RAW+2*i+1}], v8 offset:{512*i}" for i in range(4)]
            up = []
            for i in range(8): up += [f"v_lshlrev_b32 v{XR+2*i}, 16, v{RAW+i}", f"v_and_b32 v{XR+2*i+1}, 0xffff0000, v{RAW+i}"]
            for i, (q, jt) in enumerate(seq):
                a(mf(1, q, jt))
                if i < 4: a(side[i])
                if i == 7: a("s_waitcnt lgkmcnt(0)")
                if 8 <= i < 24: a(up[i-8])
                for n_, js in enumerate(send):
                    if i == done_at[js] + 8: a(f"ds_write_b128 v48, v[{ACC+4*js}:{ACC+4*js+3}] offset:{1024*n_}")
            k.stamp(f"c{L}_mm", 2)
            a("s_waitcnt lgkmcnt(0)"); a("s_barrier")
            for i in range(4): a(f"ds_read_b128 v[{PT+4*i}:{PT+4*i+3}], v49 offset:{1024*i}")
            O = ACC + 16*rh
            for i in range(8): a(f"v_pk_add_f32 v[{O+2*i}:{O+2*i+1}], v[{O+2*i}:{O+2*i+1}], v[{XR+2*i}:{XR+2*i+1}]")
            for p in range(2):
                a(f"s_waitcnt lgkmcnt({2 - 2*p})")
                for i in range(4*p, 4*p+4): a(f"v_pk_add_f32 v[{O+2*i}:{O+2*i+1}], v[{O+2*i}:{O+2*i+1}], v[{PT+2*i}:{PT+2*i+1}]")
                for i in range(4*p, 4*p+4): a(f"v_cvt_pk_bf16_f32 v{T8[i]}, v{O+2*i}, v{O+2*i+1}")
                o = T8[4*p]
                a(f"v_permlane16_swap_b32 v{o}, v{o+2}"); a(f"v_permlane16_swap_b32 v{o+1}, v{o+3}")
                k.v(f"buffer_store_dwordx4 v[{o}:{o+3}], v50, s[4:7], s{34 if p == 0 else 43} offen sc1")
            if rh == 0: a(f"s_branch L_c{L}e")
        a.label(f"L_c{L}e")

def sm_minmax(a, acc, t):
    mx, mn = t, t + 2
    a(f"v_max3_f32 v{mx}, v{acc}, v{acc+1}, v{acc+2}"); a(f"v_min3_f32 v{mn}, v{acc}, v{acc+1}, v{acc+2}")
    for i in range(3, 15, 2):
        a(f"v_max3_f32 v{mx}, v{mx}, v{acc+i}, v{acc+i+1}"); a(f"v_min3_f32 v{mn}, v{mn}, v{acc+i}, v{acc+i+1}")
    a(f"v_max_f32 v{mx}, v{mx}, v{acc+15}"); a(f"v_min_f32 v{mn}, v{mn}, v{acc+15}")
def sm_exp(a, acc, P, M, c, t, hook=lambda: None):
    mx, mn = t, t + 2
    a(f"v_mul_f32 v{mx}, v{mx}, v{c}"); a(f"v_mul_f32 v{mn}, v{mn}, v{c}")
    for i in range(0, 16, 2):
        a(f"v_pk_fma_f32 v[{P+i}:{P+i+1}], v[{acc+i}:{acc+i+1}], v[{c}:{c+1}], v[{mx}:{mx+1}] op_sel_hi:[1,0,0] neg_lo:[0,0,1] neg_hi:[0,0,1]")
        a(f"v_pk_fma_f32 v[{M+i}:{M+i+1}], v[{acc+i}:{acc+i+1}], v[{c}:{c+1}], v[{mn}:{mn+1}] op_sel_hi:[1,0,0] neg_lo:[1,0,0] neg_hi:[1,0,0]")
    for i in range(16):
        a(f"v_exp_f32 v{P+i}, v{P+i}")
        if i % 4 == 3: hook()
    for i in range(16):
        a(f"v_exp_f32 v{M+i}, v{M+i}")
        if i % 4 == 3: hook()
def sm_norm(a, P, M, t):
    sp, sm = t, t + 2
    a(f"v_pk_add_f32 v[{sp}:{sp+1}], v[{P}:{P+1}], v[{P+2}:{P+3}]"); a(f"v_pk_add_f32 v[{sm}:{sm+1}], v[{M}:{M+1}], v[{M+2}:{M+3}]")
    for i in range(4, 16, 2):
        a(f"v_pk_add_f32 v[{sp}:{sp+1}], v[{sp}:{sp+1}], v[{P+i}:{P+i+1}]"); a(f"v_pk_add_f32 v[{sm}:{sm+1}], v[{sm}:{sm+1}], v[{M+i}:{M+i+1}]")
    a(f"v_add_f32 v{sp}, v{sp}, v{sp+1}"); a(f"v_add_f32 v{sm}, v{sm}, v{sm+1}")
    a(f"v_rcp_f32 v{sp}, v{sp}"); a(f"v_rcp_f32 v{sm}, v{sm}")
    for i in range(0, 16, 2):
        a(f"v_pk_mul_f32 v[{P+i}:{P+i+1}], v[{P+i}:{P+i+1}], v[{sp}:{sp+1}] op_sel_hi:[1,0]")
        a(f"v_pk_mul_f32 v[{M+i}:{M+i+1}], v[{M+i}:{M+i+1}], v[{sm}:{sm+1}] op_sel_hi:[1,0]")
def transpose4(a, R):
    for i in range(4):
        a(f"v_permlane32_swap_b32 v{R+i}, v{R+8+i}"); a(f"v_permlane32_swap_b32 v{R+4+i}, v{R+12+i}")
    for i in range(4):
        a(f"v_permlane16_swap_b32 v{R+i}, v{R+4+i}"); a(f"v_permlane16_swap_b32 v{R+8+i}, v{R+12+i}")

class Qkv:
    NS = 6; SLOT = 16384; RB = PA; IMG = PA + 6 * 16384; RS = 224; STAT = PA + 6 * 16384 + 128 * 224
    def __init__(self, k, L): self.k = k; self.L = L; assert self.STAT + 512 <= 163840 and self.RB % 256 == 0
    def pre(self):
        a = self.k.a; L = self.L; RB, SLOT = self.RB, self.SLOT
        xin = [XT1, XT3][L]
        a(f"s_and_b32 s20, s{W}, 1"); a(f"s_lshr_b32 s21, s{W}, 1")
        if L == 0:
            a(f"s_mul_i32 s27, s20, {44*1024}"); a(f"s_add_u32 s27, s27, {Conv.WST}"); a("v_lshl_add_u32 v5, v1, 4, s27")
            for i in range(44): a(f"ds_read_b128 a[{16+4*i}:{19+4*i}], v5 offset:{1024*i}")
            a("s_waitcnt lgkmcnt(0)")
            a("s_cmp_eq_u32 s21, 1"); a("s_cbranch_scc0 L_cs")
            for r in range(12, 16): a(f"v_mov_b32 v{r}, 0x3f803f80")
            for s_ in range(16):
                for j in range(3): a(f"v_mfma_f32_16x16x32_bf16 v[{16+4*j}:{19+4*j}], a[{(3*s_+j)*4}:{(3*s_+j)*4+3}], v[12:15], " + ("0" if s_ == 0 else f"v[{16+4*j}:{19+4*j}]"))
            a("s_mul_i32 s27, s20, 192"); a(f"s_add_u32 s27, s27, {CSB}"); a("v_lshl_add_u32 v5, v4, 4, s27")
            for j in range(3): a(f"ds_write_b128 v5, v[{16+4*j}:{19+4*j}] offset:{64*j}")
            a.label("L_cs")
            a("s_bfe_u32 s35, s2, 0x20003"); a("s_lshl_b32 s35, s35, 2"); a(f"s_add_u32 s35, s35, s{W}"); a("s_lshl_b32 s35, s35, 15"); a(f"s_add_u32 s35, s35, {WO}")
            if OPT.get("rot", 1): a("s_bfe_u32 s42, s2, 0x20005"); a("s_lshl_b32 s42, s42, 11")
            else: a("s_mov_b32 s42, 0")
        a("s_and_b32 s25, s2, 7"); a("s_lshl_b32 s25, s25, 1"); a("s_bfe_u32 s26, s2, 0x10003"); a("s_add_u32 s25, s25, s26")
        a("s_lshr_b32 s26, s2, 4")
        a("v_lshrrev_b32 v5, 1, v3"); a("v_xor_b32 v5, v5, v4"); a("v_lshlrev_b32 v5, 5, v5"); a("v_lshl_add_u32 v5, v4, 8, v5")
        a("v_and_b32 v6, 1, v0"); a("v_lshl_add_u32 v5, v6, 4, v5"); a("v_xor_b32 v6, 0x80, v5")
        a(f"s_lshl_b32 s28, s{W}, 12"); a("s_lshl_b32 s27, s25, 17"); a("s_add_u32 s28, s28, s27"); a(f"s_add_u32 s28, s28, {xin}")
        a(f"s_lshl_b32 s34, s{W}, 12"); a(f"s_add_u32 s34, s34, {RB}")
        a("v_lshlrev_b32 v7, 4, v1")
        a("v_lshrrev_b32 v8, 2, v1")
        a("v_and_b32 v9, 7, v8"); a(f"s_lshl_b32 s27, s{W}, 1"); a("v_xor_b32 v9, s27, v9"); a("v_lshlrev_b32 v9, 5, v9")
        a("v_lshl_add_u32 v8, v8, 8, v9"); a("v_and_b32 v9, 3, v0"); a("v_lshl_add_u32 v8, v9, 3, v8"); a(f"v_add_u32 v8, {RB}, v8")
        for t in range(1, 4): a(f"v_xor_b32 v{8+t}, {32*t}, v8")
        for t in range(4): a(f"v_add_u32 v{12+t}, {3*SLOT}, v{8+t}")
        a(f"s_lshl_b32 s27, s{W}, 7"); a(f"s_add_u32 s27, s27, {self.STAT}"); a("v_lshl_add_u32 v184, v3, 2, s27")
        a("s_lshl_b32 s27, s20, 5"); a("v_xor_b32 v185, s27, v1"); a("s_lshl_b32 s27, s21, 6"); a("v_add_u32 v185, s27, v185")
        a(f"v_lshlrev_b32 v186, 2, v185"); a(f"v_add_u32 v186, {self.STAT}, v186")
        a("s_mul_i32 s27, s20, 192"); a(f"s_add_u32 s27, s27, {CSB}"); a("v_mov_b32 v187, s27")
        a("s_mov_b32 s56, 0xcccccccc"); a("s_mov_b32 s57, s56"); a("s_mov_b32 s58, 0xaaaaaaaa"); a("s_mov_b32 s59, s58")
    def run(self):
        k = self.k; a = k.a; L = self.L; NS, SLOT, IMG, RS = self.NS, self.SLOT, self.IMG, self.RS
        kv = KV[L]; phiq = PHIQ[L]
        def dma1(c, i):
            if i == 0: a(f"s_add_u32 m0, s34, {(c % NS) * SLOT}")
            k.v(f"buffer_load_dwordx4 v{5 + i % 2}, s[4:7], s28 offen offset:{1024*i} sc1 lds", f"x{c}")
            if c < 7 and i == 3: a(f"s_add_u32 s28, s28, 16384")
        UP = OPT.get("q_up", 2)
        for c in range(UP):
            for i in range(4): dma1(c, i)
        wo = [0]
        def wo_load(n=1):
            if L != 0: return
            for _ in range(n):
                i = wo[0]
                if i >= 32: return
                p, w_, b_ = i // 8, (i // 2) % 4, i % 2
                if i % 2 == 0: a(f"s_xor_b32 s43, s42, {p*2048}"); a("s_add_u32 s43, s43, s35"); (a(f"s_add_u32 s43, s43, {w_*8192}") if w_ else None)
                k.v(f"buffer_load_dwordx4 {wo_reg(i)}, v7, s[4:7], s43 offen offset:{1024*b_}", "wo")
                wo[0] += 1
        ACC = [16, 32, 48]; AS2 = 64; FX = [72, 88]; CS = 136
        def reads(s_):
            c = s_ // 2; sl = c % NS; b = s_ % 2; base = 8 if sl < 3 else 12; o = (sl % 3) * SLOT + (s_ % 2) * 8192
            Lr = []
            for t in range(4):
                Lr.append(f"ds_read_b64_tr_b16 v[{FX[b]+4*t}:{FX[b]+4*t+1}], v{base+t} offset:{o}")
                Lr.append(f"ds_read_b64_tr_b16 v[{FX[b]+4*t+2}:{FX[b]+4*t+3}], v{base+t} offset:{o+4096}")
            return Lr
        sched = {}
        nxtc = UP
        FAST = OPT.get("q_fast", 0)
        for s_ in range(16):
            if nxtc < 8 and (FAST or nxtc <= s_ // 2 + 3) and (nxtc < NS or s_ >= 2*(nxtc - NS) + 2): sched[s_] = nxtc; nxtc += 1
        sync = {1: 1, 3: 2, 5: 4, 9: 7} if FAST == 1 else ({1: 1, 3: 2, 5: 3, 7: 5, 11: 7} if FAST == 2 else {2*c+1: c+1 for c in range(7)})
        k.wait("x0"); a("s_barrier")
        k.stamp(f"q{L}_x0", 2)
        for t in reads(0): a(t)
        for s_ in range(16):
            b = s_ % 2; c = s_ // 2; first = s_ == 0
            nxt = reads(s_+1) if s_ < 15 else [f"ds_read_b128 v[{CS+4*i}:{CS+4*i+3}], v187 offset:{16*i}" for i in range(12)]
            M = []
            for t in range(4):
                x = f"v[{FX[b]+4*t}:{FX[b]+4*t+3}]"
                if t < 2: M.append(f"v_mfma_f32_16x16x32_bf16 v[{AS2+4*t}:{AS2+4*t+3}], {x}, {x}, " + ("0" if first else f"v[{AS2+4*t}:{AS2+4*t+3}]"))
                for j in range(3):
                    d = ACC[j] + 4*t
                    M.append(f"v_mfma_f32_16x16x32_bf16 v[{d}:{d+3}], a[{(3*s_+j)*4}:{(3*s_+j)*4+3}], {x}, " + ("0" if first else f"v[{d}:{d+3}]"))
            if not first: a("s_waitcnt lgkmcnt(0)")
            rd0 = 1 if s_ in sync else 0
            for i, m in enumerate(M):
                if first and i in (0, 4, 8, 11): a(f"s_waitcnt lgkmcnt({ {0: 6, 4: 4+4, 8: 2+8, 11: 8}[i] })")
                a(m)
                if rd0 and i == rd0:
                    k.wait(f"x{sync[s_]}"); a("s_barrier")
                if 0 <= i - rd0 < len(nxt): a(nxt[i - rd0])
                if s_ in sched and i in (2, 5, 8, 11): dma1(sched[s_], (i - 2) // 3)
                if s_ >= OPT.get("wo_from", 9) and i in (5, 12): wo_load()
        k.stamp(f"q{L}_mm")
        for u in range(2):
            r = AS2 + 4*u
            a(f"v_cndmask_b32 v{r}, v{r}, v{r+2}, s[56:57]"); a(f"v_cndmask_b32 v{r+1}, v{r+1}, v{r+3}, s[56:57]"); a(f"v_cndmask_b32 v{r}, v{r}, v{r+1}, s[58:59]")
        a("s_mov_b32 exec_lo, 0x00f0000f"); a("s_mov_b32 exec_hi, 0xf0000f00")
        a(f"ds_write_b32 v184, v{AS2}"); a(f"ds_write_b32 v184, v{AS2+4} offset:64")
        a("s_mov_b64 exec, -1")
        transpose4(a, ACC[0]); wo_load(2)
        a("s_waitcnt lgkmcnt(0)"); a("s_barrier")
        MU, S2, R, C, TK, TQ = 64, 66, 66, 76, 68, 72
        a(f"ds_read_b32 v{S2}, v186")
        a(f"v_mul_f32 v{MU}, {f32(1/512)}, v{ACC[0]}")
        transpose4(a, ACC[1]); wo_load(2)
        def centre(j):
            for i in range(0, 16, 2): a(f"v_pk_fma_f32 v[{ACC[j]+i}:{ACC[j]+i+1}], v[{CS+16*j+i}:{CS+16*j+i+1}], v[{MU}:{MU+1}], v[{ACC[j]+i}:{ACC[j]+i+1}] op_sel_hi:[1,0,1] neg_lo:[0,1,0] neg_hi:[0,1,0]")
        centre(1)
        a("s_waitcnt lgkmcnt(0)")
        a(f"v_mov_b32 v{C}, {f32(1e-5)}"); a(f"v_fmac_f32 v{C}, {f32(1/512)}, v{S2}"); a(f"v_fma_f32 v{S2}, -v{MU}, v{MU}, v{C}"); a(f"v_max_f32 v{S2}, {f32(1e-5)}, v{S2}")
        a(f"v_rsq_f32 v{R}, v{S2}")
        sm_minmax(a, ACC[1], TK)
        a(f"v_mul_f32 v{C}, {hex(LOG2E)}, v{R}")
        P, M_ = 80, 96; O = 112; FV, FP = 136, 152
        EPI = OPT.get("epi", 0)
        def k_part():
            sm_exp(a, ACC[1], P, M_, C, TK, lambda: wo_load())
            sm_norm(a, P, M_, TK); wo_load(2)
            a(f"v_mul_u32_u24 v5, {RS}, v185"); a("s_lshl_b32 s27, s20, 6"); a(f"s_add_u32 s27, s27, {IMG}"); a("v_add_u32 v8, s27, v5")
            a("s_lshl_b32 s27, s20, 5"); a(f"s_add_u32 s27, s27, {IMG + 128}"); a("v_add_u32 v9, s27, v5")
            for h in range(4):
                src = P if h < 2 else M_ - 16
                for i in range(4): a(f"v_cvt_pk_bf16_f32 v{ACC[1]+4*h+i}, v{src+8*h+2*i}, v{src+8*h+2*i+1}")
                a(f"ds_write_b128 v8, v[{ACC[1]+4*h}:{ACC[1]+4*h+3}] offset:{16*h}")
            wo_load(2); transpose4(a, ACC[2]); centre(2)
            for i in range(8): a(f"v_pk_mul_f32 v[{ACC[2]+2*i}:{ACC[2]+2*i+1}], v[{ACC[2]+2*i}:{ACC[2]+2*i+1}], v[{R}:{R+1}] op_sel_hi:[1,0]")
            for h in range(2):
                for i in range(4): a(f"v_cvt_pk_bf16_f32 v{128+4*h+i}, v{ACC[2]+8*h+2*i}, v{ACC[2]+8*h+2*i+1}")
                a(f"ds_write_b128 v9, v[{128+4*h}:{131+4*h}] offset:{16*h}")
            wo_load(32)
            a("v_lshrrev_b32 v5, 2, v1"); a(f"v_mul_u32_u24 v5, {RS}, v5"); a("v_and_b32 v10, 3, v0"); a("v_lshl_add_u32 v5, v10, 3, v5")
            a("v_add_u32 v8, s27, v5")
            a("s_lshl_b32 s27, s20, 6"); a("s_lshl_b32 s28, s21, 5"); a("s_add_u32 s27, s27, s28"); a(f"s_add_u32 s27, s27, {IMG}"); a("v_add_u32 v9, s27, v5")
            for r in range(12, 16): a(f"v_mov_b32 v{r}, 0x3f803f80")
            a("s_lshl_b32 s30, s26, 1"); a("s_add_u32 s30, s30, s20"); a("s_lshl_b32 s30, s30, 1"); a("s_add_u32 s30, s30, s21")
            a("s_lshl_b32 s31, s30, 7"); a(f"s_add_u32 s31, s31, {kv + 65536}"); a("s_lshl_b32 s30, s30, 10"); a(f"s_add_u32 s30, s30, {kv}")
            a("v_lshlrev_b32 v10, 2, v3"); a("v_lshl_add_u32 v11, v4, 8, v10")
        def kv_reads():
            k.stamp(f"q{L}_img", 2)
            a("s_waitcnt lgkmcnt(0)"); a("s_barrier")
            for ks in range(4):
                for hf in range(2):
                    a(f"ds_read_b64_tr_b16 v[{FV+4*ks+2*hf}:{FV+4*ks+2*hf+1}], v8 offset:{(32*ks+16*hf)*RS}")
                    a(f"ds_read_b64_tr_b16 v[{FP+4*ks+2*hf}:{FP+4*ks+2*hf+1}], v9 offset:{(32*ks+16*hf)*RS}")
        def kv_mfma():
            for ks in range(4):
                a(f"s_waitcnt lgkmcnt({12 - 4*ks})")
                a(f"v_mfma_f32_16x16x32_bf16 v[168:171], v[{FV+4*ks}:{FV+4*ks+3}], v[{FP+4*ks}:{FP+4*ks+3}], " + ("0" if ks == 0 else "v[168:171]"))
                a(f"v_mfma_f32_16x16x32_bf16 v[172:175], v[12:15], v[{FP+4*ks}:{FP+4*ks+3}], " + ("0" if ks == 0 else "v[172:175]"))
        def kv_out():
            for x_, y_ in ((168, 170), (169, 171)): a(f"v_mov_b32 v{x_+8}, v{x_}")
            for x_, y_ in ((168, 170), (169, 171)): a(f"v_mov_b32_dpp v{x_}, v{y_} row_ror:8 row_mask:0xf bank_mask:0xc")
            for x_, y_ in ((168, 170), (169, 171)): a(f"v_mov_b32_dpp v{y_}, v{x_+8} row_ror:8 row_mask:0xf bank_mask:0x3")
            for x_, y_ in ((168, 169), (170, 171)): a(f"v_mov_b32 v{x_+8}, v{x_}")
            for x_, y_ in ((168, 169), (170, 171)): a(f"v_mov_b32_dpp v{x_}, v{y_} row_ror:4 row_mask:0xf bank_mask:0xa")
            for x_, y_ in ((168, 169), (170, 171)): a(f"v_mov_b32_dpp v{y_}, v{x_+8} row_ror:12 row_mask:0xf bank_mask:0x5")
            for i in range(4): k.v(f"buffer_atomic_add_f32 v{168+i}, v11, s[4:7], s30 offen offset:{64*i}")
            a("s_mov_b64 exec, 0xffff")
            k.v("buffer_atomic_add_f32 v172, v10, s[4:7], s31 offen")
            a("s_mov_b64 exec, -1")
            k.stamp(f"q{L}_kv", 2)
        def q_exp():
            sm_minmax(a, ACC[0], TQ); sm_exp(a, ACC[0], P, M_, C, TQ)
        def q_out():
            a("v_lshrrev_b32 v2, 5, v185"); a("v_lshlrev_b32 v2, 16, v2"); a("v_and_b32 v6, 31, v185"); a("v_lshl_add_u32 v2, v6, 4, v2")
            a("s_lshl_b32 s29, s26, 1"); a("s_add_u32 s29, s29, s20"); a("s_lshl_b32 s29, s29, 11"); a("s_lshl_b32 s22, s25, 18"); a("s_add_u32 s29, s29, s22"); a(f"s_add_u32 s29, s29, {phiq}")
            for g in range(4):
                a(f"v_cvt_pk_bf16_f32 v{O+4*g}, v{P+4*g}, v{P+4*g+1}"); a(f"v_cvt_pk_bf16_f32 v{O+4*g+1}, v{P+4*g+2}, v{P+4*g+3}")
                a(f"v_cvt_pk_bf16_f32 v{O+4*g+2}, v{M_+4*g}, v{M_+4*g+1}"); a(f"v_cvt_pk_bf16_f32 v{O+4*g+3}, v{M_+4*g+2}, v{M_+4*g+3}")
                k.v(f"buffer_store_dwordx4 v[{O+4*g}:{O+4*g+3}], v2, s[4:7], s29 offen offset:{512*g} sc1")
        if EPI == 0:
            k_part(); centre(0); kv_reads(); kv_mfma(); kv_out(); q_exp(); sm_norm(a, P, M_, TQ); q_out()
        elif EPI == 1:
            centre(0); q_exp(); sm_norm(a, P, M_, TQ); q_out(); k_part(); kv_reads(); kv_mfma(); kv_out()
        elif EPI == 2:
            k_part(); centre(0); q_exp(); kv_reads(); sm_norm(a, P, M_, TQ); kv_mfma(); q_out(); kv_out()
        elif EPI == 3:
            k_part(); centre(0); sm_minmax(a, ACC[0], TQ); kv_reads(); sm_exp(a, ACC[0], P, M_, C, TQ); kv_mfma(); sm_norm(a, P, M_, TQ); kv_out(); q_out()

class Outp:
    ORS = 1040; OB = PA; RB = PA + 32 * 1040; TB = PA + 32 * 1040 + 4 * 2048; TRS = 72; ZB = PA + 32 * 1040 + 4 * 2048 + 10240; SB = PA + 32 * 1040 + 4 * 2048 + 10240 + 2048
    def __init__(self, k, L): self.k = k; self.L = L
    def pre(self):
        k = self.k; a = k.a; L = self.L; ORS = self.ORS
        xin = [XT1, XT3][L]; kv = KV[L]; phiq = PHIQ[L]
        a("s_and_b32 s25, s2, 7"); a("s_lshl_b32 s25, s25, 3"); a("s_lshr_b32 s26, s2, 5"); a("s_add_u32 s25, s25, s26")
        a("s_bfe_u32 s26, s2, 0x20003"); a("s_lshl_b32 s26, s26, 2"); a(f"s_add_u32 s26, s26, s{W}")
        a("v_lshrrev_b32 v9, 2, v1"); a("v_lshlrev_b32 v9, 8, v9"); a("v_and_b32 v10, 3, v0"); a("v_lshl_add_u32 v9, v10, 4, v9")
        a("s_lshr_b32 s30, s25, 2"); a("s_lshl_b32 s30, s30, 17"); a("s_and_b32 s31, s25, 3"); a("s_lshl_b32 s31, s31, 6"); a("s_add_u32 s30, s30, s31")
        a("s_lshl_b32 s31, s26, 13"); a("s_add_u32 s30, s30, s31"); a(f"s_add_u32 s30, s30, {xin}")
        a(f"s_add_u32 s31, s30, {16*256 - 1024}")
        a(f"s_lshl_b32 s34, s{W}, 11"); a(f"s_add_u32 s34, s34, {self.RB}"); a("s_mov_b32 m0, s34")
        k.v("buffer_load_dwordx4 v9, s[4:7], s30 offen sc1 lds", "res"); k.v("buffer_load_dwordx4 v9, s[4:7], s31 offen offset:1024 sc1 lds", "res")
        a("v_lshrrev_b32 v5, 2, v1"); a("v_lshlrev_b32 v5, 7, v5"); a("v_lshl_add_u32 v5, v10, 4, v5")
        a("s_lshr_b32 s27, s42, 10"); a("v_lshrrev_b32 v11, 3, v1"); a("v_xor_b32 v11, s27, v11")
        a("v_lshrrev_b32 v7, 2, v11"); a("v_lshlrev_b32 v7, 8, v7"); a("v_and_b32 v11, 3, v11"); a("v_lshl_add_u32 v11, v11, 4, v7"); a("v_lshl_add_u32 v11, v10, 6, v11")
        a("v_bfe_u32 v7, v0, 2, 1"); a("v_lshl_add_u32 v11, v7, 3, v11"); a(f"s_lshl_b32 s27, s{W}, 9"); a(f"s_add_u32 s27, s27, {self.ZB}"); a("v_add_u32 v11, s27, v11")
        a("v_lshlrev_b32 v187, 4, v10"); a("v_lshl_add_u32 v187, v4, 6, v187"); a("v_add_u32 v187, s27, v187")
        a("v_lshlrev_b32 v6, 4, v10"); a("v_lshl_add_u32 v6, v4, 6, v6"); a("v_lshrrev_b32 v7, 2, v3"); a("v_lshl_add_u32 v6, v7, 8, v6")
        a("v_lshlrev_b32 v7, 4, v3"); a("v_lshl_add_u32 v7, v4, 9, v7")
        a(f"s_lshl_b32 s27, s{W}, 11"); a(f"s_add_u32 s27, s27, {kv + 65536}")
        a(f"s_lshl_b32 s28, s{W}, 14"); a("s_lshl_b32 s29, s25, 16"); a("s_add_u32 s29, s29, s28"); a(f"s_add_u32 s29, s29, {phiq}"); a(f"s_add_u32 s28, s28, {kv}")
        a("s_lshl_b32 s43, s42, 1")
        for p in range(4):
            a(f"s_xor_b32 s35, s43, {p*4096}"); a(f"s_add_u32 s{52+p}, s29, s35"); a(f"s_add_u32 s{44+p}, s28, s35")
        a(f"v_mul_u32_u24 v10, {ORS}, v3"); a("v_lshl_add_u32 v10, v4, 4, v10"); a(f"s_lshl_b32 s35, s{W}, 6"); a(f"s_add_u32 s35, s35, {self.OB}"); a("v_add_u32 v10, s35, v10")
        a("v_and_b32 v184, 31, v0"); a(f"v_mul_u32_u24 v185, {ORS}, v184"); a("v_lshrrev_b32 v186, 5, v1"); a("v_lshl_add_u32 v185, v186, 4, v185"); a(f"v_add_u32 v185, {self.OB}, v185")
        a("v_bfe_u32 v8, v0, 2, 2"); a("v_lshlrev_b32 v8, 6, v8"); a("v_lshl_add_u32 v8, v186, 8, v8"); a("v_and_b32 v9, 1, v4"); a("v_lshl_add_u32 v8, v9, 5, v8")
        a("v_and_b32 v9, 3, v0"); a("v_lshl_add_u32 v8, v9, 3, v8"); a("v_add_u32 v8, s34, v8")
        a(f"s_mov_b32 s35, {f32(1e-6)}")
    def run(self):
        k = self.k; a = k.a; L = self.L; ORS, TRS, TB = self.ORS, self.TRS, self.TB; final = L == 1
        ACC = 16; KVR = 32; PQ = 96; ZF = 160; NUM = 168; TMP = [12, 14, 2, 188]
        k.v("buffer_load_dwordx4 v[16:19], v5, s[4:7], s27 offen sc1", "z")
        def pair_loads(p):
            for h in (2*p, 2*p+1):
                for j in range(2): k.v(f"buffer_load_dwordx4 v[{KVR+8*h+4*j}:{KVR+8*h+4*j+3}], v6, s[4:7], s{44+p} offen offset:{2048*(h%2)+1024*j} sc1", f"p{p}")
                for t in range(2): k.v(f"buffer_load_dwordx4 v[{PQ+8*h+4*t}:{PQ+8*h+4*t+3}], v7, s[4:7], s{52+p} offen offset:{2048*(h%2)+256*t} sc1", f"p{p}")
        PRE = OPT.get("o_pre", 2)
        for p in range(PRE):
            pair_loads(p)
            if p < PRE - 1 and OPT.get("o_bar", 1): a("s_barrier")
        k.wait("z")
        a("v_cvt_pk_bf16_f32 v16, v16, v17"); a("v_cvt_pk_bf16_f32 v17, v18, v19"); a("ds_write_b64 v11, v[16:17]")
        a("s_waitcnt lgkmcnt(0)")
        for grp in range(2): a(f"ds_read_b128 v[{ZF+4*grp}:{ZF+4*grp+3}], v187 offset:{256*grp}")
        k.stamp(f"o{L}_z", 2)
        fbr = lambda p, i: (KVR + 16*p + 4*i) if i < 4 else (PQ + 16*p + 4*(i-4))
        for p in range(4):
            k.wait(f"p{p}")
            for u in range(2):
                kr = KVR + 16*p + 8*u
                for i in range(4): a(f"v_cvt_pk_bf16_f32 v{kr+i}, v{kr+2*i}, v{kr+2*i+1}")
            if p + PRE < 4: pair_loads(p + PRE)
            if p == 0: a("s_waitcnt lgkmcnt(0)")
            for u in range(2):
                h = 2*p + u; kr = KVR + 8*h
                for t in range(2): a(f"v_mfma_f32_16x16x32_bf16 v[{NUM+8*u+4*t}:{NUM+8*u+4*t+3}], v[{kr}:{kr+3}], v[{PQ+8*h+4*t}:{PQ+8*h+4*t+3}], 0")
            for u in range(2):
                h = 2*p + u; kr = KVR + 8*h
                for t in range(2): a(f"v_mfma_f32_16x16x32_bf16 v[{kr+4-4*t}:{kr+7-4*t}], v[{ZF+4*(h//4)}:{ZF+4*(h//4)+3}], v[{PQ+8*h+4*t}:{PQ+8*h+4*t+3}], 0")
            V = []
            ut = [(u, t) for u in range(2) for t in range(2)]
            for n_, (u, t) in enumerate(ut): V.append(f"v_add_f32 v{TMP[n_]}, s35, v{KVR+16*p+8*u+4-4*t+((2*p+u)%4)}")
            for n_ in range(4): V.append(f"v_rcp_f32 v{TMP[n_]}, v{TMP[n_]}")
            oq = PQ + 16*p
            for t in range(2):
                for u in range(2):
                    n_ = 2*u + t; b = NUM + 8*u + 4*t
                    for i in range(4): V.append(f"v_mul_f32 v{b+i}, v{b+i}, v{TMP[n_]}")
                    for i in range(2): V.append(f"v_cvt_pk_bf16_f32 v{oq+4*t+2*u+i}, v{b+2*i}, v{b+2*i+1}")
                V.append(f"ds_write_b128 v10, v[{oq+4*t}:{oq+4*t+3}] offset:{16*ORS*t + 256*p}")
            rd = lambda q: [f"ds_read_b128 v[{fbr(q,i)}:{fbr(q,i)+3}], v185 offset:{256*q + 32*i}" for i in range(8)]
            big = lambda q, i: f"v_mfma_f32_32x32x16_bf16 v[{ACC}:{ACC+15}], {wo_reg(8*q+i)}, v[{fbr(q,i)}:{fbr(q,i)+3}], " + ("0" if 8*q+i == 0 else f"v[{ACC}:{ACC+15}]")
            if p >= 1: a("s_waitcnt lgkmcnt(0)"); a("s_barrier")
            per = [4, 3, 4, 5, 4, 5, 4, 5]; vi = 0
            for i in range(8):
                if p >= 2: a(big(p-2, i))
                if p >= 1: a(rd(p-1)[i])
                for t_ in V[vi:vi+per[i]]: a(t_)
                vi += per[i]
            assert vi == len(V)
        k.stamp(f"o{L}_o", 2)
        RR = 160; XR = 32
        a("s_waitcnt lgkmcnt(0)"); a("s_barrier")
        tail = rd(3) + [f"ds_read_b64_tr_b16 v[{RR+2*i}:{RR+2*i+1}], v8 offset:{512*i}" for i in range(4)]
        for i in range(8):
            a(big(2, i))
            for t_ in tail[2*i:2*i+2]: a(t_)
        a("s_waitcnt lgkmcnt(0)")
        for i in range(8):
            a(big(3, i)); unpack(a, XR+2*i, XR+2*i+1, RR+i)
        k.stamp(f"o{L}_mm", 2)
        T8 = list(range(48, 56))
        for i in range(8): a(f"v_pk_add_f32 v[{ACC+2*i}:{ACC+2*i+1}], v[{ACC+2*i}:{ACC+2*i+1}], v[{XR+2*i}:{XR+2*i+1}]")
        for i in range(8): a(f"v_cvt_pk_bf16_f32 v{T8[i]}, v{ACC+2*i}, v{ACC+2*i+1}")
        if final:
            a(f"s_mul_i32 s27, s{W}, {32*80}"); a(f"s_add_u32 s27, s27, {TB}")
            a(f"v_mul_u32_u24 v8, 80, v184"); a("v_lshl_add_u32 v8, v186, 3, v8"); a("v_add_u32 v8, s27, v8")
            for i in range(4): a(f"ds_write_b64 v8, v[{T8[2*i]}:{T8[2*i]+1}] offset:{16*i}")
            a("v_lshrrev_b32 v5, 2, v1"); a("v_mul_u32_u24 v8, 80, v5"); a("v_lshl_add_u32 v8, v9, 4, v8"); a("v_add_u32 v8, s27, v8")
            a("v_lshlrev_b32 v5, 10, v5"); a("v_lshl_add_u32 v5, v9, 4, v5")
            a("s_lshl_b32 s27, s25, 15"); a("s_lshl_b32 s28, s26, 6"); a("s_add_u32 s27, s27, s28"); a("s_add_u32 s28, s27, 16384")
            a("s_waitcnt lgkmcnt(0)")
            for p in range(2): a(f"ds_read_b128 v[{RR+4*p}:{RR+4*p+3}], v8 offset:{16*80*p}")
            for p in range(2):
                a(f"s_waitcnt lgkmcnt({1-p})"); k.v(f"buffer_store_dwordx4 v[{RR+4*p}:{RR+4*p+3}], v5, s[8:11], s{27+p} offen")
        else:
            a(f"s_mul_i32 s27, s{W}, {32*TRS}"); a(f"s_add_u32 s27, s27, {TB}")
            a(f"v_mul_u32_u24 v8, {TRS}, v184"); a("v_lshl_add_u32 v8, v186, 3, v8"); a("v_add_u32 v8, s27, v8")
            for i in range(4): a(f"ds_write_b64 v8, v[{T8[2*i]}:{T8[2*i]+1}] offset:{16*i}")
            a("v_bfe_u32 v8, v0, 2, 2"); a("v_lshl_add_u32 v8, v4, 3, v8"); a(f"v_mul_u32_u24 v8, {TRS}, v8"); a("v_lshl_add_u32 v8, v9, 3, v8"); a("v_add_u32 v8, s27, v8")
            for i in range(8): unpack(a, XR+2*i, XR+2*i+1, T8[i])
            a("s_waitcnt lgkmcnt(0)")
            for p in range(2):
                for hf in range(2): a(f"ds_read_b64_tr_b16 v[{RR+4*p+2*hf}:{RR+4*p+2*hf+1}], v8 offset:{32*p + 4*TRS*hf}")
            a("v_lshlrev_b32 v5, 6, v3"); a("v_lshl_add_u32 v5, v4, 4, v5")
            a("s_lshl_b32 s27, s25, 15"); a("s_lshl_b32 s28, s26, 11"); a("s_add_u32 s27, s27, s28"); a(f"s_add_u32 s27, s27, {X2B}")
            a(f"v_pk_add_f32 v[12:13], v[{XR}:{XR+1}], v[{XR+2}:{XR+3}]"); a(f"v_pk_mul_f32 v[14:15], v[{XR}:{XR+1}], v[{XR}:{XR+1}]")
            a(f"v_pk_fma_f32 v[14:15], v[{XR+2}:{XR+3}], v[{XR+2}:{XR+3}], v[14:15]")
            for i in range(2, 8):
                a(f"v_pk_add_f32 v[12:13], v[12:13], v[{XR+2*i}:{XR+2*i+1}]"); a(f"v_pk_fma_f32 v[14:15], v[{XR+2*i}:{XR+2*i+1}], v[{XR+2*i}:{XR+2*i+1}], v[14:15]")
                if i == 4:
                    a("s_waitcnt lgkmcnt(2)"); k.v(f"buffer_store_dwordx4 v[{RR}:{RR+3}], v5, s[4:7], s27 offen sc1")
                    a("s_waitcnt lgkmcnt(0)"); k.v(f"buffer_store_dwordx4 v[{RR+4}:{RR+7}], v5, s[4:7], s27 offen offset:1024 sc1")
            a("v_add_f32 v12, v12, v13"); a("v_add_f32 v14, v14, v15")
            a("v_lshlrev_b32 v13, 2, v9"); a("v_lshl_add_u32 v13, v186, 13, v13"); a("v_bfe_u32 v15, v0, 2, 1"); a("v_lshl_add_u32 v13, v15, 12, v13")
            a("v_bfe_u32 v15, v0, 3, 2"); a("v_lshl_add_u32 v13, v15, 4, v13"); a("s_lshl_b32 s28, s25, 6"); a(f"s_add_u32 s28, s28, {ST3}")
            a("v_permlane32_swap_b32 v12, v14"); a("v_add_f32 v12, v12, v14")
            a(f"s_lshl_b32 s27, s{W}, 2"); a(f"s_add_u32 s27, s27, {self.SB}"); a("v_lshl_add_u32 v14, v1, 4, s27"); a("ds_write_b32 v14, v12")
            a(f"v_lshlrev_b32 v14, 4, v1"); a(f"v_add_u32 v14, {self.SB}, v14")
            a("s_waitcnt lgkmcnt(0)"); a("s_barrier")
            a(f"s_cmp_eq_u32 s{W}, 3"); a("s_cbranch_scc0 L_ost")
            a("ds_read_b128 v[16:19], v14"); a("s_waitcnt lgkmcnt(0)")
            a("v_add_f32 v16, v16, v17"); a("v_add_f32 v18, v18, v19"); a("v_add_f32 v12, v16, v18")
            k.v("buffer_atomic_add_f32 v12, v13, s[4:7], s28 offen")
            a.label("L_ost")

def build():
    name = NAME + "_kernel"
    k = K(); a = k.a
    a.raw(kernel_header(name))
    a("s_cmp_ge_u32 s2, 256"); a("s_cbranch_scc1 L_end")
    if PROF: a("s_memrealtime s[96:97]"); a(f"v_mov_b32 v{PV}, 0"); k.stamp("start")
    ph = [Conv(k, 0), Qkv(k, 0), Outp(k, 0), Conv(k, 1), Qkv(k, 1), Outp(k, 1)]
    phase0(k, ph[0].pre)
    for i, p in enumerate(ph):
        a.walk_begin(f"wk{i}"); p.run()
        if i < 5: grid_barrier(k, i + 1, ph[i+1].pre)
    if PROF:
        k.stamp("issued"); a("s_waitcnt vmcnt(0)"); k.stamp("end")
        a("s_memrealtime s[98:99]"); a("s_waitcnt lgkmcnt(0)"); a(f"v_writelane_b32 v{PV}, s96, 62"); a(f"v_writelane_b32 v{PV}, s98, 63")
        a("s_lshl_b32 s27, s2, 10"); a(f"s_add_u32 s27, s27, {STAMP}"); a("v_lshlrev_b32 v5, 2, v0")
        a(f"buffer_store_dword v{PV}, v5, s[4:7], s27 offen")
        if OPT.get("dbgout"):
            sel = ["karg", "pub", "b0_arr", "st3", "b0_rel", "b1_iss", "b1_rel", "b2_iss", "b2_rel", "b3_iss", "b3_rel", "b4_rel", "b5_rel", "end"]
            a("s_cmp_eq_u32 s2, 7"); a("s_cbranch_scc0 L_end"); a(f"s_cmp_eq_u32 s{W}, 0"); a("s_cbranch_scc0 L_end")
            a(f"v_readlane_b32 s28, v{PV}, 0")
            for i, nm in enumerate(sel):
                a(f"v_readlane_b32 s29, v{PV}, {k.names.index(nm)}"); a("s_nop 1"); a("s_sub_u32 s29, s29, s28"); a(f"v_writelane_b32 v6, s29, {i}")
            a("s_sub_u32 s29, s98, s96"); a("v_writelane_b32 v6, s29, 14"); a("v_writelane_b32 v6, s29, 15")
            a("s_mov_b64 exec, 0xffff"); a("buffer_store_dword v6, v5, s[12:15], 0 offen")
    a.label("L_end"); a("s_endpgm")
    s = "; S4D convolution / Hedgehog linear attention stack as one persistent kernel (256 workgroups, one per CU)\n"
    s += "; generated by a hand-written generator script\n"
    s += "; @launch grid=(256,1,1) block=(256,1,1) lds=163840\n"
    s += '.amdgcn_target "amdgcn-amd-amdhsa--gfx950"\n.text\n'
    body = a.render()
    if OPT.get("walk", 1):
        body, info, size = place_page_stubs(body, s); print("stubs", info, "bytes after L_main", size)
    s += body + kernel_desc(name, 256, 256) + "\n"
    return s, k.names

if __name__ == "__main__":
    out = f"cdna_kernels/{NAME}.s"
    for arg in sys.argv[1:]:
        if arg == "-p": PROF = True; out = "prof4.s"
        elif "=" in arg: kk, vv = arg.split("="); OPT[kk] = int(vv)
        else: out = arg
    s, names = build()
    open(out, "w").write(s)
    if PROF: json.dump(names, open(out.replace(".s", ".json"), "w"))
```

```python
import sys, struct, json
from asmlib import *

NAME = "interleave_layers__ssm_conv_s4d__linear_kernel_hedgehog__prompt"
PROF = False
OPT = {}
X0B = 0x000000
XT1 = 0x420000; XT3 = 0x820000
X2B = 0x620000
WF = 0xA20000; WO = 0xBA0000
PHIQ = [0xC20000 - 0x0, 0x1020000 - 0x20000 + 0x20000]
ZERO = 0x1420000; KVSZ = 65536 + 8192; ZERO_SZ = 2 * KVSZ + 16384
KV = [ZERO, ZERO + KVSZ]
ST3 = ZERO + 2 * KVSZ
BAR = 0x1470000; GS = 256; GOFF = BAR + 0x1000
STAMP = 0x1480000
WS_USED = 0x14C0000
RBS = 16384 + 256
LOG2E = 0x3fb8aa3b; INV2PI = 0x3e22f983
CSB = 33280
PA = 33792
W = 24
MEMB = 191; PV = 190; B0, B1 = 188, 189
SPIN = 400000
def f32(x): return "0x%08x" % struct.unpack("<I", struct.pack("<f", x))[0]

class K:
    def __init__(self):
        self.a = Asm(); self.vm = []; self.names = []
    def __call__(self, t): self.a(t)
    def v(self, text, tag=None):
        self.a(text); self.vm.append(tag)
    def wait(self, tag, lgkm=None):
        idx = max(i for i, t in enumerate(self.vm) if t == tag)
        n = len(self.vm) - 1 - idx
        assert n <= 63, n
        self.a(f"s_waitcnt vmcnt({n})" + (f" lgkmcnt({lgkm})" if lgkm is not None else ""))
    def drained(self): self.vm = []
    def stamp(self, name, lvl=1):
        if not PROF or lvl > OPT.get("plvl", 1): return
        if name in self.names: i = self.names.index(name)
        else: i = len(self.names); self.names.append(name)
        assert i < 60
        self.a("s_memtime s[98:99]"); self.a("s_waitcnt lgkmcnt(0)"); self.a(f"v_writelane_b32 v{PV}, s98, {i}")

def unpack(a, lo, hi, src):
    a(f"v_lshlrev_b32 v{lo}, 16, v{src}"); a(f"v_and_b32 v{hi}, 0xffff0000, v{src}")
def rnd_pairs(a, regs, tmp):
    n = len(regs)
    for i in range(0, n, 2): a(f"v_cvt_pk_bf16_f32 v{tmp[i//2]}, v{regs[i]}, v{regs[i+1]}")
    for i in range(0, n, 2): unpack(a, regs[i], regs[i+1], tmp[i//2])
def cmul_ops(d, z, e, t):
    return [f"v_pk_mul_f32 v[{t}:{t+1}], v[{z}:{z+1}], v[{e}:{e+1}] op_sel:[0,0] op_sel_hi:[1,0]",
            f"v_pk_fma_f32 v[{d}:{d+1}], v[{z}:{z+1}], v[{e}:{e+1}], v[{t}:{t+1}] op_sel:[1,1,0] op_sel_hi:[0,1,1] neg_lo:[1,0,0]"]
def wo_reg(i):
    return f"a[{192+4*i}:{195+4*i}]" if i < 16 else f"v[{192+4*(i-16)}:{195+4*(i-16)}]"

def bar_signal(k, e):
    a = k.a
    a(f"s_cmp_eq_u32 s{W}, 1"); a(f"s_cbranch_scc0 L_bs{e}")
    a(f"v_mov_b32 v{B0}, {(2 << e) - 1}"); a(f"v_mov_b32 v{B1}, 0")
    a("s_mov_b64 exec, 1"); a(f"buffer_store_byte v{B0}, v{B1}, s[4:7], s38 offen"); a("s_mov_b64 exec, -1")
    a.label(f"L_bs{e}")
def bar_leader(k, e):
    a = k.a
    a(f"s_cmp_eq_u32 s33, 1"); a(f"s_cbranch_scc0 L_bl{e}")
    a(f"v_lshlrev_b32 v{B0}, {e}, v{MEMB}"); a(f"v_lshlrev_b32 v{B1}, 2, v1"); a("s_mov_b32 s23, 0")
    a.label(f"L_blp{e}")
    a(f"buffer_load_dword v2, v{B1}, s[4:7], s39 offen sc1"); a("s_add_u32 s23, s23, 1"); a(f"s_cmp_gt_u32 s23, {SPIN}"); a(f"s_cbranch_scc1 L_blq{e}")
    a("s_waitcnt vmcnt(0)"); a(f"v_and_b32 v2, v2, v{B0}"); a(f"v_cmp_ne_u32 vcc, v2, v{B0}"); a("s_nop 4"); a(f"s_cbranch_vccnz L_blp{e}")
    a.label(f"L_blq{e}")
    a("s_waitcnt vmcnt(0)")
    a(f"v_mov_b32 v{B0}, {e + 1}"); a(f"v_mul_u32_u24 v{B1}, {8*GS}, v1")
    a("s_mov_b64 exec, s[36:37]"); a(f"buffer_store_dword v{B0}, v{B1}, s[4:7], s40 offen sc1"); a("s_mov_b64 exec, -1")
    a.label(f"L_bl{e}")
def bar_wait(k, e):
    a = k.a
    a(f"s_cmp_eq_u32 s{W}, 0"); a(f"s_cbranch_scc0 L_bw{e}")
    a(f"v_mul_u32_u24 v{B1}, {GS}, v1"); a("s_mov_b32 s23, 0"); a("s_mov_b64 exec, s[36:37]")
    a.label(f"L_bwp{e}")
    a(f"buffer_load_dword v2, v{B1}, s[4:7], s41 offen sc1"); a("s_add_u32 s23, s23, 1"); a(f"s_cmp_gt_u32 s23, {SPIN}"); a(f"s_cbranch_scc1 L_bwq{e}")
    a("s_waitcnt vmcnt(0)"); a(f"v_cmp_gt_u32 vcc, {e + 1}, v2"); a("s_nop 4"); a("s_and_b64 exec, exec, vcc"); a(f"s_cbranch_execnz L_bwp{e}")
    a.label(f"L_bwq{e}")
    a("s_waitcnt vmcnt(0)"); a("s_mov_b64 exec, -1")
    a.label(f"L_bw{e}")
    a("s_waitcnt lgkmcnt(0)"); a("s_barrier")
def walker(k, name, wave):
    a = k.a
    if not OPT.get("walk", 1): return
    a(f"s_cmp_eq_u32 s{W}, {wave}"); a(f"s_cbranch_scc0 L_{name}_skip")
    a("s_mov_b64 exec, 0"); a(f"s_branch @WALK({name})")
    a.label(f"L_{name}_ret"); a("s_mov_b64 exec, -1")
    a.label(f"L_{name}_skip")
def grid_barrier(k, e, pre):
    k.stamp(f"b{e}_iss")
    k("s_waitcnt vmcnt(0) lgkmcnt(0)"); k.drained(); k("s_barrier")
    k.stamp(f"b{e}_arr")
    bar_signal(k, e); walker(k, f'wk{e}', 1); bar_leader(k, e); pre(); bar_wait(k, e)
    k.stamp(f"b{e}_rel")

def phase0(k, pre):
    a = k.a
    a("s_load_dwordx4 s[64:67], s[0:1], 96")
    a("s_load_dwordx16 s[44:59], s[0:1], 0")
    a("s_load_dwordx8 s[68:75], s[0:1], 64")
    a("v_lshrrev_b32 v2, 6, v0"); a("v_and_b32 v1, 63, v0"); a(f"v_readfirstlane_b32 s{W}, v2")
    a("v_and_b32 v3, 15, v0"); a("v_bfe_u32 v4, v0, 4, 2")
    if OPT.get("cpf", 1):
        a("s_getpc_b64 s[76:77]"); a.label("L_pc")
        a("s_add_u32 s76, s76, L_main-L_pc"); a("s_addc_u32 s77, s77, 0")
        if OPT.get("cpf", 1) == 1:
            a("s_lshr_b32 s78, s2, 3"); a("s_and_b32 s78, s78, 3"); a("s_mul_i32 s78, s78, 16384"); a("v_lshl_add_u32 v104, v0, 6, s78")
        else:
            a("v_lshlrev_b32 v104, 7, v0"); a("v_add_u32 v106, 0x8000, v104"); a("v_min_u32 v106, L_end-L_main, v106"); a("global_load_dword v107, v106, s[76:77]")
        a("v_min_u32 v104, L_end-L_main, v104")
        a("global_load_dword v105, v104, s[76:77]")
    a("s_getreg_b32 s32, hwreg(HW_REG_XCC_ID, 0, 4)"); a("s_and_b32 s32, s32, 7")
    a("s_and_b32 s18, s2, 7"); a("s_lshl_b32 s18, s18, 5"); a("s_lshr_b32 s25, s2, 3"); a("s_add_u32 s18, s18, s25")
    a("s_lshl_b32 s39, s32, 8"); a(f"s_add_u32 s39, s39, {BAR}"); a("s_add_u32 s38, s39, s2")
    a(f"s_mul_i32 s40, s32, {GS}"); a(f"s_add_u32 s40, s40, {GOFF}"); a(f"s_mul_i32 s41, s32, {8*GS}"); a(f"s_add_u32 s41, s41, {GOFF}")
    a("s_mov_b32 s33, 0"); a("s_mov_b64 s[36:37], 0")
    a("s_lshl_b32 s25, s18, 9"); a("v_lshl_add_u32 v5, v0, 1, s25")
    a(f"s_lshr_b32 s26, s{W}, 1"); a("s_lshl_b32 s27, s18, 1"); a("s_add_u32 s27, s27, s26"); a("s_lshl_b32 s27, s27, 1"); a("v_mov_b32 v6, s27")
    a("s_lshl_b32 s29, s2, 13"); a("v_lshlrev_b32 v7, 4, v1"); a("v_mov_b32 v8, 0")
    a(f"s_lshl_b32 s30, s{W}, 11"); a("s_add_u32 s30, s30, s29"); a("v_add_u32 v9, s30, v7")
    for r in range(56, 60): a(f"v_mov_b32 v{r}, 0")
    a(f"v_mov_b32 v{MEMB}, 0")
    a("s_and_b32 s19, s2, 15"); a("s_lshr_b32 s20, s2, 4"); a("s_cmp_lt_u32 s19, 12")
    a("s_cselect_b32 s31, 3, 1"); a("s_cselect_b32 s27, 0, 12"); a("s_lshl_b32 s31, s31, 10"); a("s_sub_u32 s21, s19, s27")
    a("s_lshl_b32 s27, s20, 5"); a("v_add_u32 v52, s27, v3"); a("v_mul_lo_u32 v52, v52, s31"); a("v_lshl_add_u32 v52, v4, 4, v52")
    a("s_lshl_b32 s27, s21, 8"); a(f"s_lshl_b32 s28, s{W}, 6"); a("s_add_u32 s27, s27, s28"); a("v_add_u32 v52, s27, v52")
    a("s_lshl_b32 s27, s31, 4"); a("v_add_u32 v53, s27, v52")
    a("s_and_b32 s22, s19, 3"); a("s_lshl_b32 s22, s22, 3"); a(f"s_lshl_b32 s27, s{W}, 1"); a("s_add_u32 s22, s22, s27")
    a("s_lshl_b32 s27, s22, 9"); a("v_add_u32 v54, s27, v7")
    a("s_waitcnt lgkmcnt(0)")
    k.stamp("karg")
    a("s_mov_b32 s4, s66"); a("s_mov_b32 s5, s67"); a(f"s_mov_b32 s6, {hex(WS_USED)}"); a("s_mov_b32 s7, 0x20000")
    a(f"s_cmp_eq_u32 s{W}, 3"); a("s_cbranch_scc0 L_p0a")
    a("s_mov_b64 exec, 1")
    a("buffer_store_byte v56, v56, s[4:7], s38 offen")
    a(f"s_mul_i32 s27, s2, {GS}"); a(f"s_add_u32 s27, s27, {GOFF}")
    a("s_cmp_lt_u32 s2, 64"); a("s_cbranch_scc0 L_p0b")
    a("buffer_store_dword v56, v56, s[4:7], s27 offen sc1")
    a.label("L_p0b")
    a("s_mov_b64 exec, -1")
    a.label("L_p0a")
    k.vm.append("clr")
    k.v("global_load_dwordx4 v[16:19], v9, s[44:45]", "x"); k.v("global_load_dwordx4 v[20:23], v9, s[44:45] offset:1024", "x")
    a("s_cmp_lt_u32 s19, 12"); a("s_cselect_b32 s34, s68, s72"); a("s_cselect_b32 s35, s69, s73")
    k.v("global_load_dwordx4 v[32:35], v52, s[34:35]", "w"); k.v("global_load_dwordx4 v[36:39], v53, s[34:35]", "w")
    k.v("global_load_dwordx4 v[40:43], v54, s[70:71]", "w")
    for i, sp in enumerate([46, 48, 50, 52]): k.v(f"global_load_ushort v{10+i}, v5, s[{sp}:{sp+1}]", "ssm")
    k.v("global_load_ushort v14, v6, s[54:55]", "ssm"); k.v("global_load_ushort v15, v6, s[56:57]", "ssm")
    a("s_mov_b32 s8, s74"); a("s_mov_b32 s9, s75"); a("s_mov_b32 s10, 0x200000"); a("s_mov_b32 s11, 0x20000")
    a("s_mov_b32 s12, s64"); a("s_mov_b32 s13, s65"); a("s_mov_b32 s14, 256"); a("s_mov_b32 s15, 0x20000")
    if OPT.get("tlb", 0):
        a("v_lshlrev_b32 v104, 20, v1"); a("v_add_u32 v104, 0x1ff80, v104")
        k.v("buffer_load_dword v105, v104, s[4:7], 0 offen sc1", "ssm"); k.v("buffer_load_dword v106, v104, s[8:11], 0 offen sc1", "ssm")
    a("s_branch L_main"); a.raw(".p2align 12"); a.label("L_main"); a.walk_begin("wkp")
    walker(k, "wkp", 2)
    k.stamp("iss", 2)
    a(f"s_cmp_eq_u32 s{W}, 3"); a("s_cbranch_scc0 L_p0g")
    a("s_lshl_b32 s27, s32, 5"); a("s_lshr_b32 s28, s2, 5"); a("s_lshl_b32 s28, s28, 2"); a("s_add_u32 s27, s27, s28")
    a("s_and_b32 s28, s2, 31"); a("s_lshl_b32 s28, 1, s28"); a("v_mov_b32 v55, s28")
    k.wait("clr")
    a("s_mov_b64 exec, 1"); a("buffer_atomic_or v55, v56, s[12:15], s27 offen"); a("s_mov_b64 exec, -1")
    a("s_branch L_p0h")
    a.label("L_p0g")
    a(f"s_mul_i32 s27, s2, {ZERO_SZ//256}"); a(f"s_add_u32 s27, s27, {ZERO}"); a("v_lshlrev_b32 v55, 4, v0"); a(f"v_cmp_gt_u32 vcc, {ZERO_SZ//4096}, v0")
    a("v_mov_b32 v60, 0x7f000000"); a("v_cndmask_b32 v55, v60, v55, vcc")
    a("buffer_store_dwordx4 v[56:59], v55, s[4:7], s27 offen sc1")
    a.label("L_p0h")
    k.vm.append("z")
    IM = PA + 12544; TB = IM + 81920; TS = 6400; GA = 108
    a("v_lshlrev_b32 v55, 3, v0")
    for j in range(12): a(f"v_add_u32 v{GA+j}, {j-3}, v55")
    for j in range(12): a(f"v_cvt_f32_i32 v{GA+j}, v{GA+j}")
    rnd_pairs(a, list(range(GA, GA+12)), list(range(120, 126)))
    for j in range(11): a(f"v_cvt_i32_f32 v{GA+j}, v{GA+j}")
    for j in range(3): a(f"v_min_u32 v{GA+j}, 3071, v{GA+j}")
    a(f"s_mov_b32 s27, {TB}")
    for j in range(11):
        a(f"v_lshrrev_b32 v120, 6, v{GA+j}"); a(f"v_lshl_add_u32 v{GA+j}, v{GA+j}, 1, s27"); a(f"v_lshl_add_u32 v{GA+j}, v120, 2, v{GA+j}")
    XL = PA; SL = PA + 8192; PL = PA + 8192 + 64
    a(f"s_lshl_b32 s27, s{W}, 11"); a(f"s_add_u32 s27, s27, {XL}"); a("v_add_u32 v9, s27, v7")
    a(f"s_lshl_b32 s27, s{W}, 10"); a(f"s_add_u32 s27, s27, {PL}"); a("v_add_u32 v53, s27, v7")
    a("v_lshrrev_b32 v54, 2, v1"); a("v_and_b32 v54, 3, v54"); a("v_lshlrev_b32 v54, 5, v54"); a("v_lshl_add_u32 v54, v4, 8, v54")
    a("v_and_b32 v55, 3, v0"); a("v_lshl_add_u32 v54, v55, 3, v54"); a("v_add_u32 v54, s27, v54")
    a(f"s_lshl_b32 s27, s{W}, 4"); a(f"s_add_u32 s27, s27, {SL}"); a("v_mov_b32 v55, s27")
    a("s_mov_b32 s60, 0x05040100"); a("s_mov_b32 s61, 0x07060302"); a("s_mov_b32 s62, 0x3f803f80")
    k.wait("x")
    k.stamp("x_in", 2)
    a("ds_write_b128 v9, v[16:19]"); a("ds_write_b128 v9, v[20:23] offset:1024")
    for j in range(4):
        for r in range(2):
            src = 16 + 4*r + j
            a(f"v_dot2_f32_bf16 v{24+r}, v{src}, s62, {'0' if j == 0 else 'v%d' % (24+r)}")
            a(f"v_dot2_f32_bf16 v{26+r}, v{src}, v{src}, {'0' if j == 0 else 'v%d' % (26+r)}")
    for m in ["row_shr:1", "row_shr:2", "row_shr:4", "row_shr:8"]:
        for r in range(24, 28): a(f"v_add_f32_dpp v{r}, v{r}, v{r} {m} row_mask:0xf bank_mask:0xf bound_ctrl:1")
    for r in range(24, 28): a(f"v_add_f32_dpp v{r}, v{r}, v{r} row_bcast:15 row_mask:0xa bank_mask:0xf")
    for r in range(24, 28): a(f"v_add_f32_dpp v{r}, v{r}, v{r} row_bcast:31 row_mask:0xc bank_mask:0xf")
    for r in range(2):
        a(f"v_mul_f32 v{24+r}, {f32(1/512)}, v{24+r}"); a(f"v_mov_b32 v{28+2*r}, {f32(1e-5)}"); a(f"v_fmac_f32 v{28+2*r}, {f32(1/512)}, v{26+r}")
    for r in range(2): a(f"v_fma_f32 v{28+2*r}, -v{24+r}, v{24+r}, v{28+2*r}")
    for r in range(2): a(f"v_max_f32 v{28+2*r}, {f32(1e-5)}, v{28+2*r}")
    for r in range(2): a(f"v_rsq_f32 v{28+2*r}, v{28+2*r}")
    for r in range(2): a(f"v_mul_f32 v{29+2*r}, -v{24+r}, v{28+2*r}")
    a("s_mov_b32 exec_lo, 0"); a("s_mov_b32 exec_hi, 0x80000000")
    a("ds_write_b128 v55, v[28:31]")
    a("s_mov_b64 exec, -1")
    k.wait("w")
    a("ds_write_b128 v53, v[40:43]")
    a(f"v_lshlrev_b32 v9, 2, v0"); a(f"v_mov_b32 v55, {SL}")
    a("s_waitcnt lgkmcnt(0)"); a("s_barrier")
    k.stamp("w_in", 2)
    for i in range(8): a(f"ds_read_b32 v{16+i}, v9 offset:{XL + 1024*i}")
    for i in range(4): a(f"ds_read_b128 v[{72+4*i}:{75+4*i}], v55 offset:{16*i}")
    a("ds_read_b64_tr_b16 v[40:41], v54"); a("ds_read_b64_tr_b16 v[42:43], v54 offset:128")
    a("v_lshlrev_b32 v55, 6, v3"); a("v_lshl_add_u32 v55, v4, 4, v55"); a(f"s_mul_i32 s29, s2, {RBS}"); a(f"s_lshl_b32 s27, s{W}, 12"); a("s_add_u32 s29, s29, s27")
    RC = 144
    a("s_waitcnt lgkmcnt(6)")
    for j in range(4):
        a(f"v_perm_b32 v{RC+j}, v{17+2*j}, v{16+2*j}, s60"); a(f"v_perm_b32 v{RC+4+j}, v{17+2*j}, v{16+2*j}, s61")
    for i in range(8): unpack(a, 88+2*i, 89+2*i, 16+i)
    a("s_waitcnt lgkmcnt(2)")
    for i in range(8): a(f"v_pk_fma_f32 v[{88+2*i}:{89+2*i}], v[{88+2*i}:{89+2*i}], v[{72+2*i}:{73+2*i}], v[{72+2*i}:{73+2*i}] op_sel:[0,0,1] op_sel_hi:[1,0,1]")
    for j in range(4):
        a(f"v_cvt_pk_bf16_f32 v{RC+8+j}, v{88+4*j}, v{90+4*j}"); a(f"v_cvt_pk_bf16_f32 v{RC+12+j}, v{89+4*j}, v{91+4*j}")
    transpose4(a, RC)
    for j in range(4): k.v(f"buffer_store_dwordx4 v[{RC+4*j}:{RC+4*j+3}], v55, s[4:7], s29 offen offset:{1024*j} sc1")
    a("s_waitcnt lgkmcnt(0)")
    a("s_cmp_lt_u32 s19, 8"); a("s_cbranch_scc1 L_p0i")
    a("v_and_b32 v44, 1, v3"); a("v_lshlrev_b32 v44, 4, v44"); a("v_mov_b32 v45, 0x3f80"); a("v_lshlrev_b32 v44, v44, v45")
    a("v_and_b32 v45, 1, v4"); a("v_lshlrev_b32 v45, 2, v45"); a("v_lshrrev_b32 v46, 1, v3"); a("v_sub_u32 v45, v46, v45")
    for i in range(4): a(f"v_cmp_eq_u32 vcc, {i}, v45"); a(f"v_cndmask_b32 v{40+i}, 0, v44, vcc")
    a.label("L_p0i")
    a("s_mov_b32 s60, 0"); a("s_mov_b32 s61, -1")
    for i in range(4): a(f"v_cndmask_b32 v{44+i}, 0, v{40+i}, s[60:61]")
    for i in range(4): a(f"v_cndmask_b32 v{40+i}, v{40+i}, 0, s[60:61]")
    D0 = 16
    for u in range(2):
        for h in range(2): a(f"v_mfma_f32_16x16x32_bf16 v[{D0+8*u+4*h}:{D0+8*u+4*h+3}], v[{32+4*h}:{35+4*h}], v[{40+4*u}:{43+4*u}], 0")
    a("s_cmp_lt_u32 s19, 12"); a("s_cbranch_scc0 L_p0j")
    a("s_lshl_b32 s27, s22, 4"); a("s_add_u32 s27, s27, s20"); a("s_mul_i32 s27, s27, 3"); a("s_lshr_b32 s28, s19, 2"); a("s_add_u32 s27, s27, s28")
    a("s_lshl_b32 s27, s27, 10"); a(f"s_add_u32 s27, s27, {WF}"); a("s_add_u32 s28, s27, 49152")
    a("v_lshlrev_b32 v52, 4, v1")
    a("s_branch L_p0k")
    a.label("L_p0j")
    a("s_lshl_b32 s27, s21, 2"); a(f"s_add_u32 s27, s27, s{W}"); a("s_lshl_b32 s27, s27, 4"); a("s_add_u32 s27, s27, s20"); a("s_lshl_b32 s27, s27, 11")
    a(f"s_add_u32 s27, s27, {WO}"); a("s_add_u32 s28, s27, 256")
    a("v_lshlrev_b32 v52, 4, v3"); a("v_lshl_add_u32 v52, v4, 9, v52")
    a.label("L_p0k")
    a("s_nop 4")
    a("s_cmp_lt_u32 s19, 4"); a("s_cbranch_scc0 L_p0l")
    for i in range(16): a(f"v_subrev_f32_dpp v{32+i}, v{D0+i}, v{D0+i} row_newbcast:0 row_mask:0xf bank_mask:0xf")
    a("s_mov_b32 s60, 0x00010001"); a("s_mov_b32 s61, s60")
    for i in range(16): a(f"v_cndmask_b32 v{D0+i}, v{32+i}, 1.0, s[60:61]")
    a.label("L_p0l")
    for u in range(2):
        for i in range(4): a(f"v_cvt_pk_bf16_f32 v{48+4*u+i if u == 0 else 68+i}, v{D0+8*u+2*i}, v{D0+8*u+2*i+1}")
        k.v(f"buffer_store_dwordx4 v[{48 if u == 0 else 68}:{51 if u == 0 else 71}], v52, s[4:7], s{27+u} offen sc1")
    k.stamp("pub")
    k.wait("ssm")
    a("v_and_b32 v54, 127, v0"); a("v_mul_u32_u24 v54, 160, v54"); a("s_mul_i32 s27, s26, 40960"); a(f"s_add_u32 s27, s27, {IM}"); a("v_add_u32 v54, s27, v54")
    for r in range(10, 16): a(f"v_lshlrev_b32 v{r}, 16, v{r}")
    a(f"v_mul_f32 v10, {hex(LOG2E)}, v10"); a(f"v_mul_f32 v14, {hex(LOG2E)}, v14")
    a("v_exp_f32 v10, v10"); a("v_exp_f32 v14, v14")
    a("v_cvt_pk_bf16_f32 v9, v10, v14"); unpack(a, 10, 14, 9)
    a("v_mul_f32 v10, v10, v14"); a("v_mul_f32 v11, v11, v14")
    a(f"v_mul_f32 v10, {hex(LOG2E | 0x80000000)}, v10"); a(f"v_mul_f32 v11, {hex(INV2PI)}, v11")
    E = {1: 16, 8: 18, 128: 20}; T0 = {1: 22, 8: 24, 128: 26}
    for s_, t in T0.items(): a(f"v_mul_f32 v{t}, {f32(s_)}, v10"); a(f"v_mul_f32 v{t+1}, {f32(s_)}, v11")
    for s_, t in T0.items(): a(f"v_fract_f32 v{t+1}, v{t+1}")
    for s_, t in T0.items(): a(f"v_exp_f32 v{t}, v{t}"); a(f"v_cos_f32 v{E[s_]}, v{t+1}"); a(f"v_sin_f32 v{E[s_]+1}, v{t+1}")
    for s_, t in T0.items(): a(f"v_pk_mul_f32 v[{E[s_]}:{E[s_]+1}], v[{E[s_]}:{E[s_]+1}], v[{t}:{t+1}] op_sel:[0,0] op_sel_hi:[1,0]")
    E[2], E[16], E[256] = 28, 30, 32
    X = [72 + 2*j for j in range(8)]; Y = [88 + 2*j for j in range(8)]
    tmp = [34, 36, 38, 40]; ti = [0]
    def cm(d, z, e):
        t = tmp[ti[0] % 4]; ti[0] += 1
        return cmul_ops(d, z, e, t)
    def par(*pairs):
        for p in pairs: a(p[0])
        for p in pairs: a(p[1])
    SR, SI = [128, 136], [132, 140]; sb = [0]
    def pack(slot, r0, r1, neg):
        b = sb[0]; s = "-" if neg else ""
        a(f"v_cvt_pk_bf16_f32 v{SR[b]+slot}, v{r0}, v{r1}"); a(f"v_cvt_pk_bf16_f32 v{SI[b]+slot}, {s}v{r0+1}, {s}v{r1+1}")
    def flush(grp):
        b = sb[0]
        a(f"ds_write_b128 v54, v[{SR[b]}:{SR[b]+3}] offset:{16*grp}"); a(f"ds_write_b128 v54, v[{SI[b]}:{SI[b]+3}] offset:{20480+16*grp}")
        sb[0] ^= 1
    a(f"v_mov_b32 v{X[0]}, v12"); a(f"v_mov_b32 v{X[0]+1}, v13"); a(f"v_mov_b32 v{Y[0]}, 1.0"); a(f"v_mov_b32 v{Y[0]+1}, 0")
    a(f"v_mov_b32 v{Y[1]}, v{E[8]}"); a(f"v_mov_b32 v{Y[1]+1}, v{E[8]+1}")
    par(cm(E[2], E[1], E[1]), cm(E[16], E[8], E[8]), cm(E[256], E[128], E[128]), cm(X[1], X[0], E[1]))
    for j in (2, 4, 6): par(cm(X[j], X[j-2], E[2]), cm(X[j+1], X[j-1], E[2]), cm(Y[j], Y[j-2], E[16]), cm(Y[j+1], Y[j-1], E[16]))
    for j in range(4): pack(j, X[2*j], X[2*j+1], True)
    flush(0)
    par(*[cm(X[j], X[j], E[128]) for j in range(4)]); par(*[cm(X[j], X[j], E[128]) for j in range(4, 8)])
    for j in range(4): pack(j, Y[2*j], Y[2*j+1], False)
    flush(6)
    a("s_waitcnt vmcnt(0)"); a("s_barrier"); k.drained()
    k.stamp("b0_arr")
    bar_signal(k, 0)
    for j in range(4): pack(j, X[2*j], X[2*j+1], True)
    flush(1)
    par(cm(Y[0], Y[6], E[16]), cm(Y[1], Y[7], E[16]), cm(X[1], X[0], E[256]), cm(X[3], X[2], E[256]))
    par(cm(X[5], X[4], E[256]), cm(X[7], X[6], E[256]), cm(X[0], X[0], E[128]), cm(X[2], X[2], E[128]))
    par(cm(X[4], X[4], E[128]), cm(X[6], X[6], E[128]), cm(Y[2], Y[0], E[16]), cm(Y[3], Y[1], E[16]))
    pack(0, X[0], X[2], True); pack(1, X[4], X[6], True); pack(2, X[1], X[3], True); pack(3, X[5], X[7], True)
    flush(2)
    par(cm(X[0], X[0], E[256]), cm(X[4], X[4], E[256]), cm(X[1], X[1], E[256]), cm(X[5], X[5], E[256]))
    par(cm(Y[4], Y[2], E[16]), cm(Y[5], Y[3], E[16]))
    pack(0, X[0], X[4], True); pack(1, X[1], X[5], True)
    par(cm(X[0], X[0], E[256]), cm(X[4], X[4], E[256]), cm(X[1], X[1], E[256]), cm(X[5], X[5], E[256]))
    par(cm(Y[6], Y[4], E[16]), cm(Y[7], Y[5], E[16]))
    pack(2, X[0], X[4], True); pack(3, X[1], X[5], True)
    flush(3)
    par(cm(X[0], X[0], E[256]), cm(X[1], X[1], E[256]), cm(E[2], E[256], E[256]))
    for j in range(4): pack(j, Y[2*j], Y[2*j+1], False)
    flush(7)
    par(cm(X[2], X[0], E[256]), cm(X[3], X[1], E[256]), cm(X[4], X[0], E[2]), cm(X[5], X[1], E[2]))
    par(cm(X[6], X[2], E[2]), cm(X[7], X[3], E[2]), cm(Y[0], X[4], E[2]))
    for j in range(4): pack(j, X[2*j], X[2*j+1], True)
    flush(4)
    pack(0, Y[0], Y[0], True)
    b = sb[0]; a(f"ds_write_b32 v54, v{SR[b]} offset:80"); a(f"ds_write_b32 v54, v{SI[b]} offset:{20480+80}")
    a(f"v_and_b32 v55, 1, v0"); a(f"v_mul_u32_u24 v55, {TS}, v55"); a(f"v_add_u32 v55, {TB + 6140 + 4*47}, v55"); a("ds_write_b32 v55, v56")
    a("v_lshrrev_b32 v55, 1, v3"); a("v_mul_u32_u24 v55, 4160, v55"); a("v_and_b32 v53, 1, v0"); a("v_lshl_add_u32 v55, v53, 4, v55"); a("ds_write_b128 v55, v[56:59]")
    a(f"s_and_b32 s25, s{W}, 1")
    a("v_lshrrev_b32 v54, 2, v1"); a("v_mul_u32_u24 v54, 160, v54"); a("v_and_b32 v55, 3, v0"); a("v_lshl_add_u32 v54, v55, 3, v54"); a("v_add_u32 v54, s27, v54")
    a("s_lshl_b32 s28, s25, 6"); a("v_add_u32 v55, s28, v54")
    a("v_and_b32 v24, 7, v3"); a("v_lshrrev_b32 v25, 3, v3"); a("v_lshl_add_u32 v24, v25, 7, v24")
    a("v_lshlrev_b32 v26, 7, v3"); a("v_add_u32 v26, 1024, v26")
    a("s_cmp_eq_u32 s25, 0"); a("s_cselect_b64 vcc, -1, 0"); a("v_cndmask_b32 v24, v26, v24, vcc")
    a("s_cselect_b64 s[60:61], 1, 0"); a("v_cndmask_b32 v15, 0, v15, s[60:61]")
    a("v_lshrrev_b32 v25, 2, v3"); a("v_lshlrev_b32 v25, 7, v25"); a("v_and_b32 v26, 3, v3"); a("v_lshl_add_u32 v25, v26, 1, v25"); a("v_add_u32 v25, 256, v25")
    a("v_lshrrev_b32 v26, 1, v3"); a("v_lshlrev_b32 v26, 7, v26"); a("v_and_b32 v27, 1, v3"); a("v_lshl_add_u32 v26, v27, 2, v26")
    a("v_cmp_gt_u32 vcc, 8, v3"); a("v_cndmask_b32 v25, v26, v25, vcc")
    a(f"s_mul_i32 s28, s26, {TS}"); a(f"s_add_u32 s28, s28, {TB}")
    for r in (24, 25):
        a(f"v_lshl_add_u32 v{r}, v4, 5, v{r}"); a(f"v_lshrrev_b32 v26, 6, v{r}"); a(f"v_lshl_add_u32 v{r}, v{r}, 1, s28"); a(f"v_lshl_add_u32 v{r}, v26, 2, v{r}")
    a("v_add_f32 v14, v14, v14")
    k.stamp("st1")
    a("s_waitcnt lgkmcnt(0)"); a("s_barrier")
    a(f"s_cmp_eq_u32 s{W}, 0"); a("s_cbranch_scc0 L_p0m")
    a("v_lshlrev_b32 v9, 2, v1"); a("buffer_load_dword v8, v9, s[12:15], 0 offen sc1")
    a.label("L_p0m")
    FY, FX0, FX1 = 128, 192, 224
    def frag(dst, vb, s_, col):
        o = (s_ // 4) * 20480 + (s_ % 4) * 32 * 160 + col
        a(f"ds_read_b64_tr_b16 v[{dst}:{dst+1}], v{vb} offset:{o}"); a(f"ds_read_b64_tr_b16 v[{dst+2}:{dst+3}], v{vb} offset:{o + 16*160}")
    def mm(s_):
        c0 = "0" if s_ == 0 else "v[28:31]"; c1 = "0" if s_ == 0 else "v[16:19]"
        a(f"v_mfma_f32_16x16x32_bf16 v[28:31], v[{FY+4*s_}:{FY+4*s_+3}], v[{FX0+4*s_}:{FX0+4*s_+3}], {c0}")
        a(f"v_mfma_f32_16x16x32_bf16 v[16:19], v[{FY+4*s_}:{FY+4*s_+3}], v[{FX1+4*s_}:{FX1+4*s_+3}], {c1}")
    for s_ in range(8):
        frag(FY+4*s_, 54, s_, 96); frag(FX0+4*s_, 55, s_, 0); frag(FX1+4*s_, 55, s_, 32)
        if s_ >= 2: a("s_waitcnt lgkmcnt(12)"); mm(s_ - 2)
    a("s_waitcnt lgkmcnt(6)"); mm(6); a("s_waitcnt lgkmcnt(0)"); mm(7)
    def twrite(acc, addr, skip):
        for i in range(4):
            if skip and i == 0: a(f"v_fma_f32 v{acc}, v{acc}, v14, v15")
            else: a(f"v_mul_f32 v{acc+i}, v{acc+i}, v14")
        a(f"v_cvt_pk_bf16_f32 v{acc}, v{acc}, v{acc+1}"); a(f"v_cvt_pk_bf16_f32 v{acc+2}, v{acc+2}, v{acc+3}")
        a(f"ds_write_b16 v{addr}, v{acc}"); a(f"ds_write_b16_d16_hi v{addr}, v{acc} offset:16")
        a(f"ds_write_b16 v{addr}, v{acc+2} offset:32"); a(f"ds_write_b16_d16_hi v{addr}, v{acc+2} offset:48")
    twrite(28, 24, True)
    a("s_cmp_eq_u32 s25, 0"); a("s_cbranch_scc0 L_p0n")
    twrite(16, 25, False)
    a.label("L_p0n")
    k.stamp("st2", 2)
    a("s_waitcnt lgkmcnt(0)"); a("s_barrier")
    for c in range(2):
        for j in range(11): a(f"ds_read_u16 v{16+12*c+j}, v{GA+j} offset:{TS*c}")
    a(f"s_cmp_eq_u32 s{W}, 0"); a("s_cbranch_scc0 L_regx")
    a("s_mov_b32 s23, 0")
    a.label("L_reg")
    a("s_waitcnt vmcnt(0)")
    a("v_bcnt_u32_b32 v12, v8, 0")
    for m in ["row_shr:1", "row_shr:2", "row_shr:4", "row_shr:8"]: a(f"v_add_u32_dpp v12, v12, v12 {m} row_mask:0xf bank_mask:0xf bound_ctrl:1")
    a("v_add_u32_dpp v12, v12, v12 row_bcast:15 row_mask:0xa bank_mask:0xf"); a("v_add_u32_dpp v12, v12, v12 row_bcast:31 row_mask:0xc bank_mask:0xf")
    a("v_readlane_b32 s28, v12, 63"); a("s_cmp_eq_u32 s28, 256"); a("s_cbranch_scc1 L_regq")
    a("s_sleep 8")
    a("buffer_load_dword v8, v9, s[12:15], 0 offen sc1")
    a("s_add_u32 s23, s23, 1"); a(f"s_cmp_gt_u32 s23, {SPIN}"); a("s_cbranch_scc0 L_reg")
    a("s_waitcnt vmcnt(0)")
    a.label("L_regq")
    a("v_cmp_ne_u32 vcc, 0, v8"); a("s_mov_b64 s[28:29], vcc")
    a("v_lshlrev_b32 v12, 3, v1"); a("v_lshrrev_b64 v[10:11], v12, s[28:29]"); a("v_and_b32 v10, 0xff, v10")
    a("v_cmp_ne_u32 vcc, 0, v10"); a("s_nop 1"); a("s_and_b32 s36, vcc_lo, 0xff")
    a("s_lshl_b32 s28, s32, 3"); a("v_lshrrev_b32 v12, 3, v1"); a("v_add_u32 v12, s28, v12"); a("v_lshlrev_b32 v12, 2, v12")
    a("ds_bpermute_b32 v13, v12, v8"); a("v_and_b32 v12, 7, v1"); a("v_lshlrev_b32 v12, 2, v12"); a("s_waitcnt lgkmcnt(0)")
    a("v_lshrrev_b32 v13, v12, v13"); a("v_and_b32 v13, 15, v13")
    a("v_cmp_ne_u32 vcc, 0, v13"); a("s_nop 1"); a("s_ff1_i32_b64 s28, vcc"); a("s_and_b32 s28, s28, 63")
    a("s_nop 3"); a("v_readlane_b32 s29, v13, s28"); a("s_nop 1"); a("s_ff1_i32_b32 s29, s29"); a("s_lshl_b32 s28, s28, 2"); a("s_add_u32 s28, s28, s29")
    a("s_cmp_eq_u32 s28, s2"); a("s_cselect_b32 s33, 1, 0")
    a("s_mov_b32 s28, 0x00204081"); a("v_mul_lo_u32 v13, v13, s28"); a(f"v_and_b32 v{MEMB}, 0x01010101, v13")
    a.label("L_regx")
    k.stamp("reg", 2)
    bar_leader(k, 0)
    a("v_lshlrev_b32 v72, 4, v0")
    for c in range(2):
        a(f"s_waitcnt lgkmcnt({11 if c == 0 else 4})")
        for e in range(4):
            o = 40 + 16*c + 4*e
            for j in range(4):
                lo = 16 + 12*c + 3 - e + 2*j
                a(f"v_lshl_or_b32 v{o+j}, v{lo+1}, 16, v{lo}")
            a(f"ds_write_b128 v72, v[{o}:{o+3}] offset:{(4*c+e)*4160 + 32}")
    k.stamp("st3")
    a("s_waitcnt lgkmcnt(0)"); a("s_barrier")
    walker(k, "wk0", 1); pre()
    bar_wait(k, 0)
    k.stamp("b0_rel")

class Conv:
    UB = PA; RAWB = PA + 9216; XB = PA + 9216 + 8192; WST = PA + 9216 + 8192 + 16384
    ACC = 16; FA = [60, 124]; FB = [92, 156]; VA, VB = 9, 11
    def __init__(self, k, L): self.k = k; self.L = L
    def ra(self, b, rr, q):
        F = self.FA[b] + 4*q
        return [f"ds_read_b64_tr_b16 v[{F}:{F+1}], v{self.VA} offset:{8+512*q+64*rr}", f"ds_read_b64_tr_b16 v[{F+2}:{F+3}], v{self.VA} offset:{512*q+64*rr}"]
    def rb(self, b, rr, j):
        F = self.FB[b] + 4*j
        return [f"ds_read_b128 v[{F}:{F+3}], v{self.VB} offset:{512*j+64*(3-rr)}"]
    def pre(self):
        a = self.k.a; L = self.L; UB = self.UB
        xout = XT1 if L == 0 else XT3
        a(f"s_lshr_b32 s25, s{W}, 1"); a(f"s_and_b32 s26, s{W}, 1")
        if L == 0:
            a("v_lshrrev_b32 v5, 2, v1"); a(f"v_mul_u32_u24 v6, {RBS}, v5"); a("v_and_b32 v7, 3, v0"); a("v_lshl_add_u32 v6, v7, 4, v6")
            a(f"s_mul_i32 s28, s{W}, {64*RBS}"); a("s_lshl_b32 s27, s18, 6"); a("s_add_u32 s28, s28, s27")
            for j in range(1, 4): a(f"s_add_u32 s{28+j}, s28, {j*16*RBS}")
            a("s_mov_b32 s44, s28")
            a(f"v_mov_b32 v10, {self.RAWB}"); a(f"v_mov_b32 v11, {self.RAWB + 4096}"); a("v_cmp_eq_u32 vcc, 1, v7"); a("v_cndmask_b32 v10, v10, v11, vcc")
            a(f"v_mov_b32 v11, {UB + 512}"); a("v_cmp_eq_u32 vcc, 2, v7"); a("v_cndmask_b32 v10, v10, v11, vcc")
            a(f"v_mov_b32 v11, {UB + 4608 + 512}"); a("v_cmp_eq_u32 vcc, 3, v7"); a("v_cndmask_b32 v10, v10, v11, vcc")
            a("v_lshl_add_u32 v10, v5, 4, v10"); a(f"s_lshl_b32 s27, s{W}, 10"); a("v_add_u32 v10, s27, v10")
            a("s_lshr_b32 s35, s2, 4"); a("s_lshl_b32 s35, s35, 1"); a("s_add_u32 s35, s35, s26"); a("s_mul_i32 s35, s35, 49152"); a(f"s_add_u32 s35, s35, {WF}")
            a(f"s_mul_i32 s27, s25, {22*1024}"); a("s_add_u32 s45, s35, s27"); a("s_add_u32 s45, s45, 4096")
            a(f"s_mul_i32 s46, s26, {44*1024}"); a("s_add_u32 s46, s46, s27"); a(f"s_add_u32 s46, s46, {self.WST}")
        else:
            a("v_lshrrev_b32 v6, 2, v0"); a("v_lshlrev_b32 v6, 15, v6"); a("v_and_b32 v7, 3, v0"); a("v_lshl_add_u32 v6, v7, 4, v6")
            a("s_lshl_b32 s31, s18, 7"); a(f"s_add_u32 s31, s31, {X2B}")
            a("v_lshlrev_b32 v10, 4, v0")
            for j in range(4): a(f"s_mov_b32 s{44+j}, {ST3 + 4096*j}")
        a("v_lshlrev_b32 v7, 4, v1")
        for r in range(12, 16): a(f"v_mov_b32 v{r}, 0")
        a("v_lshrrev_b32 v9, 5, v1"); a("v_mul_u32_u24 v9, 4608, v9"); a("v_and_b32 v11, 31, v0"); a("v_lshl_add_u32 v9, v11, 4, v9")
        a(f"ds_write_b128 v9, v[12:15] offset:{UB}")
        a("v_lshrrev_b32 v9, 2, v3"); a("v_mul_u32_u24 v9, 4160, v9"); a("v_and_b32 v11, 3, v0"); a("v_lshl_add_u32 v9, v11, 3, v9")
        a("v_lshlrev_b32 v11, 4, v4"); a("v_sub_u32 v9, v9, v11")
        a("s_mul_i32 s27, s25, 16640"); a("s_lshl_b32 s28, s26, 8"); a("s_add_u32 s27, s27, s28"); a("s_add_u32 s27, s27, 56")
        a("v_add_u32 v9, s27, v9")
        a("v_lshl_add_u32 v11, v3, 5, v11")
        a("s_mul_i32 s27, s25, 4608"); a("s_sub_u32 s27, s27, s28"); a(f"s_add_u32 s27, s27, {UB + 480 - 192}")
        a("v_add_u32 v11, s27, v11")
        for q in range(8):
            for t in self.ra(0, 0, q): a(t)
        a(f"s_lshl_b32 s27, s{W}, 11"); a(f"s_add_u32 s27, s27, {self.RAWB}"); a("v_lshlrev_b32 v8, 5, v3"); a("v_lshl_add_u32 v8, v4, 3, v8"); a("v_add_u32 v8, s27, v8")
        a(f"s_lshl_b32 s27, s{W}, 12"); a(f"s_add_u32 s27, s27, {self.XB}"); a("v_add_u32 v48, s27, v7"); a("v_xor_b32 v49, 0x1000, v48") if self.XB % 8192 == 0 else (
            a(f"s_xor_b32 s27, s{W}, 1"), a("s_lshl_b32 s27, s27, 12"), a(f"s_add_u32 s27, s27, {self.XB}"), a("v_add_u32 v49, s27, v7"))
        a("v_and_b32 v50, 1, v4"); a("v_lshlrev_b32 v50, 18, v50"); a("v_lshrrev_b32 v51, 3, v3"); a("v_lshl_add_u32 v50, v51, 17, v50")
        a("v_and_b32 v51, 7, v3"); a("v_lshl_add_u32 v50, v51, 5, v50"); a("v_lshrrev_b32 v51, 1, v4"); a("v_lshl_add_u32 v50, v51, 4, v50")
        a("s_lshl_b32 s34, s18, 9"); a("s_lshl_b32 s27, s25, 8"); a("s_add_u32 s34, s34, s27"); a("s_lshl_b32 s27, s26, 20"); a("s_add_u32 s34, s34, s27")
        a(f"s_add_u32 s34, s34, {xout}"); a(f"s_add_u32 s43, s34, {1 << 19}")
        a(f"v_mov_b32 v12, {f32(1/512)}"); a(f"v_mov_b32 v14, {f32(1e-5)}")
    def run(self):
        k = self.k; a = k.a; L = self.L; UB, RAWB = self.UB, self.RAWB; ACC, FA, FB = self.ACC, self.FA, self.FB
        S1, S2, XA = 16, 24, 32
        wq = [0]
        def wq_load(n=1):
            if L != 0: return
            for _ in range(n):
                i = wq[0]
                if i >= 22: return
                if i % 4 == 0: a(f"s_add_u32 m0, s46, {1024*i}")
                k.v(f"buffer_load_dwordx4 v7, s[4:7], s45 offen offset:{1024*(i%4)} lds", "wq")
                if i % 4 == 3: a("s_add_u32 s45, s45, 4096")
                wq[0] += 1
        if L == 0:
            for j in range(4): k.v(f"buffer_load_dwordx4 v[{16+4*j}:{19+4*j}], v6, s[4:7], s{44 if j == 0 else 28+j} offen sc1", f"r{j}")
            for j in range(4):
                k.wait(f"r{j}"); a(f"ds_write_b128 v10, v[{16+4*j}:{19+4*j}] offset:{256*j}")
            for i in range(4): k.v(f"buffer_load_dwordx4 a[{4*i}:{4*i+3}], v7, s[4:7], s35 offen offset:{1024*i}", "wq")
        else:
            for j in range(4): k.v(f"buffer_load_dwordx4 v[{S1+4*j}:{S1+4*j+3}], v10, s[4:7], s{44+j} offen sc1", "st")
            k.v(f"buffer_load_dwordx4 v[{XA}:{XA+3}], v6, s[4:7], s31 offen sc1", "x"); k.v(f"buffer_load_dwordx4 v[{XA+4}:{XA+7}], v6, s[4:7], s31 offen offset:64 sc1", "x")
            k.wait("st")
            k.stamp(f"c{L}_st", 2)
            for i in range(0, 8, 2): a(f"v_pk_mul_f32 v[{S1+i}:{S1+i+1}], v[{S1+i}:{S1+i+1}], v[12:13] op_sel_hi:[1,0]")
            for i in range(0, 8, 2): a(f"v_pk_fma_f32 v[{S2+i}:{S2+i+1}], v[{S2+i}:{S2+i+1}], v[12:13], v[14:15] op_sel_hi:[1,0,0]")
            for i in range(0, 8, 2): a(f"v_pk_fma_f32 v[{S2+i}:{S2+i+1}], v[{S1+i}:{S1+i+1}], v[{S1+i}:{S1+i+1}], v[{S2+i}:{S2+i+1}] neg_lo:[1,0,0] neg_hi:[1,0,0]")
            for i in range(8): a(f"v_max_f32 v{S2+i}, v14, v{S2+i}")
            for i in range(8): a(f"v_rsq_f32 v{S2+i}, v{S2+i}")
            for i in range(0, 8, 2): a(f"v_pk_mul_f32 v[{S1+i}:{S1+i+1}], v[{S1+i}:{S1+i+1}], v[{S2+i}:{S2+i+1}] neg_lo:[1,0] neg_hi:[1,0]")
            k.wait("x")
            for c in range(2):
                x = 40
                for j in range(4): unpack(a, x+2*j, x+2*j+1, XA+4*c+j)
                for j in range(4): a(f"v_pk_fma_f32 v[{x+2*j}:{x+2*j+1}], v[{x+2*j}:{x+2*j+1}], v[{S2+2*j}:{S2+2*j+1}], v[{S1+2*j}:{S1+2*j+1}]")
                for j in range(4): a(f"v_cvt_pk_bf16_f32 v{52+4*c+j}, v{x+2*j}, v{x+2*j+1}")
                a(f"ds_write_b128 v10, v[{52+4*c}:{55+4*c}] offset:{UB + 4608*c + 512}")
            for c in range(2): a(f"ds_write_b128 v10, v[{XA+4*c}:{XA+4*c+3}] offset:{RAWB + 4096*c}")
        def reads(rr):
            b = rr % 2; Lr = self.ra(b, rr, 0)
            for j in range(8): Lr += self.rb(b, rr, j)
            for q in range(1, 8): Lr += self.ra(b, rr, q)
            return Lr
        def mf(b, q, jt, first=False):
            d = ACC + 4*jt
            return f"v_mfma_f32_16x16x32_bf16 v[{d}:{d+3}], v[{FA[b]+4*q}:{FA[b]+4*q+3}], v[{FB[b]+4*(jt-q)}:{FB[b]+4*(jt-q)+3}], " + ("0" if first else f"v[{d}:{d+3}]")
        k.stamp(f"c{L}_u", 2)
        a("s_waitcnt lgkmcnt(0)"); a("s_barrier")
        for j in range(8):
            for t in self.rb(0, 0, j): a(t)
        nm = 0; ev = OPT.get("wq_every", 5)
        for rr in range(3):
            b = rr % 2; nxt = reads(rr+1); kk = 0
            for q in range(8):
                for jt in range(q, 8):
                    if rr == 0 and q == 0: a("s_waitcnt lgkmcnt(7)")
                    elif q == 0 and jt == 0: a("s_waitcnt lgkmcnt(0)")
                    a(mf(b, q, jt, rr == 0 and q == 0))
                    if kk < len(nxt): a(nxt[kk])
                    kk += 1; nm += 1
                    if nm % ev == 0: wq_load()
        wq_load(48)
        RAW = 60; XR = 68; PT = 84; T8 = list(range(100, 108))
        vm0 = list(k.vm)
        a("s_waitcnt lgkmcnt(0)")
        a("s_cmp_eq_u32 s26, 0"); a(f"s_cbranch_scc0 L_c{L}h1")
        for rh in range(2):
            k.vm = list(vm0)
            if rh == 1: a.label(f"L_c{L}h1"); a.force_stub()
            own = list(range(4*rh, 4*rh+4)); send = list(range(4-4*rh, 8-4*rh))
            seq = [(q, jt) for q in range(8) for jt in send if q <= jt] + [(q, jt) for q in range(8) for jt in own if q <= jt]
            done_at = {jt: max(i for i, (q, j) in enumerate(seq) if j == jt) for jt in send}
            side = [f"ds_read_b64 v[{RAW+2*i}:{RAW+2*i+1}], v8 offset:{512*i}" for i in range(4)]
            up = []
            for i in range(8): up += [f"v_lshlrev_b32 v{XR+2*i}, 16, v{RAW+i}", f"v_and_b32 v{XR+2*i+1}, 0xffff0000, v{RAW+i}"]
            for i, (q, jt) in enumerate(seq):
                a(mf(1, q, jt))
                if i < 4: a(side[i])
                if i == 7: a("s_waitcnt lgkmcnt(0)")
                if 8 <= i < 24: a(up[i-8])
                for n_, js in enumerate(send):
                    if i == done_at[js] + 8: a(f"ds_write_b128 v48, v[{ACC+4*js}:{ACC+4*js+3}] offset:{1024*n_}")
            k.stamp(f"c{L}_mm", 2)
            a("s_waitcnt lgkmcnt(0)"); a("s_barrier")
            for i in range(4): a(f"ds_read_b128 v[{PT+4*i}:{PT+4*i+3}], v49 offset:{1024*i}")
            O = ACC + 16*rh
            for i in range(8): a(f"v_pk_add_f32 v[{O+2*i}:{O+2*i+1}], v[{O+2*i}:{O+2*i+1}], v[{XR+2*i}:{XR+2*i+1}]")
            for p in range(2):
                a(f"s_waitcnt lgkmcnt({2 - 2*p})")
                for i in range(4*p, 4*p+4): a(f"v_pk_add_f32 v[{O+2*i}:{O+2*i+1}], v[{O+2*i}:{O+2*i+1}], v[{PT+2*i}:{PT+2*i+1}]")
                for i in range(4*p, 4*p+4): a(f"v_cvt_pk_bf16_f32 v{T8[i]}, v{O+2*i}, v{O+2*i+1}")
                o = T8[4*p]
                a(f"v_permlane16_swap_b32 v{o}, v{o+2}"); a(f"v_permlane16_swap_b32 v{o+1}, v{o+3}")
                k.v(f"buffer_store_dwordx4 v[{o}:{o+3}], v50, s[4:7], s{34 if p == 0 else 43} offen sc1")
            if rh == 0: a(f"s_branch L_c{L}e")
        a.label(f"L_c{L}e")

def sm_minmax(a, acc, t):
    mx, mn = t, t + 2
    a(f"v_max3_f32 v{mx}, v{acc}, v{acc+1}, v{acc+2}"); a(f"v_min3_f32 v{mn}, v{acc}, v{acc+1}, v{acc+2}")
    for i in range(3, 15, 2):
        a(f"v_max3_f32 v{mx}, v{mx}, v{acc+i}, v{acc+i+1}"); a(f"v_min3_f32 v{mn}, v{mn}, v{acc+i}, v{acc+i+1}")
    a(f"v_max_f32 v{mx}, v{mx}, v{acc+15}"); a(f"v_min_f32 v{mn}, v{mn}, v{acc+15}")
def sm_exp(a, acc, P, M, c, t, hook=lambda: None):
    mx, mn = t, t + 2
    a(f"v_mul_f32 v{mx}, v{mx}, v{c}"); a(f"v_mul_f32 v{mn}, v{mn}, v{c}")
    for i in range(0, 16, 2):
        a(f"v_pk_fma_f32 v[{P+i}:{P+i+1}], v[{acc+i}:{acc+i+1}], v[{c}:{c+1}], v[{mx}:{mx+1}] op_sel_hi:[1,0,0] neg_lo:[0,0,1] neg_hi:[0,0,1]")
        a(f"v_pk_fma_f32 v[{M+i}:{M+i+1}], v[{acc+i}:{acc+i+1}], v[{c}:{c+1}], v[{mn}:{mn+1}] op_sel_hi:[1,0,0] neg_lo:[1,0,0] neg_hi:[1,0,0]")
    for i in range(16):
        a(f"v_exp_f32 v{P+i}, v{P+i}")
        if i % 4 == 3: hook()
    for i in range(16):
        a(f"v_exp_f32 v{M+i}, v{M+i}")
        if i % 4 == 3: hook()
def sm_norm(a, P, M, t):
    sp, sm = t, t + 2
    a(f"v_pk_add_f32 v[{sp}:{sp+1}], v[{P}:{P+1}], v[{P+2}:{P+3}]"); a(f"v_pk_add_f32 v[{sm}:{sm+1}], v[{M}:{M+1}], v[{M+2}:{M+3}]")
    for i in range(4, 16, 2):
        a(f"v_pk_add_f32 v[{sp}:{sp+1}], v[{sp}:{sp+1}], v[{P+i}:{P+i+1}]"); a(f"v_pk_add_f32 v[{sm}:{sm+1}], v[{sm}:{sm+1}], v[{M+i}:{M+i+1}]")
    a(f"v_add_f32 v{sp}, v{sp}, v{sp+1}"); a(f"v_add_f32 v{sm}, v{sm}, v{sm+1}")
    a(f"v_rcp_f32 v{sp}, v{sp}"); a(f"v_rcp_f32 v{sm}, v{sm}")
    for i in range(0, 16, 2):
        a(f"v_pk_mul_f32 v[{P+i}:{P+i+1}], v[{P+i}:{P+i+1}], v[{sp}:{sp+1}] op_sel_hi:[1,0]")
        a(f"v_pk_mul_f32 v[{M+i}:{M+i+1}], v[{M+i}:{M+i+1}], v[{sm}:{sm+1}] op_sel_hi:[1,0]")
def transpose4(a, R):
    for i in range(4):
        a(f"v_permlane32_swap_b32 v{R+i}, v{R+8+i}"); a(f"v_permlane32_swap_b32 v{R+4+i}, v{R+12+i}")
    for i in range(4):
        a(f"v_permlane16_swap_b32 v{R+i}, v{R+4+i}"); a(f"v_permlane16_swap_b32 v{R+8+i}, v{R+12+i}")

class Qkv:
    NS = 6; SLOT = 16384; RB = PA; IMG = PA + 6 * 16384; RS = 224; STAT = PA + 6 * 16384 + 128 * 224
    def __init__(self, k, L): self.k = k; self.L = L; assert self.STAT + 512 <= 163840 and self.RB % 256 == 0
    def pre(self):
        a = self.k.a; L = self.L; RB, SLOT = self.RB, self.SLOT
        xin = [XT1, XT3][L]
        a(f"s_and_b32 s20, s{W}, 1"); a(f"s_lshr_b32 s21, s{W}, 1")
        if L == 0:
            a(f"s_mul_i32 s27, s20, {44*1024}"); a(f"s_add_u32 s27, s27, {Conv.WST}"); a("v_lshl_add_u32 v5, v1, 4, s27")
            for i in range(44): a(f"ds_read_b128 a[{16+4*i}:{19+4*i}], v5 offset:{1024*i}")
            a("s_waitcnt lgkmcnt(0)")
            a("s_cmp_eq_u32 s21, 1"); a("s_cbranch_scc0 L_cs")
            for r in range(12, 16): a(f"v_mov_b32 v{r}, 0x3f803f80")
            for s_ in range(16):
                for j in range(3): a(f"v_mfma_f32_16x16x32_bf16 v[{16+4*j}:{19+4*j}], a[{(3*s_+j)*4}:{(3*s_+j)*4+3}], v[12:15], " + ("0" if s_ == 0 else f"v[{16+4*j}:{19+4*j}]"))
            a("s_mul_i32 s27, s20, 192"); a(f"s_add_u32 s27, s27, {CSB}"); a("v_lshl_add_u32 v5, v4, 4, s27")
            for j in range(3): a(f"ds_write_b128 v5, v[{16+4*j}:{19+4*j}] offset:{64*j}")
            a.label("L_cs")
            a("s_bfe_u32 s35, s2, 0x20003"); a("s_lshl_b32 s35, s35, 2"); a(f"s_add_u32 s35, s35, s{W}"); a("s_lshl_b32 s35, s35, 15"); a(f"s_add_u32 s35, s35, {WO}")
            if OPT.get("rot", 1): a("s_bfe_u32 s42, s2, 0x20005"); a("s_lshl_b32 s42, s42, 11")
            else: a("s_mov_b32 s42, 0")
        a("s_and_b32 s25, s2, 7"); a("s_lshl_b32 s25, s25, 1"); a("s_bfe_u32 s26, s2, 0x10003"); a("s_add_u32 s25, s25, s26")
        a("s_lshr_b32 s26, s2, 4")
        a("v_lshrrev_b32 v5, 1, v3"); a("v_xor_b32 v5, v5, v4"); a("v_lshlrev_b32 v5, 5, v5"); a("v_lshl_add_u32 v5, v4, 8, v5")
        a("v_and_b32 v6, 1, v0"); a("v_lshl_add_u32 v5, v6, 4, v5"); a("v_xor_b32 v6, 0x80, v5")
        a(f"s_lshl_b32 s28, s{W}, 12"); a("s_lshl_b32 s27, s25, 17"); a("s_add_u32 s28, s28, s27"); a(f"s_add_u32 s28, s28, {xin}")
        a(f"s_lshl_b32 s34, s{W}, 12"); a(f"s_add_u32 s34, s34, {RB}")
        a("v_lshlrev_b32 v7, 4, v1")
        a("v_lshrrev_b32 v8, 2, v1")
        a("v_and_b32 v9, 7, v8"); a(f"s_lshl_b32 s27, s{W}, 1"); a("v_xor_b32 v9, s27, v9"); a("v_lshlrev_b32 v9, 5, v9")
        a("v_lshl_add_u32 v8, v8, 8, v9"); a("v_and_b32 v9, 3, v0"); a("v_lshl_add_u32 v8, v9, 3, v8"); a(f"v_add_u32 v8, {RB}, v8")
        for t in range(1, 4): a(f"v_xor_b32 v{8+t}, {32*t}, v8")
        for t in range(4): a(f"v_add_u32 v{12+t}, {3*SLOT}, v{8+t}")
        a(f"s_lshl_b32 s27, s{W}, 7"); a(f"s_add_u32 s27, s27, {self.STAT}"); a("v_lshl_add_u32 v184, v3, 2, s27")
        a("s_lshl_b32 s27, s20, 5"); a("v_xor_b32 v185, s27, v1"); a("s_lshl_b32 s27, s21, 6"); a("v_add_u32 v185, s27, v185")
        a(f"v_lshlrev_b32 v186, 2, v185"); a(f"v_add_u32 v186, {self.STAT}, v186")
        a("s_mul_i32 s27, s20, 192"); a(f"s_add_u32 s27, s27, {CSB}"); a("v_mov_b32 v187, s27")
        a("s_mov_b32 s56, 0xcccccccc"); a("s_mov_b32 s57, s56"); a("s_mov_b32 s58, 0xaaaaaaaa"); a("s_mov_b32 s59, s58")
    def run(self):
        k = self.k; a = k.a; L = self.L; NS, SLOT, IMG, RS = self.NS, self.SLOT, self.IMG, self.RS
        kv = KV[L]; phiq = PHIQ[L]
        def dma1(c, i):
            if i == 0: a(f"s_add_u32 m0, s34, {(c % NS) * SLOT}")
            k.v(f"buffer_load_dwordx4 v{5 + i % 2}, s[4:7], s28 offen offset:{1024*i} sc1 lds", f"x{c}")
            if c < 7 and i == 3: a(f"s_add_u32 s28, s28, 16384")
        UP = OPT.get("q_up", 2)
        for c in range(UP):
            for i in range(4): dma1(c, i)
        wo = [0]
        def wo_load(n=1):
            if L != 0: return
            for _ in range(n):
                i = wo[0]
                if i >= 32: return
                p, w_, b_ = i // 8, (i // 2) % 4, i % 2
                if i % 2 == 0: a(f"s_xor_b32 s43, s42, {p*2048}"); a("s_add_u32 s43, s43, s35"); (a(f"s_add_u32 s43, s43, {w_*8192}") if w_ else None)
                k.v(f"buffer_load_dwordx4 {wo_reg(i)}, v7, s[4:7], s43 offen offset:{1024*b_}", "wo")
                wo[0] += 1
        ACC = [16, 32, 48]; AS2 = 64; FX = [72, 88]; CS = 136
        def reads(s_):
            c = s_ // 2; sl = c % NS; b = s_ % 2; base = 8 if sl < 3 else 12; o = (sl % 3) * SLOT + (s_ % 2) * 8192
            Lr = []
            for t in range(4):
                Lr.append(f"ds_read_b64_tr_b16 v[{FX[b]+4*t}:{FX[b]+4*t+1}], v{base+t} offset:{o}")
                Lr.append(f"ds_read_b64_tr_b16 v[{FX[b]+4*t+2}:{FX[b]+4*t+3}], v{base+t} offset:{o+4096}")
            return Lr
        sched = {}
        nxtc = UP
        FAST = OPT.get("q_fast", 0)
        for s_ in range(16):
            if nxtc < 8 and (FAST or nxtc <= s_ // 2 + 3) and (nxtc < NS or s_ >= 2*(nxtc - NS) + 2): sched[s_] = nxtc; nxtc += 1
        sync = {1: 1, 3: 2, 5: 4, 9: 7} if FAST == 1 else ({1: 1, 3: 2, 5: 3, 7: 5, 11: 7} if FAST == 2 else {2*c+1: c+1 for c in range(7)})
        k.wait("x0"); a("s_barrier")
        k.stamp(f"q{L}_x0", 2)
        for t in reads(0): a(t)
        for s_ in range(16):
            b = s_ % 2; c = s_ // 2; first = s_ == 0
            nxt = reads(s_+1) if s_ < 15 else [f"ds_read_b128 v[{CS+4*i}:{CS+4*i+3}], v187 offset:{16*i}" for i in range(12)]
            M = []
            for t in range(4):
                x = f"v[{FX[b]+4*t}:{FX[b]+4*t+3}]"
                if t < 2: M.append(f"v_mfma_f32_16x16x32_bf16 v[{AS2+4*t}:{AS2+4*t+3}], {x}, {x}, " + ("0" if first else f"v[{AS2+4*t}:{AS2+4*t+3}]"))
                for j in range(3):
                    d = ACC[j] + 4*t
                    M.append(f"v_mfma_f32_16x16x32_bf16 v[{d}:{d+3}], a[{(3*s_+j)*4}:{(3*s_+j)*4+3}], {x}, " + ("0" if first else f"v[{d}:{d+3}]"))
            if not first: a("s_waitcnt lgkmcnt(0)")
            rd0 = 1 if s_ in sync else 0
            for i, m in enumerate(M):
                if first and i in (0, 4, 8, 11): a(f"s_waitcnt lgkmcnt({ {0: 6, 4: 4+4, 8: 2+8, 11: 8}[i] })")
                a(m)
                if rd0 and i == rd0:
                    k.wait(f"x{sync[s_]}"); a("s_barrier")
                if 0 <= i - rd0 < len(nxt): a(nxt[i - rd0])
                if s_ in sched and i in (2, 5, 8, 11): dma1(sched[s_], (i - 2) // 3)
                if s_ >= OPT.get("wo_from", 9) and i in (5, 12): wo_load()
        k.stamp(f"q{L}_mm")
        for u in range(2):
            r = AS2 + 4*u
            a(f"v_cndmask_b32 v{r}, v{r}, v{r+2}, s[56:57]"); a(f"v_cndmask_b32 v{r+1}, v{r+1}, v{r+3}, s[56:57]"); a(f"v_cndmask_b32 v{r}, v{r}, v{r+1}, s[58:59]")
        a("s_mov_b32 exec_lo, 0x00f0000f"); a("s_mov_b32 exec_hi, 0xf0000f00")
        a(f"ds_write_b32 v184, v{AS2}"); a(f"ds_write_b32 v184, v{AS2+4} offset:64")
        a("s_mov_b64 exec, -1")
        transpose4(a, ACC[0]); wo_load(2)
        a("s_waitcnt lgkmcnt(0)"); a("s_barrier")
        MU, S2, R, C, TK, TQ = 64, 66, 66, 76, 68, 72
        a(f"ds_read_b32 v{S2}, v186")
        a(f"v_mul_f32 v{MU}, {f32(1/512)}, v{ACC[0]}")
        transpose4(a, ACC[1]); wo_load(2)
        def centre(j):
            for i in range(0, 16, 2): a(f"v_pk_fma_f32 v[{ACC[j]+i}:{ACC[j]+i+1}], v[{CS+16*j+i}:{CS+16*j+i+1}], v[{MU}:{MU+1}], v[{ACC[j]+i}:{ACC[j]+i+1}] op_sel_hi:[1,0,1] neg_lo:[0,1,0] neg_hi:[0,1,0]")
        centre(1)
        a("s_waitcnt lgkmcnt(0)")
        a(f"v_mov_b32 v{C}, {f32(1e-5)}"); a(f"v_fmac_f32 v{C}, {f32(1/512)}, v{S2}"); a(f"v_fma_f32 v{S2}, -v{MU}, v{MU}, v{C}"); a(f"v_max_f32 v{S2}, {f32(1e-5)}, v{S2}")
        a(f"v_rsq_f32 v{R}, v{S2}")
        sm_minmax(a, ACC[1], TK)
        a(f"v_mul_f32 v{C}, {hex(LOG2E)}, v{R}")
        P, M_ = 80, 96; O = 112; FV, FP = 136, 152
        EPI = OPT.get("epi", 0)
        def k_part():
            sm_exp(a, ACC[1], P, M_, C, TK, lambda: wo_load())
            sm_norm(a, P, M_, TK); wo_load(2)
            a(f"v_mul_u32_u24 v5, {RS}, v185"); a("s_lshl_b32 s27, s20, 6"); a(f"s_add_u32 s27, s27, {IMG}"); a("v_add_u32 v8, s27, v5")
            a("s_lshl_b32 s27, s20, 5"); a(f"s_add_u32 s27, s27, {IMG + 128}"); a("v_add_u32 v9, s27, v5")
            for h in range(4):
                src = P if h < 2 else M_ - 16
                for i in range(4): a(f"v_cvt_pk_bf16_f32 v{ACC[1]+4*h+i}, v{src+8*h+2*i}, v{src+8*h+2*i+1}")
                a(f"ds_write_b128 v8, v[{ACC[1]+4*h}:{ACC[1]+4*h+3}] offset:{16*h}")
            wo_load(2); transpose4(a, ACC[2]); centre(2)
            for i in range(8): a(f"v_pk_mul_f32 v[{ACC[2]+2*i}:{ACC[2]+2*i+1}], v[{ACC[2]+2*i}:{ACC[2]+2*i+1}], v[{R}:{R+1}] op_sel_hi:[1,0]")
            for h in range(2):
                for i in range(4): a(f"v_cvt_pk_bf16_f32 v{128+4*h+i}, v{ACC[2]+8*h+2*i}, v{ACC[2]+8*h+2*i+1}")
                a(f"ds_write_b128 v9, v[{128+4*h}:{131+4*h}] offset:{16*h}")
            wo_load(32)
            a("v_lshrrev_b32 v5, 2, v1"); a(f"v_mul_u32_u24 v5, {RS}, v5"); a("v_and_b32 v10, 3, v0"); a("v_lshl_add_u32 v5, v10, 3, v5")
            a("v_add_u32 v8, s27, v5")
            a("s_lshl_b32 s27, s20, 6"); a("s_lshl_b32 s28, s21, 5"); a("s_add_u32 s27, s27, s28"); a(f"s_add_u32 s27, s27, {IMG}"); a("v_add_u32 v9, s27, v5")
            for r in range(12, 16): a(f"v_mov_b32 v{r}, 0x3f803f80")
            a("s_lshl_b32 s30, s26, 1"); a("s_add_u32 s30, s30, s20"); a("s_lshl_b32 s30, s30, 1"); a("s_add_u32 s30, s30, s21")
            a("s_lshl_b32 s31, s30, 7"); a(f"s_add_u32 s31, s31, {kv + 65536}"); a("s_lshl_b32 s30, s30, 10"); a(f"s_add_u32 s30, s30, {kv}")
            a("v_lshlrev_b32 v10, 2, v3"); a("v_lshl_add_u32 v11, v4, 8, v10")
        def kv_reads():
            k.stamp(f"q{L}_img", 2)
            a("s_waitcnt lgkmcnt(0)"); a("s_barrier")
            for ks in range(4):
                for hf in range(2):
                    a(f"ds_read_b64_tr_b16 v[{FV+4*ks+2*hf}:{FV+4*ks+2*hf+1}], v8 offset:{(32*ks+16*hf)*RS}")
                    a(f"ds_read_b64_tr_b16 v[{FP+4*ks+2*hf}:{FP+4*ks+2*hf+1}], v9 offset:{(32*ks+16*hf)*RS}")
        def kv_mfma():
            for ks in range(4):
                a(f"s_waitcnt lgkmcnt({12 - 4*ks})")
                a(f"v_mfma_f32_16x16x32_bf16 v[168:171], v[{FV+4*ks}:{FV+4*ks+3}], v[{FP+4*ks}:{FP+4*ks+3}], " + ("0" if ks == 0 else "v[168:171]"))
                a(f"v_mfma_f32_16x16x32_bf16 v[172:175], v[12:15], v[{FP+4*ks}:{FP+4*ks+3}], " + ("0" if ks == 0 else "v[172:175]"))
        def kv_out():
            for x_, y_ in ((168, 170), (169, 171)): a(f"v_mov_b32 v{x_+8}, v{x_}")
            for x_, y_ in ((168, 170), (169, 171)): a(f"v_mov_b32_dpp v{x_}, v{y_} row_ror:8 row_mask:0xf bank_mask:0xc")
            for x_, y_ in ((168, 170), (169, 171)): a(f"v_mov_b32_dpp v{y_}, v{x_+8} row_ror:8 row_mask:0xf bank_mask:0x3")
            for x_, y_ in ((168, 169), (170, 171)): a(f"v_mov_b32 v{x_+8}, v{x_}")
            for x_, y_ in ((168, 169), (170, 171)): a(f"v_mov_b32_dpp v{x_}, v{y_} row_ror:4 row_mask:0xf bank_mask:0xa")
            for x_, y_ in ((168, 169), (170, 171)): a(f"v_mov_b32_dpp v{y_}, v{x_+8} row_ror:12 row_mask:0xf bank_mask:0x5")
            for i in range(4): k.v(f"buffer_atomic_add_f32 v{168+i}, v11, s[4:7], s30 offen offset:{64*i}")
            a("s_mov_b64 exec, 0xffff")
            k.v("buffer_atomic_add_f32 v172, v10, s[4:7], s31 offen")
            a("s_mov_b64 exec, -1")
            k.stamp(f"q{L}_kv", 2)
        def q_exp():
            sm_minmax(a, ACC[0], TQ); sm_exp(a, ACC[0], P, M_, C, TQ)
        def q_out():
            a("v_lshrrev_b32 v2, 5, v185"); a("v_lshlrev_b32 v2, 16, v2"); a("v_and_b32 v6, 31, v185"); a("v_lshl_add_u32 v2, v6, 4, v2")
            a("s_lshl_b32 s29, s26, 1"); a("s_add_u32 s29, s29, s20"); a("s_lshl_b32 s29, s29, 11"); a("s_lshl_b32 s22, s25, 18"); a("s_add_u32 s29, s29, s22"); a(f"s_add_u32 s29, s29, {phiq}")
            for g in range(4):
                a(f"v_cvt_pk_bf16_f32 v{O+4*g}, v{P+4*g}, v{P+4*g+1}"); a(f"v_cvt_pk_bf16_f32 v{O+4*g+1}, v{P+4*g+2}, v{P+4*g+3}")
                a(f"v_cvt_pk_bf16_f32 v{O+4*g+2}, v{M_+4*g}, v{M_+4*g+1}"); a(f"v_cvt_pk_bf16_f32 v{O+4*g+3}, v{M_+4*g+2}, v{M_+4*g+3}")
                k.v(f"buffer_store_dwordx4 v[{O+4*g}:{O+4*g+3}], v2, s[4:7], s29 offen offset:{512*g} sc1")
        if EPI == 0:
            k_part(); centre(0); kv_reads(); kv_mfma(); kv_out(); q_exp(); sm_norm(a, P, M_, TQ); q_out()
        elif EPI == 1:
            centre(0); q_exp(); sm_norm(a, P, M_, TQ); q_out(); k_part(); kv_reads(); kv_mfma(); kv_out()
        elif EPI == 2:
            k_part(); centre(0); q_exp(); kv_reads(); sm_norm(a, P, M_, TQ); kv_mfma(); q_out(); kv_out()
        elif EPI == 3:
            k_part(); centre(0); sm_minmax(a, ACC[0], TQ); kv_reads(); sm_exp(a, ACC[0], P, M_, C, TQ); kv_mfma(); sm_norm(a, P, M_, TQ); kv_out(); q_out()

class Outp:
    ORS = 1040; OB = PA; RB = PA + 32 * 1040; TB = PA + 32 * 1040 + 4 * 2048; TRS = 72; ZB = PA + 32 * 1040 + 4 * 2048 + 10240; SB = PA + 32 * 1040 + 4 * 2048 + 10240 + 2048
    def __init__(self, k, L): self.k = k; self.L = L
    def pre(self):
        k = self.k; a = k.a; L = self.L; ORS = self.ORS
        xin = [XT1, XT3][L]; kv = KV[L]; phiq = PHIQ[L]
        a("s_and_b32 s25, s2, 7"); a("s_lshl_b32 s25, s25, 3"); a("s_lshr_b32 s26, s2, 5"); a("s_add_u32 s25, s25, s26")
        a("s_bfe_u32 s26, s2, 0x20003"); a("s_lshl_b32 s26, s26, 2"); a(f"s_add_u32 s26, s26, s{W}")
        a("v_lshrrev_b32 v9, 2, v1"); a("v_lshlrev_b32 v9, 8, v9"); a("v_and_b32 v10, 3, v0"); a("v_lshl_add_u32 v9, v10, 4, v9")
        a("s_lshr_b32 s30, s25, 2"); a("s_lshl_b32 s30, s30, 17"); a("s_and_b32 s31, s25, 3"); a("s_lshl_b32 s31, s31, 6"); a("s_add_u32 s30, s30, s31")
        a("s_lshl_b32 s31, s26, 13"); a("s_add_u32 s30, s30, s31"); a(f"s_add_u32 s30, s30, {xin}")
        a(f"s_add_u32 s31, s30, {16*256 - 1024}")
        a(f"s_lshl_b32 s34, s{W}, 11"); a(f"s_add_u32 s34, s34, {self.RB}"); a("s_mov_b32 m0, s34")
        k.v("buffer_load_dwordx4 v9, s[4:7], s30 offen sc1 lds", "res"); k.v("buffer_load_dwordx4 v9, s[4:7], s31 offen offset:1024 sc1 lds", "res")
        a("v_lshrrev_b32 v5, 2, v1"); a("v_lshlrev_b32 v5, 7, v5"); a("v_lshl_add_u32 v5, v10, 4, v5")
        a("s_lshr_b32 s27, s42, 10"); a("v_lshrrev_b32 v11, 3, v1"); a("v_xor_b32 v11, s27, v11")
        a("v_lshrrev_b32 v7, 2, v11"); a("v_lshlrev_b32 v7, 8, v7"); a("v_and_b32 v11, 3, v11"); a("v_lshl_add_u32 v11, v11, 4, v7"); a("v_lshl_add_u32 v11, v10, 6, v11")
        a("v_bfe_u32 v7, v0, 2, 1"); a("v_lshl_add_u32 v11, v7, 3, v11"); a(f"s_lshl_b32 s27, s{W}, 9"); a(f"s_add_u32 s27, s27, {self.ZB}"); a("v_add_u32 v11, s27, v11")
        a("v_lshlrev_b32 v187, 4, v10"); a("v_lshl_add_u32 v187, v4, 6, v187"); a("v_add_u32 v187, s27, v187")
        a("v_lshlrev_b32 v6, 4, v10"); a("v_lshl_add_u32 v6, v4, 6, v6"); a("v_lshrrev_b32 v7, 2, v3"); a("v_lshl_add_u32 v6, v7, 8, v6")
        a("v_lshlrev_b32 v7, 4, v3"); a("v_lshl_add_u32 v7, v4, 9, v7")
        a(f"s_lshl_b32 s27, s{W}, 11"); a(f"s_add_u32 s27, s27, {kv + 65536}")
        a(f"s_lshl_b32 s28, s{W}, 14"); a("s_lshl_b32 s29, s25, 16"); a("s_add_u32 s29, s29, s28"); a(f"s_add_u32 s29, s29, {phiq}"); a(f"s_add_u32 s28, s28, {kv}")
        a("s_lshl_b32 s43, s42, 1")
        for p in range(4):
            a(f"s_xor_b32 s35, s43, {p*4096}"); a(f"s_add_u32 s{52+p}, s29, s35"); a(f"s_add_u32 s{44+p}, s28, s35")
        a(f"v_mul_u32_u24 v10, {ORS}, v3"); a("v_lshl_add_u32 v10, v4, 4, v10"); a(f"s_lshl_b32 s35, s{W}, 6"); a(f"s_add_u32 s35, s35, {self.OB}"); a("v_add_u32 v10, s35, v10")
        a("v_and_b32 v184, 31, v0"); a(f"v_mul_u32_u24 v185, {ORS}, v184"); a("v_lshrrev_b32 v186, 5, v1"); a("v_lshl_add_u32 v185, v186, 4, v185"); a(f"v_add_u32 v185, {self.OB}, v185")
        a("v_bfe_u32 v8, v0, 2, 2"); a("v_lshlrev_b32 v8, 6, v8"); a("v_lshl_add_u32 v8, v186, 8, v8"); a("v_and_b32 v9, 1, v4"); a("v_lshl_add_u32 v8, v9, 5, v8")
        a("v_and_b32 v9, 3, v0"); a("v_lshl_add_u32 v8, v9, 3, v8"); a("v_add_u32 v8, s34, v8")
        a(f"s_mov_b32 s35, {f32(1e-6)}")
    def run(self):
        k = self.k; a = k.a; L = self.L; ORS, TRS, TB = self.ORS, self.TRS, self.TB; final = L == 1
        ACC = 16; KVR = 32; PQ = 96; ZF = 160; NUM = 168; TMP = [12, 14, 2, 188]
        k.v("buffer_load_dwordx4 v[16:19], v5, s[4:7], s27 offen sc1", "z")
        def pair_loads(p):
            for h in (2*p, 2*p+1):
                for j in range(2): k.v(f"buffer_load_dwordx4 v[{KVR+8*h+4*j}:{KVR+8*h+4*j+3}], v6, s[4:7], s{44+p} offen offset:{2048*(h%2)+1024*j} sc1", f"p{p}")
                for t in range(2): k.v(f"buffer_load_dwordx4 v[{PQ+8*h+4*t}:{PQ+8*h+4*t+3}], v7, s[4:7], s{52+p} offen offset:{2048*(h%2)+256*t} sc1", f"p{p}")
        PRE = OPT.get("o_pre", 2)
        for p in range(PRE):
            pair_loads(p)
            if p < PRE - 1 and OPT.get("o_bar", 1): a("s_barrier")
        k.wait("z")
        a("v_cvt_pk_bf16_f32 v16, v16, v17"); a("v_cvt_pk_bf16_f32 v17, v18, v19"); a("ds_write_b64 v11, v[16:17]")
        a("s_waitcnt lgkmcnt(0)")
        for grp in range(2): a(f"ds_read_b128 v[{ZF+4*grp}:{ZF+4*grp+3}], v187 offset:{256*grp}")
        k.stamp(f"o{L}_z", 2)
        fbr = lambda p, i: (KVR + 16*p + 4*i) if i < 4 else (PQ + 16*p + 4*(i-4))
        for p in range(4):
            k.wait(f"p{p}")
            for u in range(2):
                kr = KVR + 16*p + 8*u
                for i in range(4): a(f"v_cvt_pk_bf16_f32 v{kr+i}, v{kr+2*i}, v{kr+2*i+1}")
            if p + PRE < 4: pair_loads(p + PRE)
            if p == 0: a("s_waitcnt lgkmcnt(0)")
            for u in range(2):
                h = 2*p + u; kr = KVR + 8*h
                for t in range(2): a(f"v_mfma_f32_16x16x32_bf16 v[{NUM+8*u+4*t}:{NUM+8*u+4*t+3}], v[{kr}:{kr+3}], v[{PQ+8*h+4*t}:{PQ+8*h+4*t+3}], 0")
            for u in range(2):
                h = 2*p + u; kr = KVR + 8*h
                for t in range(2): a(f"v_mfma_f32_16x16x32_bf16 v[{kr+4-4*t}:{kr+7-4*t}], v[{ZF+4*(h//4)}:{ZF+4*(h//4)+3}], v[{PQ+8*h+4*t}:{PQ+8*h+4*t+3}], 0")
            V = []
            ut = [(u, t) for u in range(2) for t in range(2)]
            for n_, (u, t) in enumerate(ut): V.append(f"v_add_f32 v{TMP[n_]}, s35, v{KVR+16*p+8*u+4-4*t+((2*p+u)%4)}")
            for n_ in range(4): V.append(f"v_rcp_f32 v{TMP[n_]}, v{TMP[n_]}")
            oq = PQ + 16*p
            for t in range(2):
                for u in range(2):
                    n_ = 2*u + t; b = NUM + 8*u + 4*t
                    for i in range(4): V.append(f"v_mul_f32 v{b+i}, v{b+i}, v{TMP[n_]}")
                    for i in range(2): V.append(f"v_cvt_pk_bf16_f32 v{oq+4*t+2*u+i}, v{b+2*i}, v{b+2*i+1}")
                V.append(f"ds_write_b128 v10, v[{oq+4*t}:{oq+4*t+3}] offset:{16*ORS*t + 256*p}")
            rd = lambda q: [f"ds_read_b128 v[{fbr(q,i)}:{fbr(q,i)+3}], v185 offset:{256*q + 32*i}" for i in range(8)]
            big = lambda q, i: f"v_mfma_f32_32x32x16_bf16 v[{ACC}:{ACC+15}], {wo_reg(8*q+i)}, v[{fbr(q,i)}:{fbr(q,i)+3}], " + ("0" if 8*q+i == 0 else f"v[{ACC}:{ACC+15}]")
            if p >= 1: a("s_waitcnt lgkmcnt(0)"); a("s_barrier")
            per = [4, 3, 4, 5, 4, 5, 4, 5]; vi = 0
            for i in range(8):
                if p >= 2: a(big(p-2, i))
                if p >= 1: a(rd(p-1)[i])
                for t_ in V[vi:vi+per[i]]: a(t_)
                vi += per[i]
            assert vi == len(V)
        k.stamp(f"o{L}_o", 2)
        RR = 160; XR = 32
        a("s_waitcnt lgkmcnt(0)"); a("s_barrier")
        tail = rd(3) + [f"ds_read_b64_tr_b16 v[{RR+2*i}:{RR+2*i+1}], v8 offset:{512*i}" for i in range(4)]
        for i in range(8):
            a(big(2, i))
            for t_ in tail[2*i:2*i+2]: a(t_)
        a("s_waitcnt lgkmcnt(0)")
        for i in range(8):
            a(big(3, i)); unpack(a, XR+2*i, XR+2*i+1, RR+i)
        k.stamp(f"o{L}_mm", 2)
        T8 = list(range(48, 56))
        for i in range(8): a(f"v_pk_add_f32 v[{ACC+2*i}:{ACC+2*i+1}], v[{ACC+2*i}:{ACC+2*i+1}], v[{XR+2*i}:{XR+2*i+1}]")
        for i in range(8): a(f"v_cvt_pk_bf16_f32 v{T8[i]}, v{ACC+2*i}, v{ACC+2*i+1}")
        if final:
            a(f"s_mul_i32 s27, s{W}, {32*80}"); a(f"s_add_u32 s27, s27, {TB}")
            a(f"v_mul_u32_u24 v8, 80, v184"); a("v_lshl_add_u32 v8, v186, 3, v8"); a("v_add_u32 v8, s27, v8")
            for i in range(4): a(f"ds_write_b64 v8, v[{T8[2*i]}:{T8[2*i]+1}] offset:{16*i}")
            a("v_lshrrev_b32 v5, 2, v1"); a("v_mul_u32_u24 v8, 80, v5"); a("v_lshl_add_u32 v8, v9, 4, v8"); a("v_add_u32 v8, s27, v8")
            a("v_lshlrev_b32 v5, 10, v5"); a("v_lshl_add_u32 v5, v9, 4, v5")
            a("s_lshl_b32 s27, s25, 15"); a("s_lshl_b32 s28, s26, 6"); a("s_add_u32 s27, s27, s28"); a("s_add_u32 s28, s27, 16384")
            a("s_waitcnt lgkmcnt(0)")
            for p in range(2): a(f"ds_read_b128 v[{RR+4*p}:{RR+4*p+3}], v8 offset:{16*80*p}")
            for p in range(2):
                a(f"s_waitcnt lgkmcnt({1-p})"); k.v(f"buffer_store_dwordx4 v[{RR+4*p}:{RR+4*p+3}], v5, s[8:11], s{27+p} offen")
        else:
            a(f"s_mul_i32 s27, s{W}, {32*TRS}"); a(f"s_add_u32 s27, s27, {TB}")
            a(f"v_mul_u32_u24 v8, {TRS}, v184"); a("v_lshl_add_u32 v8, v186, 3, v8"); a("v_add_u32 v8, s27, v8")
            for i in range(4): a(f"ds_write_b64 v8, v[{T8[2*i]}:{T8[2*i]+1}] offset:{16*i}")
            a("v_bfe_u32 v8, v0, 2, 2"); a("v_lshl_add_u32 v8, v4, 3, v8"); a(f"v_mul_u32_u24 v8, {TRS}, v8"); a("v_lshl_add_u32 v8, v9, 3, v8"); a("v_add_u32 v8, s27, v8")
            for i in range(8): unpack(a, XR+2*i, XR+2*i+1, T8[i])
            a("s_waitcnt lgkmcnt(0)")
            for p in range(2):
                for hf in range(2): a(f"ds_read_b64_tr_b16 v[{RR+4*p+2*hf}:{RR+4*p+2*hf+1}], v8 offset:{32*p + 4*TRS*hf}")
            a("v_lshlrev_b32 v5, 6, v3"); a("v_lshl_add_u32 v5, v4, 4, v5")
            a("s_lshl_b32 s27, s25, 15"); a("s_lshl_b32 s28, s26, 11"); a("s_add_u32 s27, s27, s28"); a(f"s_add_u32 s27, s27, {X2B}")
            a(f"v_pk_add_f32 v[12:13], v[{XR}:{XR+1}], v[{XR+2}:{XR+3}]"); a(f"v_pk_mul_f32 v[14:15], v[{XR}:{XR+1}], v[{XR}:{XR+1}]")
            a(f"v_pk_fma_f32 v[14:15], v[{XR+2}:{XR+3}], v[{XR+2}:{XR+3}], v[14:15]")
            for i in range(2, 8):
                a(f"v_pk_add_f32 v[12:13], v[12:13], v[{XR+2*i}:{XR+2*i+1}]"); a(f"v_pk_fma_f32 v[14:15], v[{XR+2*i}:{XR+2*i+1}], v[{XR+2*i}:{XR+2*i+1}], v[14:15]")
                if i == 4:
                    a("s_waitcnt lgkmcnt(2)"); k.v(f"buffer_store_dwordx4 v[{RR}:{RR+3}], v5, s[4:7], s27 offen sc1")
                    a("s_waitcnt lgkmcnt(0)"); k.v(f"buffer_store_dwordx4 v[{RR+4}:{RR+7}], v5, s[4:7], s27 offen offset:1024 sc1")
            a("v_add_f32 v12, v12, v13"); a("v_add_f32 v14, v14, v15")
            a("v_lshlrev_b32 v13, 2, v9"); a("v_lshl_add_u32 v13, v186, 13, v13"); a("v_bfe_u32 v15, v0, 2, 1"); a("v_lshl_add_u32 v13, v15, 12, v13")
            a("v_bfe_u32 v15, v0, 3, 2"); a("v_lshl_add_u32 v13, v15, 4, v13"); a("s_lshl_b32 s28, s25, 6"); a(f"s_add_u32 s28, s28, {ST3}")
            a("v_permlane32_swap_b32 v12, v14"); a("v_add_f32 v12, v12, v14")
            a(f"s_lshl_b32 s27, s{W}, 2"); a(f"s_add_u32 s27, s27, {self.SB}"); a("v_lshl_add_u32 v14, v1, 4, s27"); a("ds_write_b32 v14, v12")
            a(f"v_lshlrev_b32 v14, 4, v1"); a(f"v_add_u32 v14, {self.SB}, v14")
            a("s_waitcnt lgkmcnt(0)"); a("s_barrier")
            a(f"s_cmp_eq_u32 s{W}, 3"); a("s_cbranch_scc0 L_ost")
            a("ds_read_b128 v[16:19], v14"); a("s_waitcnt lgkmcnt(0)")
            a("v_add_f32 v16, v16, v17"); a("v_add_f32 v18, v18, v19"); a("v_add_f32 v12, v16, v18")
            k.v("buffer_atomic_add_f32 v12, v13, s[4:7], s28 offen")
            a.label("L_ost")

def build():
    name = NAME + "_kernel"
    k = K(); a = k.a
    a.raw(kernel_header(name))
    a("s_cmp_ge_u32 s2, 256"); a("s_cbranch_scc1 L_end")
    if PROF: a("s_memrealtime s[96:97]"); a(f"v_mov_b32 v{PV}, 0"); k.stamp("start")
    ph = [Conv(k, 0), Qkv(k, 0), Outp(k, 0), Conv(k, 1), Qkv(k, 1), Outp(k, 1)]
    phase0(k, ph[0].pre)
    for i, p in enumerate(ph):
        a.walk_begin(f"wk{i}"); p.run()
        if i < 5: grid_barrier(k, i + 1, ph[i+1].pre)
    if OPT.get("xbar"):
        w_ = OPT.get("walk", 1); OPT["walk"] = 0
        for e in range(6, 6 + OPT["xbar"]): grid_barrier(k, e, lambda: None)
        OPT["walk"] = w_
    if OPT.get("xloop"):
        a("s_mov_b32 s27, 0"); a.label("L_xl")
        for i in range(50): a("v_add3_u32 v5, v5, v6, v7")
        a("s_add_u32 s27, s27, 1"); a(f"s_cmp_lt_u32 s27, {OPT['xloop']}"); a("s_cbranch_scc1 L_xl")
    if OPT.get("xlat"):
        a("s_lshl_b32 s27, s2, 12"); a(f"s_add_u32 s27, s27, {OPT.get('xoff', PHIQ[0])}"); a("s_xor_b32 s27, s27, 0x100000"); a("v_mov_b32 v5, 0")
        for i in range(OPT["xlat"]): a(f"buffer_load_dword v6, v5, s[4:7], s27 offen offset:{128*i} sc1"); a("s_waitcnt vmcnt(0)")
    if PROF:
        k.stamp("issued"); a("s_waitcnt vmcnt(0)"); k.stamp("end")
        a("s_memrealtime s[98:99]"); a("s_waitcnt lgkmcnt(0)"); a(f"v_writelane_b32 v{PV}, s96, 62"); a(f"v_writelane_b32 v{PV}, s98, 63")
        a("s_lshl_b32 s27, s2, 10"); a(f"s_add_u32 s27, s27, {STAMP}"); a("v_lshlrev_b32 v5, 2, v0")
        a(f"buffer_store_dword v{PV}, v5, s[4:7], s27 offen")
        if OPT.get("dbgout"):
            sel = ["karg", "pub", "b0_arr", "st3", "b0_rel", "b1_iss", "b1_rel", "b2_iss", "b2_rel", "b3_iss", "b3_rel", "b4_rel", "b5_rel", "end"]
            a("s_cmp_eq_u32 s2, 7"); a("s_cbranch_scc0 L_end"); a(f"s_cmp_eq_u32 s{W}, 0"); a("s_cbranch_scc0 L_end")
            a(f"v_readlane_b32 s28, v{PV}, 0")
            for i, nm in enumerate(sel):
                a(f"v_readlane_b32 s29, v{PV}, {k.names.index(nm)}"); a("s_nop 1"); a("s_sub_u32 s29, s29, s28"); a(f"v_writelane_b32 v6, s29, {i}")
            a("s_sub_u32 s29, s98, s96"); a("v_writelane_b32 v6, s29, 14"); a("v_writelane_b32 v6, s29, 15")
            a("s_mov_b64 exec, 0xffff"); a("buffer_store_dword v6, v5, s[12:15], 0 offen")
    a.label("L_end"); a("s_endpgm")
    s = "; S4D convolution / Hedgehog linear attention stack as one persistent kernel (256 workgroups, one per CU)\n"
    s += "; generated by a hand-written generator script\n"
    s += "; @launch grid=(256,1,1) block=(256,1,1) lds=163840\n"
    s += '.amdgcn_target "amdgcn-amd-amdhsa--gfx950"\n.text\n'
    body = a.render()
    if OPT.get("walk", 1):
        body, info, size = place_page_stubs(body, s); print("stubs", info, "bytes after L_main", size)
    s += body + kernel_desc(name, 256, 256) + "\n"
    return s, k.names

if __name__ == "__main__":
    out = f"cdna_kernels/{NAME}.s"
    for arg in sys.argv[1:]:
        if arg == "-p": PROF = True; out = "prof4.s"
        elif "=" in arg: kk, vv = arg.split("="); OPT[kk] = int(vv)
        else: out = arg
    s, names = build()
    open(out, "w").write(s)
    if PROF: json.dump(names, open(out.replace(".s", ".json"), "w"))
```

```python
import sys, struct, json
from asmlib import *

NAME = "interleave_layers__ssm_conv_s4d__linear_kernel_hedgehog__prompt"
PROF = False
OPT = {}
X0B = 0x000000
XT1 = 0x420000; XT3 = 0x820000
X2B = 0x620000
WF = 0xA20000; WO = 0xBA0000
PHIQ = [0xC20000 - 0x0, 0x1020000 - 0x20000 + 0x20000]
ZERO = 0x1420000; KVSZ = 65536 + 8192; ZERO_SZ = 2 * KVSZ + 16384
KV = [ZERO, ZERO + KVSZ]
ST3 = ZERO + 2 * KVSZ
BAR = 0x1470000; GS = 256; GOFF = BAR + 0x1000
STAMP = 0x1480000
WS_USED = 0x14C0000
RBS = 16384 + 256
LOG2E = 0x3fb8aa3b; INV2PI = 0x3e22f983
CSB = 33280
PA = 33792
W = 24
MEMB = 191; PV = 190; B0, B1 = 188, 189
SPIN = 400000
def f32(x): return "0x%08x" % struct.unpack("<I", struct.pack("<f", x))[0]

class K:
    def __init__(self):
        self.a = Asm(); self.vm = []; self.names = []
    def __call__(self, t): self.a(t)
    def v(self, text, tag=None):
        self.a(text); self.vm.append(tag)
    def wait(self, tag, lgkm=None):
        idx = max(i for i, t in enumerate(self.vm) if t == tag)
        n = len(self.vm) - 1 - idx
        assert n <= 63, n
        self.a(f"s_waitcnt vmcnt({n})" + (f" lgkmcnt({lgkm})" if lgkm is not None else ""))
    def drained(self): self.vm = []
    def stamp(self, name, lvl=1):
        if not PROF or lvl > OPT.get("plvl", 1): return
        if name in self.names: i = self.names.index(name)
        else: i = len(self.names); self.names.append(name)
        assert i < 60
        self.a("s_memtime s[98:99]"); self.a("s_waitcnt lgkmcnt(0)"); self.a(f"v_writelane_b32 v{PV}, s98, {i}")

def unpack(a, lo, hi, src):
    a(f"v_lshlrev_b32 v{lo}, 16, v{src}"); a(f"v_and_b32 v{hi}, 0xffff0000, v{src}")
def rnd_pairs(a, regs, tmp):
    n = len(regs)
    for i in range(0, n, 2): a(f"v_cvt_pk_bf16_f32 v{tmp[i//2]}, v{regs[i]}, v{regs[i+1]}")
    for i in range(0, n, 2): unpack(a, regs[i], regs[i+1], tmp[i//2])
def cmul_ops(d, z, e, t):
    return [f"v_pk_mul_f32 v[{t}:{t+1}], v[{z}:{z+1}], v[{e}:{e+1}] op_sel:[0,0] op_sel_hi:[1,0]",
            f"v_pk_fma_f32 v[{d}:{d+1}], v[{z}:{z+1}], v[{e}:{e+1}], v[{t}:{t+1}] op_sel:[1,1,0] op_sel_hi:[0,1,1] neg_lo:[1,0,0]"]
def wo_reg(i):
    return f"a[{192+4*i}:{195+4*i}]" if i < 16 else f"v[{192+4*(i-16)}:{195+4*(i-16)}]"

def bar_signal(k, e):
    a = k.a
    a(f"s_cmp_eq_u32 s{W}, 1"); a(f"s_cbranch_scc0 L_bs{e}")
    a(f"v_mov_b32 v{B0}, {(2 << e) - 1}"); a(f"v_mov_b32 v{B1}, 0")
    a("s_mov_b64 exec, 1"); a(f"buffer_store_byte v{B0}, v{B1}, s[4:7], s38 offen"); a("s_mov_b64 exec, -1")
    a.label(f"L_bs{e}")
def bar_leader(k, e):
    a = k.a
    a(f"s_cmp_eq_u32 s33, 1"); a(f"s_cbranch_scc0 L_bl{e}")
    a(f"v_lshlrev_b32 v{B0}, {e}, v{MEMB}"); a(f"v_lshlrev_b32 v{B1}, 2, v1"); a("s_mov_b32 s23, 0")
    a.label(f"L_blp{e}")
    a(f"buffer_load_dword v2, v{B1}, s[4:7], s39 offen sc1"); a("s_add_u32 s23, s23, 1"); a(f"s_cmp_gt_u32 s23, {SPIN}"); a(f"s_cbranch_scc1 L_blq{e}")
    a("s_waitcnt vmcnt(0)"); a(f"v_and_b32 v2, v2, v{B0}"); a(f"v_cmp_ne_u32 vcc, v2, v{B0}"); a("s_nop 4"); a(f"s_cbranch_vccnz L_blp{e}")
    a.label(f"L_blq{e}")
    a("s_waitcnt vmcnt(0)")
    a(f"v_mov_b32 v{B0}, {e + 1}"); a(f"v_mul_u32_u24 v{B1}, {8*GS}, v1")
    a("s_mov_b64 exec, s[36:37]"); a(f"buffer_store_dword v{B0}, v{B1}, s[4:7], s40 offen sc1"); a("s_mov_b64 exec, -1")
    a.label(f"L_bl{e}")
def bar_wait(k, e):
    a = k.a
    a(f"s_cmp_eq_u32 s{W}, 0"); a(f"s_cbranch_scc0 L_bw{e}")
    a(f"v_mul_u32_u24 v{B1}, {GS}, v1"); a("s_mov_b32 s23, 0"); a("s_mov_b64 exec, s[36:37]")
    a.label(f"L_bwp{e}")
    a(f"buffer_load_dword v2, v{B1}, s[4:7], s41 offen sc1"); a("s_add_u32 s23, s23, 1"); a(f"s_cmp_gt_u32 s23, {SPIN}"); a(f"s_cbranch_scc1 L_bwq{e}")
    a("s_waitcnt vmcnt(0)"); a(f"v_cmp_gt_u32 vcc, {e + 1}, v2"); a("s_nop 4"); a("s_and_b64 exec, exec, vcc"); a(f"s_cbranch_execnz L_bwp{e}")
    a.label(f"L_bwq{e}")
    a("s_waitcnt vmcnt(0)"); a("s_mov_b64 exec, -1")
    a.label(f"L_bw{e}")
    a("s_waitcnt lgkmcnt(0)"); a("s_barrier")
def walker(k, name, wave):
    a = k.a
    if not OPT.get("walk", 1): return
    a(f"s_cmp_eq_u32 s{W}, {wave}"); a(f"s_cbranch_scc0 L_{name}_skip")
    a("s_mov_b64 exec, 0"); a(f"s_branch @WALK({name})")
    a.label(f"L_{name}_ret"); a("s_mov_b64 exec, -1")
    a.label(f"L_{name}_skip")
def grid_barrier(k, e, pre):
    k.stamp(f"b{e}_iss")
    k("s_waitcnt vmcnt(0) lgkmcnt(0)"); k.drained(); k("s_barrier")
    k.stamp(f"b{e}_arr")
    bar_signal(k, e); walker(k, f'wk{e}', 1); bar_leader(k, e); pre(); bar_wait(k, e)
    k.stamp(f"b{e}_rel")

def phase0(k, pre):
    a = k.a
    a("s_load_dwordx4 s[64:67], s[0:1], 96")
    a("s_load_dwordx16 s[44:59], s[0:1], 0")
    a("s_load_dwordx8 s[68:75], s[0:1], 64")
    a("v_lshrrev_b32 v2, 6, v0"); a("v_and_b32 v1, 63, v0"); a(f"v_readfirstlane_b32 s{W}, v2")
    a("v_and_b32 v3, 15, v0"); a("v_bfe_u32 v4, v0, 4, 2")
    if OPT.get("cpf", 1):
        a("s_getpc_b64 s[76:77]"); a.label("L_pc")
        a("s_add_u32 s76, s76, L_main-L_pc"); a("s_addc_u32 s77, s77, 0")
        if OPT.get("cpf", 1) == 1:
            a("s_lshr_b32 s78, s2, 3"); a("s_and_b32 s78, s78, 3"); a("s_mul_i32 s78, s78, 16384"); a("v_lshl_add_u32 v104, v0, 6, s78")
        else:
            a("v_lshlrev_b32 v104, 7, v0"); a("v_add_u32 v106, 0x8000, v104"); a("v_min_u32 v106, L_end-L_main, v106"); a("global_load_dword v107, v106, s[76:77]")
        a("v_min_u32 v104, L_end-L_main, v104")
        a("global_load_dword v105, v104, s[76:77]")
    a("s_getreg_b32 s32, hwreg(HW_REG_XCC_ID, 0, 4)"); a("s_and_b32 s32, s32, 7")
    a("s_and_b32 s18, s2, 7"); a("s_lshl_b32 s18, s18, 5"); a("s_lshr_b32 s25, s2, 3"); a("s_add_u32 s18, s18, s25")
    a("s_lshl_b32 s39, s32, 8"); a(f"s_add_u32 s39, s39, {BAR}"); a("s_add_u32 s38, s39, s2")
    a(f"s_mul_i32 s40, s32, {GS}"); a(f"s_add_u32 s40, s40, {GOFF}"); a(f"s_mul_i32 s41, s32, {8*GS}"); a(f"s_add_u32 s41, s41, {GOFF}")
    a("s_mov_b32 s33, 0"); a("s_mov_b64 s[36:37], 0")
    a("s_lshl_b32 s25, s18, 9"); a("v_lshl_add_u32 v5, v0, 1, s25")
    a(f"s_lshr_b32 s26, s{W}, 1"); a("s_lshl_b32 s27, s18, 1"); a("s_add_u32 s27, s27, s26"); a("s_lshl_b32 s27, s27, 1"); a("v_mov_b32 v6, s27")
    a("s_lshl_b32 s29, s2, 13"); a("v_lshlrev_b32 v7, 4, v1"); a("v_mov_b32 v8, 0")
    a(f"s_lshl_b32 s30, s{W}, 11"); a("s_add_u32 s30, s30, s29"); a("v_add_u32 v9, s30, v7")
    for r in range(56, 60): a(f"v_mov_b32 v{r}, 0")
    a(f"v_mov_b32 v{MEMB}, 0")
    a("s_and_b32 s19, s2, 15"); a("s_lshr_b32 s20, s2, 4"); a("s_cmp_lt_u32 s19, 12")
    a("s_cselect_b32 s31, 3, 1"); a("s_cselect_b32 s27, 0, 12"); a("s_lshl_b32 s31, s31, 10"); a("s_sub_u32 s21, s19, s27")
    a("s_lshl_b32 s27, s20, 5"); a("v_add_u32 v52, s27, v3"); a("v_mul_lo_u32 v52, v52, s31"); a("v_lshl_add_u32 v52, v4, 4, v52")
    a("s_lshl_b32 s27, s21, 8"); a(f"s_lshl_b32 s28, s{W}, 6"); a("s_add_u32 s27, s27, s28"); a("v_add_u32 v52, s27, v52")
    a("s_lshl_b32 s27, s31, 4"); a("v_add_u32 v53, s27, v52")
    a("s_and_b32 s22, s19, 3"); a("s_lshl_b32 s22, s22, 3"); a(f"s_lshl_b32 s27, s{W}, 1"); a("s_add_u32 s22, s22, s27")
    a("s_lshl_b32 s27, s22, 9"); a("v_add_u32 v54, s27, v7")
    a("s_waitcnt lgkmcnt(0)")
    k.stamp("karg")
    a("s_mov_b32 s4, s66"); a("s_mov_b32 s5, s67"); a(f"s_mov_b32 s6, {hex(WS_USED)}"); a("s_mov_b32 s7, 0x20000")
    a(f"s_cmp_eq_u32 s{W}, 3"); a("s_cbranch_scc0 L_p0a")
    a("s_mov_b64 exec, 1")
    a("buffer_store_byte v56, v56, s[4:7], s38 offen")
    a(f"s_mul_i32 s27, s2, {GS}"); a(f"s_add_u32 s27, s27, {GOFF}")
    a("s_cmp_lt_u32 s2, 64"); a("s_cbranch_scc0 L_p0b")
    a("buffer_store_dword v56, v56, s[4:7], s27 offen sc1")
    a.label("L_p0b")
    a("s_mov_b64 exec, -1")
    a.label("L_p0a")
    k.vm.append("clr")
    k.v("global_load_dwordx4 v[16:19], v9, s[44:45]", "x"); k.v("global_load_dwordx4 v[20:23], v9, s[44:45] offset:1024", "x")
    a("s_cmp_lt_u32 s19, 12"); a("s_cselect_b32 s34, s68, s72"); a("s_cselect_b32 s35, s69, s73")
    k.v("global_load_dwordx4 v[32:35], v52, s[34:35]", "w"); k.v("global_load_dwordx4 v[36:39], v53, s[34:35]", "w")
    k.v("global_load_dwordx4 v[40:43], v54, s[70:71]", "w")
    for i, sp in enumerate([46, 48, 50, 52]): k.v(f"global_load_ushort v{10+i}, v5, s[{sp}:{sp+1}]", "ssm")
    k.v("global_load_ushort v14, v6, s[54:55]", "ssm"); k.v("global_load_ushort v15, v6, s[56:57]", "ssm")
    a("s_mov_b32 s8, s74"); a("s_mov_b32 s9, s75"); a("s_mov_b32 s10, 0x200000"); a("s_mov_b32 s11, 0x20000")
    a("s_mov_b32 s12, s64"); a("s_mov_b32 s13, s65"); a("s_mov_b32 s14, 256"); a("s_mov_b32 s15, 0x20000")
    if OPT.get("tlb", 0):
        a("v_lshlrev_b32 v104, 20, v1"); a("v_add_u32 v104, 0x1ff80, v104")
        k.v("buffer_load_dword v105, v104, s[4:7], 0 offen sc1", "ssm"); k.v("buffer_load_dword v106, v104, s[8:11], 0 offen sc1", "ssm")
    a("s_branch L_main"); a.raw(".p2align 12"); a.label("L_main"); a.walk_begin("wkp")
    walker(k, "wkp", 2)
    k.stamp("iss", 2)
    a(f"s_cmp_eq_u32 s{W}, 3"); a("s_cbranch_scc0 L_p0g")
    a("s_lshl_b32 s27, s32, 5"); a("s_lshr_b32 s28, s2, 5"); a("s_lshl_b32 s28, s28, 2"); a("s_add_u32 s27, s27, s28")
    a("s_and_b32 s28, s2, 31"); a("s_lshl_b32 s28, 1, s28"); a("v_mov_b32 v55, s28")
    k.wait("clr")
    a("s_mov_b64 exec, 1"); a("buffer_atomic_or v55, v56, s[12:15], s27 offen"); a("s_mov_b64 exec, -1")
    a("s_branch L_p0h")
    a.label("L_p0g")
    a(f"s_mul_i32 s27, s2, {ZERO_SZ//256}"); a(f"s_add_u32 s27, s27, {ZERO}"); a("v_lshlrev_b32 v55, 4, v0"); a(f"v_cmp_gt_u32 vcc, {ZERO_SZ//4096}, v0")
    a("v_mov_b32 v60, 0x7f000000"); a("v_cndmask_b32 v55, v60, v55, vcc")
    a("buffer_store_dwordx4 v[56:59], v55, s[4:7], s27 offen sc1")
    a.label("L_p0h")
    k.vm.append("z")
    IM = PA + 12544; TB = IM + 81920; TS = 6400; GA = 108
    a("v_lshlrev_b32 v55, 3, v0")
    for j in range(12): a(f"v_add_u32 v{GA+j}, {j-3}, v55")
    for j in range(12): a(f"v_cvt_f32_i32 v{GA+j}, v{GA+j}")
    rnd_pairs(a, list(range(GA, GA+12)), list(range(120, 126)))
    for j in range(11): a(f"v_cvt_i32_f32 v{GA+j}, v{GA+j}")
    for j in range(3): a(f"v_min_u32 v{GA+j}, 3071, v{GA+j}")
    a(f"s_mov_b32 s27, {TB}")
    for j in range(11):
        a(f"v_lshrrev_b32 v120, 6, v{GA+j}"); a(f"v_lshl_add_u32 v{GA+j}, v{GA+j}, 1, s27"); a(f"v_lshl_add_u32 v{GA+j}, v120, 2, v{GA+j}")
    XL = PA; SL = PA + 8192; PL = PA + 8192 + 64
    a(f"s_lshl_b32 s27, s{W}, 11"); a(f"s_add_u32 s27, s27, {XL}"); a("v_add_u32 v9, s27, v7")
    a(f"s_lshl_b32 s27, s{W}, 10"); a(f"s_add_u32 s27, s27, {PL}"); a("v_add_u32 v53, s27, v7")
    a("v_lshrrev_b32 v54, 2, v1"); a("v_and_b32 v54, 3, v54"); a("v_lshlrev_b32 v54, 5, v54"); a("v_lshl_add_u32 v54, v4, 8, v54")
    a("v_and_b32 v55, 3, v0"); a("v_lshl_add_u32 v54, v55, 3, v54"); a("v_add_u32 v54, s27, v54")
    a(f"s_lshl_b32 s27, s{W}, 4"); a(f"s_add_u32 s27, s27, {SL}"); a("v_mov_b32 v55, s27")
    a("s_mov_b32 s60, 0x05040100"); a("s_mov_b32 s61, 0x07060302"); a("s_mov_b32 s62, 0x3f803f80")
    k.wait("x")
    k.stamp("x_in", 2)
    a("ds_write_b128 v9, v[16:19]"); a("ds_write_b128 v9, v[20:23] offset:1024")
    for j in range(4):
        for r in range(2):
            src = 16 + 4*r + j
            a(f"v_dot2_f32_bf16 v{24+r}, v{src}, s62, {'0' if j == 0 else 'v%d' % (24+r)}")
            a(f"v_dot2_f32_bf16 v{26+r}, v{src}, v{src}, {'0' if j == 0 else 'v%d' % (26+r)}")
    for m in ["row_shr:1", "row_shr:2", "row_shr:4", "row_shr:8"]:
        for r in range(24, 28): a(f"v_add_f32_dpp v{r}, v{r}, v{r} {m} row_mask:0xf bank_mask:0xf bound_ctrl:1")
    for r in range(24, 28): a(f"v_add_f32_dpp v{r}, v{r}, v{r} row_bcast:15 row_mask:0xa bank_mask:0xf")
    for r in range(24, 28): a(f"v_add_f32_dpp v{r}, v{r}, v{r} row_bcast:31 row_mask:0xc bank_mask:0xf")
    for r in range(2):
        a(f"v_mul_f32 v{24+r}, {f32(1/512)}, v{24+r}"); a(f"v_mov_b32 v{28+2*r}, {f32(1e-5)}"); a(f"v_fmac_f32 v{28+2*r}, {f32(1/512)}, v{26+r}")
    for r in range(2): a(f"v_fma_f32 v{28+2*r}, -v{24+r}, v{24+r}, v{28+2*r}")
    for r in range(2): a(f"v_max_f32 v{28+2*r}, {f32(1e-5)}, v{28+2*r}")
    for r in range(2): a(f"v_rsq_f32 v{28+2*r}, v{28+2*r}")
    for r in range(2): a(f"v_mul_f32 v{29+2*r}, -v{24+r}, v{28+2*r}")
    a("s_mov_b32 exec_lo, 0"); a("s_mov_b32 exec_hi, 0x80000000")
    a("ds_write_b128 v55, v[28:31]")
    a("s_mov_b64 exec, -1")
    k.wait("w")
    a("ds_write_b128 v53, v[40:43]")
    a(f"v_lshlrev_b32 v9, 2, v0"); a(f"v_mov_b32 v55, {SL}")
    a("s_waitcnt lgkmcnt(0)"); a("s_barrier")
    k.stamp("w_in", 2)
    for i in range(8): a(f"ds_read_b32 v{16+i}, v9 offset:{XL + 1024*i}")
    for i in range(4): a(f"ds_read_b128 v[{72+4*i}:{75+4*i}], v55 offset:{16*i}")
    a("ds_read_b64_tr_b16 v[40:41], v54"); a("ds_read_b64_tr_b16 v[42:43], v54 offset:128")
    a("v_lshlrev_b32 v55, 6, v3"); a("v_lshl_add_u32 v55, v4, 4, v55"); a(f"s_mul_i32 s29, s2, {RBS}"); a(f"s_lshl_b32 s27, s{W}, 12"); a("s_add_u32 s29, s29, s27")
    RC = 144
    a("s_waitcnt lgkmcnt(6)")
    for j in range(4):
        a(f"v_perm_b32 v{RC+j}, v{17+2*j}, v{16+2*j}, s60"); a(f"v_perm_b32 v{RC+4+j}, v{17+2*j}, v{16+2*j}, s61")
    for i in range(8): unpack(a, 88+2*i, 89+2*i, 16+i)
    a("s_waitcnt lgkmcnt(2)")
    for i in range(8): a(f"v_pk_fma_f32 v[{88+2*i}:{89+2*i}], v[{88+2*i}:{89+2*i}], v[{72+2*i}:{73+2*i}], v[{72+2*i}:{73+2*i}] op_sel:[0,0,1] op_sel_hi:[1,0,1]")
    for j in range(4):
        a(f"v_cvt_pk_bf16_f32 v{RC+8+j}, v{88+4*j}, v{90+4*j}"); a(f"v_cvt_pk_bf16_f32 v{RC+12+j}, v{89+4*j}, v{91+4*j}")
    transpose4(a, RC)
    for j in range(4): k.v(f"buffer_store_dwordx4 v[{RC+4*j}:{RC+4*j+3}], v55, s[4:7], s29 offen offset:{1024*j} sc1")
    a("s_waitcnt lgkmcnt(0)")
    a("s_cmp_lt_u32 s19, 8"); a("s_cbranch_scc1 L_p0i")
    a("v_and_b32 v44, 1, v3"); a("v_lshlrev_b32 v44, 4, v44"); a("v_mov_b32 v45, 0x3f80"); a("v_lshlrev_b32 v44, v44, v45")
    a("v_and_b32 v45, 1, v4"); a("v_lshlrev_b32 v45, 2, v45"); a("v_lshrrev_b32 v46, 1, v3"); a("v_sub_u32 v45, v46, v45")
    for i in range(4): a(f"v_cmp_eq_u32 vcc, {i}, v45"); a(f"v_cndmask_b32 v{40+i}, 0, v44, vcc")
    a.label("L_p0i")
    a("s_mov_b32 s60, 0"); a("s_mov_b32 s61, -1")
    for i in range(4): a(f"v_cndmask_b32 v{44+i}, 0, v{40+i}, s[60:61]")
    for i in range(4): a(f"v_cndmask_b32 v{40+i}, v{40+i}, 0, s[60:61]")
    D0 = 16
    for u in range(2):
        for h in range(2): a(f"v_mfma_f32_16x16x32_bf16 v[{D0+8*u+4*h}:{D0+8*u+4*h+3}], v[{32+4*h}:{35+4*h}], v[{40+4*u}:{43+4*u}], 0")
    a("s_cmp_lt_u32 s19, 12"); a("s_cbranch_scc0 L_p0j")
    a("s_lshl_b32 s27, s22, 4"); a("s_add_u32 s27, s27, s20"); a("s_mul_i32 s27, s27, 3"); a("s_lshr_b32 s28, s19, 2"); a("s_add_u32 s27, s27, s28")
    a("s_lshl_b32 s27, s27, 10"); a(f"s_add_u32 s27, s27, {WF}"); a("s_add_u32 s28, s27, 49152")
    a("v_lshlrev_b32 v52, 4, v1")
    a("s_branch L_p0k")
    a.label("L_p0j")
    a("s_lshl_b32 s27, s21, 2"); a(f"s_add_u32 s27, s27, s{W}"); a("s_lshl_b32 s27, s27, 4"); a("s_add_u32 s27, s27, s20"); a("s_lshl_b32 s27, s27, 11")
    a(f"s_add_u32 s27, s27, {WO}"); a("s_add_u32 s28, s27, 256")
    a("v_lshlrev_b32 v52, 4, v3"); a("v_lshl_add_u32 v52, v4, 9, v52")
    a.label("L_p0k")
    a("s_nop 4")
    a("s_cmp_lt_u32 s19, 4"); a("s_cbranch_scc0 L_p0l")
    for i in range(16): a(f"v_subrev_f32_dpp v{32+i}, v{D0+i}, v{D0+i} row_newbcast:0 row_mask:0xf bank_mask:0xf")
    a("s_mov_b32 s60, 0x00010001"); a("s_mov_b32 s61, s60")
    for i in range(16): a(f"v_cndmask_b32 v{D0+i}, v{32+i}, 1.0, s[60:61]")
    a.label("L_p0l")
    for u in range(2):
        for i in range(4): a(f"v_cvt_pk_bf16_f32 v{48+4*u+i if u == 0 else 68+i}, v{D0+8*u+2*i}, v{D0+8*u+2*i+1}")
        k.v(f"buffer_store_dwordx4 v[{48 if u == 0 else 68}:{51 if u == 0 else 71}], v52, s[4:7], s{27+u} offen sc1")
    k.stamp("pub")
    k.wait("ssm")
    a("v_and_b32 v54, 127, v0"); a("v_mul_u32_u24 v54, 160, v54"); a("s_mul_i32 s27, s26, 40960"); a(f"s_add_u32 s27, s27, {IM}"); a("v_add_u32 v54, s27, v54")
    for r in range(10, 16): a(f"v_lshlrev_b32 v{r}, 16, v{r}")
    a(f"v_mul_f32 v10, {hex(LOG2E)}, v10"); a(f"v_mul_f32 v14, {hex(LOG2E)}, v14")
    a("v_exp_f32 v10, v10"); a("v_exp_f32 v14, v14")
    a("v_cvt_pk_bf16_f32 v9, v10, v14"); unpack(a, 10, 14, 9)
    a("v_mul_f32 v10, v10, v14"); a("v_mul_f32 v11, v11, v14")
    a(f"v_mul_f32 v10, {hex(LOG2E | 0x80000000)}, v10"); a(f"v_mul_f32 v11, {hex(INV2PI)}, v11")
    E = {1: 16, 8: 18, 128: 20}; T0 = {1: 22, 8: 24, 128: 26}
    for s_, t in T0.items(): a(f"v_mul_f32 v{t}, {f32(s_)}, v10"); a(f"v_mul_f32 v{t+1}, {f32(s_)}, v11")
    for s_, t in T0.items(): a(f"v_fract_f32 v{t+1}, v{t+1}")
    for s_, t in T0.items(): a(f"v_exp_f32 v{t}, v{t}"); a(f"v_cos_f32 v{E[s_]}, v{t+1}"); a(f"v_sin_f32 v{E[s_]+1}, v{t+1}")
    for s_, t in T0.items(): a(f"v_pk_mul_f32 v[{E[s_]}:{E[s_]+1}], v[{E[s_]}:{E[s_]+1}], v[{t}:{t+1}] op_sel:[0,0] op_sel_hi:[1,0]")
    E[2], E[16], E[256] = 28, 30, 32
    X = [72 + 2*j for j in range(8)]; Y = [88 + 2*j for j in range(8)]
    tmp = [34, 36, 38, 40]; ti = [0]
    def cm(d, z, e):
        t = tmp[ti[0] % 4]; ti[0] += 1
        return cmul_ops(d, z, e, t)
    def par(*pairs):
        for p in pairs: a(p[0])
        for p in pairs: a(p[1])
    SR, SI = [128, 136], [132, 140]; sb = [0]
    def pack(slot, r0, r1, neg):
        b = sb[0]; s = "-" if neg else ""
        a(f"v_cvt_pk_bf16_f32 v{SR[b]+slot}, v{r0}, v{r1}"); a(f"v_cvt_pk_bf16_f32 v{SI[b]+slot}, {s}v{r0+1}, {s}v{r1+1}")
    def flush(grp):
        b = sb[0]
        a(f"ds_write_b128 v54, v[{SR[b]}:{SR[b]+3}] offset:{16*grp}"); a(f"ds_write_b128 v54, v[{SI[b]}:{SI[b]+3}] offset:{20480+16*grp}")
        sb[0] ^= 1
    a(f"v_mov_b32 v{X[0]}, v12"); a(f"v_mov_b32 v{X[0]+1}, v13"); a(f"v_mov_b32 v{Y[0]}, 1.0"); a(f"v_mov_b32 v{Y[0]+1}, 0")
    a(f"v_mov_b32 v{Y[1]}, v{E[8]}"); a(f"v_mov_b32 v{Y[1]+1}, v{E[8]+1}")
    par(cm(E[2], E[1], E[1]), cm(E[16], E[8], E[8]), cm(E[256], E[128], E[128]), cm(X[1], X[0], E[1]))
    for j in (2, 4, 6): par(cm(X[j], X[j-2], E[2]), cm(X[j+1], X[j-1], E[2]), cm(Y[j], Y[j-2], E[16]), cm(Y[j+1], Y[j-1], E[16]))
    for j in range(4): pack(j, X[2*j], X[2*j+1], True)
    flush(0)
    par(*[cm(X[j], X[j], E[128]) for j in range(4)]); par(*[cm(X[j], X[j], E[128]) for j in range(4, 8)])
    for j in range(4): pack(j, Y[2*j], Y[2*j+1], False)
    flush(6)
    a("s_waitcnt vmcnt(0)"); a("s_barrier"); k.drained()
    k.stamp("b0_arr")
    bar_signal(k, 0)
    for j in range(4): pack(j, X[2*j], X[2*j+1], True)
    flush(1)
    par(cm(Y[0], Y[6], E[16]), cm(Y[1], Y[7], E[16]), cm(X[1], X[0], E[256]), cm(X[3], X[2], E[256]))
    par(cm(X[5], X[4], E[256]), cm(X[7], X[6], E[256]), cm(X[0], X[0], E[128]), cm(X[2], X[2], E[128]))
    par(cm(X[4], X[4], E[128]), cm(X[6], X[6], E[128]), cm(Y[2], Y[0], E[16]), cm(Y[3], Y[1], E[16]))
    pack(0, X[0], X[2], True); pack(1, X[4], X[6], True); pack(2, X[1], X[3], True); pack(3, X[5], X[7], True)
    flush(2)
    par(cm(X[0], X[0], E[256]), cm(X[4], X[4], E[256]), cm(X[1], X[1], E[256]), cm(X[5], X[5], E[256]))
    par(cm(Y[4], Y[2], E[16]), cm(Y[5], Y[3], E[16]))
    pack(0, X[0], X[4], True); pack(1, X[1], X[5], True)
    par(cm(X[0], X[0], E[256]), cm(X[4], X[4], E[256]), cm(X[1], X[1], E[256]), cm(X[5], X[5], E[256]))
    par(cm(Y[6], Y[4], E[16]), cm(Y[7], Y[5], E[16]))
    pack(2, X[0], X[4], True); pack(3, X[1], X[5], True)
    flush(3)
    par(cm(X[0], X[0], E[256]), cm(X[1], X[1], E[256]), cm(E[2], E[256], E[256]))
    for j in range(4): pack(j, Y[2*j], Y[2*j+1], False)
    flush(7)
    par(cm(X[2], X[0], E[256]), cm(X[3], X[1], E[256]), cm(X[4], X[0], E[2]), cm(X[5], X[1], E[2]))
    par(cm(X[6], X[2], E[2]), cm(X[7], X[3], E[2]), cm(Y[0], X[4], E[2]))
    for j in range(4): pack(j, X[2*j], X[2*j+1], True)
    flush(4)
    pack(0, Y[0], Y[0], True)
    b = sb[0]; a(f"ds_write_b32 v54, v{SR[b]} offset:80"); a(f"ds_write_b32 v54, v{SI[b]} offset:{20480+80}")
    a(f"v_and_b32 v55, 1, v0"); a(f"v_mul_u32_u24 v55, {TS}, v55"); a(f"v_add_u32 v55, {TB + 6140 + 4*47}, v55"); a("ds_write_b32 v55, v56")
    a("v_lshrrev_b32 v55, 1, v3"); a("v_mul_u32_u24 v55, 4160, v55"); a("v_and_b32 v53, 1, v0"); a("v_lshl_add_u32 v55, v53, 4, v55"); a("ds_write_b128 v55, v[56:59]")
    a(f"s_and_b32 s25, s{W}, 1")
    a("v_lshrrev_b32 v54, 2, v1"); a("v_mul_u32_u24 v54, 160, v54"); a("v_and_b32 v55, 3, v0"); a("v_lshl_add_u32 v54, v55, 3, v54"); a("v_add_u32 v54, s27, v54")
    a("s_lshl_b32 s28, s25, 6"); a("v_add_u32 v55, s28, v54")
    a("v_and_b32 v24, 7, v3"); a("v_lshrrev_b32 v25, 3, v3"); a("v_lshl_add_u32 v24, v25, 7, v24")
    a("v_lshlrev_b32 v26, 7, v3"); a("v_add_u32 v26, 1024, v26")
    a("s_cmp_eq_u32 s25, 0"); a("s_cselect_b64 vcc, -1, 0"); a("v_cndmask_b32 v24, v26, v24, vcc")
    a("s_cselect_b64 s[60:61], 1, 0"); a("v_cndmask_b32 v15, 0, v15, s[60:61]")
    a("v_lshrrev_b32 v25, 2, v3"); a("v_lshlrev_b32 v25, 7, v25"); a("v_and_b32 v26, 3, v3"); a("v_lshl_add_u32 v25, v26, 1, v25"); a("v_add_u32 v25, 256, v25")
    a("v_lshrrev_b32 v26, 1, v3"); a("v_lshlrev_b32 v26, 7, v26"); a("v_and_b32 v27, 1, v3"); a("v_lshl_add_u32 v26, v27, 2, v26")
    a("v_cmp_gt_u32 vcc, 8, v3"); a("v_cndmask_b32 v25, v26, v25, vcc")
    a(f"s_mul_i32 s28, s26, {TS}"); a(f"s_add_u32 s28, s28, {TB}")
    for r in (24, 25):
        a(f"v_lshl_add_u32 v{r}, v4, 5, v{r}"); a(f"v_lshrrev_b32 v26, 6, v{r}"); a(f"v_lshl_add_u32 v{r}, v{r}, 1, s28"); a(f"v_lshl_add_u32 v{r}, v26, 2, v{r}")
    a("v_add_f32 v14, v14, v14")
    k.stamp("st1")
    a("s_waitcnt lgkmcnt(0)"); a("s_barrier")
    a(f"s_cmp_eq_u32 s{W}, 0"); a("s_cbranch_scc0 L_p0m")
    a("v_lshlrev_b32 v9, 2, v1"); a("buffer_load_dword v8, v9, s[12:15], 0 offen sc1")
    a.label("L_p0m")
    FY, FX0, FX1 = 128, 192, 224
    def frag(dst, vb, s_, col):
        o = (s_ // 4) * 20480 + (s_ % 4) * 32 * 160 + col
        a(f"ds_read_b64_tr_b16 v[{dst}:{dst+1}], v{vb} offset:{o}"); a(f"ds_read_b64_tr_b16 v[{dst+2}:{dst+3}], v{vb} offset:{o + 16*160}")
    def mm(s_):
        c0 = "0" if s_ == 0 else "v[28:31]"; c1 = "0" if s_ == 0 else "v[16:19]"
        a(f"v_mfma_f32_16x16x32_bf16 v[28:31], v[{FY+4*s_}:{FY+4*s_+3}], v[{FX0+4*s_}:{FX0+4*s_+3}], {c0}")
        a(f"v_mfma_f32_16x16x32_bf16 v[16:19], v[{FY+4*s_}:{FY+4*s_+3}], v[{FX1+4*s_}:{FX1+4*s_+3}], {c1}")
    for s_ in range(8):
        frag(FY+4*s_, 54, s_, 96); frag(FX0+4*s_, 55, s_, 0); frag(FX1+4*s_, 55, s_, 32)
        if s_ >= 2: a("s_waitcnt lgkmcnt(12)"); mm(s_ - 2)
    a("s_waitcnt lgkmcnt(6)"); mm(6); a("s_waitcnt lgkmcnt(0)"); mm(7)
    def twrite(acc, addr, skip):
        for i in range(4):
            if skip and i == 0: a(f"v_fma_f32 v{acc}, v{acc}, v14, v15")
            else: a(f"v_mul_f32 v{acc+i}, v{acc+i}, v14")
        a(f"v_cvt_pk_bf16_f32 v{acc}, v{acc}, v{acc+1}"); a(f"v_cvt_pk_bf16_f32 v{acc+2}, v{acc+2}, v{acc+3}")
        a(f"ds_write_b16 v{addr}, v{acc}"); a(f"ds_write_b16_d16_hi v{addr}, v{acc} offset:16")
        a(f"ds_write_b16 v{addr}, v{acc+2} offset:32"); a(f"ds_write_b16_d16_hi v{addr}, v{acc+2} offset:48")
    twrite(28, 24, True)
    a("s_cmp_eq_u32 s25, 0"); a("s_cbranch_scc0 L_p0n")
    twrite(16, 25, False)
    a.label("L_p0n")
    k.stamp("st2", 2)
    a("s_waitcnt lgkmcnt(0)"); a("s_barrier")
    for c in range(2):
        for j in range(11): a(f"ds_read_u16 v{16+12*c+j}, v{GA+j} offset:{TS*c}")
    a(f"s_cmp_eq_u32 s{W}, 0"); a("s_cbranch_scc0 L_regx")
    a("s_mov_b32 s23, 0")
    a.label("L_reg")
    a("s_waitcnt vmcnt(0)")
    a("v_bcnt_u32_b32 v12, v8, 0")
    for m in ["row_shr:1", "row_shr:2", "row_shr:4", "row_shr:8"]: a(f"v_add_u32_dpp v12, v12, v12 {m} row_mask:0xf bank_mask:0xf bound_ctrl:1")
    a("v_add_u32_dpp v12, v12, v12 row_bcast:15 row_mask:0xa bank_mask:0xf"); a("v_add_u32_dpp v12, v12, v12 row_bcast:31 row_mask:0xc bank_mask:0xf")
    a("v_readlane_b32 s28, v12, 63"); a("s_cmp_eq_u32 s28, 256"); a("s_cbranch_scc1 L_regq")
    a("s_sleep 8")
    a("buffer_load_dword v8, v9, s[12:15], 0 offen sc1")
    a("s_add_u32 s23, s23, 1"); a(f"s_cmp_gt_u32 s23, {SPIN}"); a("s_cbranch_scc0 L_reg")
    a("s_waitcnt vmcnt(0)")
    a.label("L_regq")
    a("v_cmp_ne_u32 vcc, 0, v8"); a("s_mov_b64 s[28:29], vcc")
    a("v_lshlrev_b32 v12, 3, v1"); a("v_lshrrev_b64 v[10:11], v12, s[28:29]"); a("v_and_b32 v10, 0xff, v10")
    a("v_cmp_ne_u32 vcc, 0, v10"); a("s_nop 1"); a("s_and_b32 s36, vcc_lo, 0xff")
    a("s_lshl_b32 s28, s32, 3"); a("v_lshrrev_b32 v12, 3, v1"); a("v_add_u32 v12, s28, v12"); a("v_lshlrev_b32 v12, 2, v12")
    a("ds_bpermute_b32 v13, v12, v8"); a("v_and_b32 v12, 7, v1"); a("v_lshlrev_b32 v12, 2, v12"); a("s_waitcnt lgkmcnt(0)")
    a("v_lshrrev_b32 v13, v12, v13"); a("v_and_b32 v13, 15, v13")
    a("v_cmp_ne_u32 vcc, 0, v13"); a("s_nop 1"); a("s_ff1_i32_b64 s28, vcc"); a("s_and_b32 s28, s28, 63")
    a("s_nop 3"); a("v_readlane_b32 s29, v13, s28"); a("s_nop 1"); a("s_ff1_i32_b32 s29, s29"); a("s_lshl_b32 s28, s28, 2"); a("s_add_u32 s28, s28, s29")
    a("s_cmp_eq_u32 s28, s2"); a("s_cselect_b32 s33, 1, 0")
    a("s_mov_b32 s28, 0x00204081"); a("v_mul_lo_u32 v13, v13, s28"); a(f"v_and_b32 v{MEMB}, 0x01010101, v13")
    a.label("L_regx")
    k.stamp("reg", 2)
    bar_leader(k, 0)
    a("v_lshlrev_b32 v72, 4, v0")
    for c in range(2):
        a(f"s_waitcnt lgkmcnt({11 if c == 0 else 4})")
        for e in range(4):
            o = 40 + 16*c + 4*e
            for j in range(4):
                lo = 16 + 12*c + 3 - e + 2*j
                a(f"v_lshl_or_b32 v{o+j}, v{lo+1}, 16, v{lo}")
            a(f"ds_write_b128 v72, v[{o}:{o+3}] offset:{(4*c+e)*4160 + 32}")
    k.stamp("st3")
    a("s_waitcnt lgkmcnt(0)"); a("s_barrier")
    walker(k, "wk0", 1); pre()
    bar_wait(k, 0)
    k.stamp("b0_rel")

class Conv:
    UB = PA; RAWB = PA + 9216; XB = PA + 9216 + 8192; WST = PA + 9216 + 8192 + 16384
    ACC = 16; FA = [60, 124]; FB = [92, 156]; VA, VB = 9, 11
    def __init__(self, k, L): self.k = k; self.L = L
    def ra(self, b, rr, q):
        F = self.FA[b] + 4*q
        return [f"ds_read_b64_tr_b16 v[{F}:{F+1}], v{self.VA} offset:{8+512*q+64*rr}", f"ds_read_b64_tr_b16 v[{F+2}:{F+3}], v{self.VA} offset:{512*q+64*rr}"]
    def rb(self, b, rr, j):
        F = self.FB[b] + 4*j
        return [f"ds_read_b128 v[{F}:{F+3}], v{self.VB} offset:{512*j+64*(3-rr)}"]
    def pre(self):
        a = self.k.a; L = self.L; UB = self.UB
        xout = XT1 if L == 0 else XT3
        a(f"s_lshr_b32 s25, s{W}, 1"); a(f"s_and_b32 s26, s{W}, 1")
        if L == 0:
            a("v_lshrrev_b32 v5, 2, v1"); a(f"v_mul_u32_u24 v6, {RBS}, v5"); a("v_and_b32 v7, 3, v0"); a("v_lshl_add_u32 v6, v7, 4, v6")
            a(f"s_mul_i32 s28, s{W}, {64*RBS}"); a("s_lshl_b32 s27, s18, 6"); a("s_add_u32 s28, s28, s27")
            for j in range(1, 4): a(f"s_add_u32 s{28+j}, s28, {j*16*RBS}")
            a("s_mov_b32 s44, s28")
            a(f"v_mov_b32 v10, {self.RAWB}"); a(f"v_mov_b32 v11, {self.RAWB + 4096}"); a("v_cmp_eq_u32 vcc, 1, v7"); a("v_cndmask_b32 v10, v10, v11, vcc")
            a(f"v_mov_b32 v11, {UB + 512}"); a("v_cmp_eq_u32 vcc, 2, v7"); a("v_cndmask_b32 v10, v10, v11, vcc")
            a(f"v_mov_b32 v11, {UB + 4608 + 512}"); a("v_cmp_eq_u32 vcc, 3, v7"); a("v_cndmask_b32 v10, v10, v11, vcc")
            a("v_lshl_add_u32 v10, v5, 4, v10"); a(f"s_lshl_b32 s27, s{W}, 10"); a("v_add_u32 v10, s27, v10")
            a("s_lshr_b32 s35, s2, 4"); a("s_lshl_b32 s35, s35, 1"); a("s_add_u32 s35, s35, s26"); a("s_mul_i32 s35, s35, 49152"); a(f"s_add_u32 s35, s35, {WF}")
            a(f"s_mul_i32 s27, s25, {22*1024}"); a("s_add_u32 s45, s35, s27"); a("s_add_u32 s45, s45, 4096")
            a(f"s_mul_i32 s46, s26, {44*1024}"); a("s_add_u32 s46, s46, s27"); a(f"s_add_u32 s46, s46, {self.WST}")
        else:
            a("v_lshrrev_b32 v6, 2, v0"); a("v_lshlrev_b32 v6, 15, v6"); a("v_and_b32 v7, 3, v0"); a("v_lshl_add_u32 v6, v7, 4, v6")
            a("s_lshl_b32 s31, s18, 7"); a(f"s_add_u32 s31, s31, {X2B}")
            a("v_lshlrev_b32 v10, 4, v0")
            for j in range(4): a(f"s_mov_b32 s{44+j}, {ST3 + 4096*j}")
        a("v_lshlrev_b32 v7, 4, v1")
        for r in range(12, 16): a(f"v_mov_b32 v{r}, 0")
        a("v_lshrrev_b32 v9, 5, v1"); a("v_mul_u32_u24 v9, 4608, v9"); a("v_and_b32 v11, 31, v0"); a("v_lshl_add_u32 v9, v11, 4, v9")
        a(f"ds_write_b128 v9, v[12:15] offset:{UB}")
        a("v_lshrrev_b32 v9, 2, v3"); a("v_mul_u32_u24 v9, 4160, v9"); a("v_and_b32 v11, 3, v0"); a("v_lshl_add_u32 v9, v11, 3, v9")
        a("v_lshlrev_b32 v11, 4, v4"); a("v_sub_u32 v9, v9, v11")
        a("s_mul_i32 s27, s25, 16640"); a("s_lshl_b32 s28, s26, 8"); a("s_add_u32 s27, s27, s28"); a("s_add_u32 s27, s27, 56")
        a("v_add_u32 v9, s27, v9")
        a("v_lshl_add_u32 v11, v3, 5, v11")
        a("s_mul_i32 s27, s25, 4608"); a("s_sub_u32 s27, s27, s28"); a(f"s_add_u32 s27, s27, {UB + 480 - 192}")
        a("v_add_u32 v11, s27, v11")
        for q in range(8):
            for t in self.ra(0, 0, q): a(t)
        a(f"s_lshl_b32 s27, s{W}, 11"); a(f"s_add_u32 s27, s27, {self.RAWB}"); a("v_lshlrev_b32 v8, 5, v3"); a("v_lshl_add_u32 v8, v4, 3, v8"); a("v_add_u32 v8, s27, v8")
        a(f"s_lshl_b32 s27, s{W}, 12"); a(f"s_add_u32 s27, s27, {self.XB}"); a("v_add_u32 v48, s27, v7"); a("v_xor_b32 v49, 0x1000, v48") if self.XB % 8192 == 0 else (
            a(f"s_xor_b32 s27, s{W}, 1"), a("s_lshl_b32 s27, s27, 12"), a(f"s_add_u32 s27, s27, {self.XB}"), a("v_add_u32 v49, s27, v7"))
        a("v_and_b32 v50, 1, v4"); a("v_lshlrev_b32 v50, 18, v50"); a("v_lshrrev_b32 v51, 3, v3"); a("v_lshl_add_u32 v50, v51, 17, v50")
        a("v_and_b32 v51, 7, v3"); a("v_lshl_add_u32 v50, v51, 5, v50"); a("v_lshrrev_b32 v51, 1, v4"); a("v_lshl_add_u32 v50, v51, 4, v50")
        a("s_lshl_b32 s34, s18, 9"); a("s_lshl_b32 s27, s25, 8"); a("s_add_u32 s34, s34, s27"); a("s_lshl_b32 s27, s26, 20"); a("s_add_u32 s34, s34, s27")
        a(f"s_add_u32 s34, s34, {xout}"); a(f"s_add_u32 s43, s34, {1 << 19}")
        a(f"v_mov_b32 v12, {f32(1/512)}"); a(f"v_mov_b32 v14, {f32(1e-5)}")
    def run(self):
        k = self.k; a = k.a; L = self.L; UB, RAWB = self.UB, self.RAWB; ACC, FA, FB = self.ACC, self.FA, self.FB
        S1, S2, XA = 16, 24, 32
        wq = [0]
        def wq_load(n=1):
            if L != 0: return
            for _ in range(n):
                i = wq[0]
                if i >= 22: return
                if i % 4 == 0: a(f"s_add_u32 m0, s46, {1024*i}")
                k.v(f"buffer_load_dwordx4 v7, s[4:7], s45 offen offset:{1024*(i%4)} lds", "wq")
                if i % 4 == 3: a("s_add_u32 s45, s45, 4096")
                wq[0] += 1
        if L == 0:
            for j in range(4): k.v(f"buffer_load_dwordx4 v[{16+4*j}:{19+4*j}], v6, s[4:7], s{44 if j == 0 else 28+j} offen sc1", f"r{j}")
            for j in range(4):
                k.wait(f"r{j}"); a(f"ds_write_b128 v10, v[{16+4*j}:{19+4*j}] offset:{256*j}")
            for i in range(4): k.v(f"buffer_load_dwordx4 a[{4*i}:{4*i+3}], v7, s[4:7], s35 offen offset:{1024*i}", "wq")
        else:
            for j in range(4): k.v(f"buffer_load_dwordx4 v[{S1+4*j}:{S1+4*j+3}], v10, s[4:7], s{44+j} offen sc1", "st")
            k.v(f"buffer_load_dwordx4 v[{XA}:{XA+3}], v6, s[4:7], s31 offen sc1", "x"); k.v(f"buffer_load_dwordx4 v[{XA+4}:{XA+7}], v6, s[4:7], s31 offen offset:64 sc1", "x")
            k.wait("st")
            k.stamp(f"c{L}_st", 2)
            for i in range(0, 8, 2): a(f"v_pk_mul_f32 v[{S1+i}:{S1+i+1}], v[{S1+i}:{S1+i+1}], v[12:13] op_sel_hi:[1,0]")
            for i in range(0, 8, 2): a(f"v_pk_fma_f32 v[{S2+i}:{S2+i+1}], v[{S2+i}:{S2+i+1}], v[12:13], v[14:15] op_sel_hi:[1,0,0]")
            for i in range(0, 8, 2): a(f"v_pk_fma_f32 v[{S2+i}:{S2+i+1}], v[{S1+i}:{S1+i+1}], v[{S1+i}:{S1+i+1}], v[{S2+i}:{S2+i+1}] neg_lo:[1,0,0] neg_hi:[1,0,0]")
            for i in range(8): a(f"v_max_f32 v{S2+i}, v14, v{S2+i}")
            for i in range(8): a(f"v_rsq_f32 v{S2+i}, v{S2+i}")
            for i in range(0, 8, 2): a(f"v_pk_mul_f32 v[{S1+i}:{S1+i+1}], v[{S1+i}:{S1+i+1}], v[{S2+i}:{S2+i+1}] neg_lo:[1,0] neg_hi:[1,0]")
            k.wait("x")
            for c in range(2):
                x = 40
                for j in range(4): unpack(a, x+2*j, x+2*j+1, XA+4*c+j)
                for j in range(4): a(f"v_pk_fma_f32 v[{x+2*j}:{x+2*j+1}], v[{x+2*j}:{x+2*j+1}], v[{S2+2*j}:{S2+2*j+1}], v[{S1+2*j}:{S1+2*j+1}]")
                for j in range(4): a(f"v_cvt_pk_bf16_f32 v{52+4*c+j}, v{x+2*j}, v{x+2*j+1}")
                a(f"ds_write_b128 v10, v[{52+4*c}:{55+4*c}] offset:{UB + 4608*c + 512}")
            for c in range(2): a(f"ds_write_b128 v10, v[{XA+4*c}:{XA+4*c+3}] offset:{RAWB + 4096*c}")
        def reads(rr):
            b = rr % 2; Lr = self.ra(b, rr, 0)
            for j in range(8): Lr += self.rb(b, rr, j)
            for q in range(1, 8): Lr += self.ra(b, rr, q)
            return Lr
        def mf(b, q, jt, first=False):
            d = ACC + 4*jt
            return f"v_mfma_f32_16x16x32_bf16 v[{d}:{d+3}], v[{FA[b]+4*q}:{FA[b]+4*q+3}], v[{FB[b]+4*(jt-q)}:{FB[b]+4*(jt-q)+3}], " + ("0" if first else f"v[{d}:{d+3}]")
        k.stamp(f"c{L}_u", 2)
        a("s_waitcnt lgkmcnt(0)"); a("s_barrier")
        for j in range(8):
            for t in self.rb(0, 0, j): a(t)
        nm = 0; ev = OPT.get("wq_every", 5)
        for rr in range(3):
            b = rr % 2; nxt = reads(rr+1); kk = 0
            for q in range(8):
                for jt in range(q, 8):
                    if rr == 0 and q == 0: a("s_waitcnt lgkmcnt(7)")
                    elif q == 0 and jt == 0: a("s_waitcnt lgkmcnt(0)")
                    a(mf(b, q, jt, rr == 0 and q == 0))
                    if kk < len(nxt): a(nxt[kk])
                    kk += 1; nm += 1
                    if nm % ev == 0: wq_load()
        wq_load(48)
        RAW = 60; XR = 68; PT = 84; T8 = list(range(100, 108))
        vm0 = list(k.vm)
        a("s_waitcnt lgkmcnt(0)")
        a("s_cmp_eq_u32 s26, 0"); a(f"s_cbranch_scc0 L_c{L}h1")
        for rh in range(2):
            k.vm = list(vm0)
            if rh == 1: a.label(f"L_c{L}h1"); a.force_stub()
            own = list(range(4*rh, 4*rh+4)); send = list(range(4-4*rh, 8-4*rh))
            seq = [(q, jt) for q in range(8) for jt in send if q <= jt] + [(q, jt) for q in range(8) for jt in own if q <= jt]
            done_at = {jt: max(i for i, (q, j) in enumerate(seq) if j == jt) for jt in send}
            side = [f"ds_read_b64 v[{RAW+2*i}:{RAW+2*i+1}], v8 offset:{512*i}" for i in range(4)]
            up = []
            for i in range(8): up += [f"v_lshlrev_b32 v{XR+2*i}, 16, v{RAW+i}", f"v_and_b32 v{XR+2*i+1}, 0xffff0000, v{RAW+i}"]
            for i, (q, jt) in enumerate(seq):
                a(mf(1, q, jt))
                if i < 4: a(side[i])
                if i == 7: a("s_waitcnt lgkmcnt(0)")
                if 8 <= i < 24: a(up[i-8])
                for n_, js in enumerate(send):
                    if i == done_at[js] + 8: a(f"ds_write_b128 v48, v[{ACC+4*js}:{ACC+4*js+3}] offset:{1024*n_}")
            k.stamp(f"c{L}_mm", 2)
            a("s_waitcnt lgkmcnt(0)"); a("s_barrier")
            for i in range(4): a(f"ds_read_b128 v[{PT+4*i}:{PT+4*i+3}], v49 offset:{1024*i}")
            O = ACC + 16*rh
            for i in range(8): a(f"v_pk_add_f32 v[{O+2*i}:{O+2*i+1}], v[{O+2*i}:{O+2*i+1}], v[{XR+2*i}:{XR+2*i+1}]")
            for p in range(2):
                a(f"s_waitcnt lgkmcnt({2 - 2*p})")
                for i in range(4*p, 4*p+4): a(f"v_pk_add_f32 v[{O+2*i}:{O+2*i+1}], v[{O+2*i}:{O+2*i+1}], v[{PT+2*i}:{PT+2*i+1}]")
                for i in range(4*p, 4*p+4): a(f"v_cvt_pk_bf16_f32 v{T8[i]}, v{O+2*i}, v{O+2*i+1}")
                o = T8[4*p]
                a(f"v_permlane16_swap_b32 v{o}, v{o+2}"); a(f"v_permlane16_swap_b32 v{o+1}, v{o+3}")
                k.v(f"buffer_store_dwordx4 v[{o}:{o+3}], v50, s[4:7], s{34 if p == 0 else 43} offen sc1")
            if rh == 0: a(f"s_branch L_c{L}e")
        a.label(f"L_c{L}e")

def sm_minmax(a, acc, t):
    mx, mn = t, t + 2
    a(f"v_max3_f32 v{mx}, v{acc}, v{acc+1}, v{acc+2}"); a(f"v_min3_f32 v{mn}, v{acc}, v{acc+1}, v{acc+2}")
    for i in range(3, 15, 2):
        a(f"v_max3_f32 v{mx}, v{mx}, v{acc+i}, v{acc+i+1}"); a(f"v_min3_f32 v{mn}, v{mn}, v{acc+i}, v{acc+i+1}")
    a(f"v_max_f32 v{mx}, v{mx}, v{acc+15}"); a(f"v_min_f32 v{mn}, v{mn}, v{acc+15}")
def sm_exp(a, acc, P, M, c, t, hook=lambda: None):
    mx, mn = t, t + 2
    a(f"v_mul_f32 v{mx}, v{mx}, v{c}"); a(f"v_mul_f32 v{mn}, v{mn}, v{c}")
    for i in range(0, 16, 2):
        a(f"v_pk_fma_f32 v[{P+i}:{P+i+1}], v[{acc+i}:{acc+i+1}], v[{c}:{c+1}], v[{mx}:{mx+1}] op_sel_hi:[1,0,0] neg_lo:[0,0,1] neg_hi:[0,0,1]")
        a(f"v_pk_fma_f32 v[{M+i}:{M+i+1}], v[{acc+i}:{acc+i+1}], v[{c}:{c+1}], v[{mn}:{mn+1}] op_sel_hi:[1,0,0] neg_lo:[1,0,0] neg_hi:[1,0,0]")
    for i in range(16):
        a(f"v_exp_f32 v{P+i}, v{P+i}")
        if i % 4 == 3: hook()
    for i in range(16):
        a(f"v_exp_f32 v{M+i}, v{M+i}")
        if i % 4 == 3: hook()
def sm_norm(a, P, M, t):
    sp, sm = t, t + 2
    a(f"v_pk_add_f32 v[{sp}:{sp+1}], v[{P}:{P+1}], v[{P+2}:{P+3}]"); a(f"v_pk_add_f32 v[{sm}:{sm+1}], v[{M}:{M+1}], v[{M+2}:{M+3}]")
    for i in range(4, 16, 2):
        a(f"v_pk_add_f32 v[{sp}:{sp+1}], v[{sp}:{sp+1}], v[{P+i}:{P+i+1}]"); a(f"v_pk_add_f32 v[{sm}:{sm+1}], v[{sm}:{sm+1}], v[{M+i}:{M+i+1}]")
    a(f"v_add_f32 v{sp}, v{sp}, v{sp+1}"); a(f"v_add_f32 v{sm}, v{sm}, v{sm+1}")
    a(f"v_rcp_f32 v{sp}, v{sp}"); a(f"v_rcp_f32 v{sm}, v{sm}")
    for i in range(0, 16, 2):
        a(f"v_pk_mul_f32 v[{P+i}:{P+i+1}], v[{P+i}:{P+i+1}], v[{sp}:{sp+1}] op_sel_hi:[1,0]")
        a(f"v_pk_mul_f32 v[{M+i}:{M+i+1}], v[{M+i}:{M+i+1}], v[{sm}:{sm+1}] op_sel_hi:[1,0]")
def transpose4(a, R):
    for i in range(4):
        a(f"v_permlane32_swap_b32 v{R+i}, v{R+8+i}"); a(f"v_permlane32_swap_b32 v{R+4+i}, v{R+12+i}")
    for i in range(4):
        a(f"v_permlane16_swap_b32 v{R+i}, v{R+4+i}"); a(f"v_permlane16_swap_b32 v{R+8+i}, v{R+12+i}")

class Qkv:
    NS = 6; SLOT = 16384; RB = PA; IMG = PA + 6 * 16384; RS = 224; STAT = PA + 6 * 16384 + 128 * 224
    def __init__(self, k, L): self.k = k; self.L = L; assert self.STAT + 512 <= 163840 and self.RB % 256 == 0
    def pre(self):
        a = self.k.a; L = self.L; RB, SLOT = self.RB, self.SLOT
        xin = [XT1, XT3][L]
        a(f"s_and_b32 s20, s{W}, 1"); a(f"s_lshr_b32 s21, s{W}, 1")
        if L == 0:
            a(f"s_mul_i32 s27, s20, {44*1024}"); a(f"s_add_u32 s27, s27, {Conv.WST}"); a("v_lshl_add_u32 v5, v1, 4, s27")
            for i in range(44): a(f"ds_read_b128 a[{16+4*i}:{19+4*i}], v5 offset:{1024*i}")
            a("s_waitcnt lgkmcnt(0)")
            a("s_cmp_eq_u32 s21, 1"); a("s_cbranch_scc0 L_cs")
            for r in range(12, 16): a(f"v_mov_b32 v{r}, 0x3f803f80")
            for s_ in range(16):
                for j in range(3): a(f"v_mfma_f32_16x16x32_bf16 v[{16+4*j}:{19+4*j}], a[{(3*s_+j)*4}:{(3*s_+j)*4+3}], v[12:15], " + ("0" if s_ == 0 else f"v[{16+4*j}:{19+4*j}]"))
            a("s_mul_i32 s27, s20, 192"); a(f"s_add_u32 s27, s27, {CSB}"); a("v_lshl_add_u32 v5, v4, 4, s27")
            for j in range(3): a(f"ds_write_b128 v5, v[{16+4*j}:{19+4*j}] offset:{64*j}")
            a.label("L_cs")
            a("s_bfe_u32 s35, s2, 0x20003"); a("s_lshl_b32 s35, s35, 2"); a(f"s_add_u32 s35, s35, s{W}"); a("s_lshl_b32 s35, s35, 15"); a(f"s_add_u32 s35, s35, {WO}")
            if OPT.get("rot", 1): a("s_bfe_u32 s42, s2, 0x20005"); a("s_lshl_b32 s42, s42, 11")
            else: a("s_mov_b32 s42, 0")
        a("s_and_b32 s25, s2, 7"); a("s_lshl_b32 s25, s25, 1"); a("s_bfe_u32 s26, s2, 0x10003"); a("s_add_u32 s25, s25, s26")
        a("s_lshr_b32 s26, s2, 4")
        a("v_lshrrev_b32 v5, 1, v3"); a("v_xor_b32 v5, v5, v4"); a("v_lshlrev_b32 v5, 5, v5"); a("v_lshl_add_u32 v5, v4, 8, v5")
        a("v_and_b32 v6, 1, v0"); a("v_lshl_add_u32 v5, v6, 4, v5"); a("v_xor_b32 v6, 0x80, v5")
        a(f"s_lshl_b32 s28, s{W}, 12"); a("s_lshl_b32 s27, s25, 17"); a("s_add_u32 s28, s28, s27"); a(f"s_add_u32 s28, s28, {xin}")
        a(f"s_lshl_b32 s34, s{W}, 12"); a(f"s_add_u32 s34, s34, {RB}")
        a("v_lshlrev_b32 v7, 4, v1")
        a("v_lshrrev_b32 v8, 2, v1")
        a("v_and_b32 v9, 7, v8"); a(f"s_lshl_b32 s27, s{W}, 1"); a("v_xor_b32 v9, s27, v9"); a("v_lshlrev_b32 v9, 5, v9")
        a("v_lshl_add_u32 v8, v8, 8, v9"); a("v_and_b32 v9, 3, v0"); a("v_lshl_add_u32 v8, v9, 3, v8"); a(f"v_add_u32 v8, {RB}, v8")
        for t in range(1, 4): a(f"v_xor_b32 v{8+t}, {32*t}, v8")
        for t in range(4): a(f"v_add_u32 v{12+t}, {3*SLOT}, v{8+t}")
        a(f"s_lshl_b32 s27, s{W}, 7"); a(f"s_add_u32 s27, s27, {self.STAT}"); a("v_lshl_add_u32 v184, v3, 2, s27")
        a("s_lshl_b32 s27, s20, 5"); a("v_xor_b32 v185, s27, v1"); a("s_lshl_b32 s27, s21, 6"); a("v_add_u32 v185, s27, v185")
        a(f"v_lshlrev_b32 v186, 2, v185"); a(f"v_add_u32 v186, {self.STAT}, v186")
        a("s_mul_i32 s27, s20, 192"); a(f"s_add_u32 s27, s27, {CSB}"); a("v_mov_b32 v187, s27")
        a("s_mov_b32 s56, 0xcccccccc"); a("s_mov_b32 s57, s56"); a("s_mov_b32 s58, 0xaaaaaaaa"); a("s_mov_b32 s59, s58")
    def run(self):
        k = self.k; a = k.a; L = self.L; NS, SLOT, IMG, RS = self.NS, self.SLOT, self.IMG, self.RS
        kv = KV[L]; phiq = PHIQ[L]
        def dma1(c, i):
            if i == 0: a(f"s_add_u32 m0, s34, {(c % NS) * SLOT}")
            k.v(f"buffer_load_dwordx4 v{5 + i % 2}, s[4:7], s28 offen offset:{1024*i} sc1 lds", f"x{c}")
            if c < 7 and i == 3: a(f"s_add_u32 s28, s28, 16384")
        UP = OPT.get("q_up", 2)
        for c in range(UP):
            for i in range(4): dma1(c, i)
        wo = [0]
        def wo_load(n=1):
            if L != 0: return
            for _ in range(n):
                i = wo[0]
                if i >= 32: return
                p, w_, b_ = i // 8, (i // 2) % 4, i % 2
                if i % 2 == 0: a(f"s_xor_b32 s43, s42, {p*2048}"); a("s_add_u32 s43, s43, s35"); (a(f"s_add_u32 s43, s43, {w_*8192}") if w_ else None)
                k.v(f"buffer_load_dwordx4 {wo_reg(i)}, v7, s[4:7], s43 offen offset:{1024*b_}", "wo")
                wo[0] += 1
        ACC = [16, 32, 48]; AS2 = 64; FX = [72, 88]; CS = 136
        def reads(s_):
            c = s_ // 2; sl = c % NS; b = s_ % 2; base = 8 if sl < 3 else 12; o = (sl % 3) * SLOT + (s_ % 2) * 8192
            Lr = []
            for t in range(4):
                Lr.append(f"ds_read_b64_tr_b16 v[{FX[b]+4*t}:{FX[b]+4*t+1}], v{base+t} offset:{o}")
                Lr.append(f"ds_read_b64_tr_b16 v[{FX[b]+4*t+2}:{FX[b]+4*t+3}], v{base+t} offset:{o+4096}")
            return Lr
        sched = {}
        nxtc = UP
        FAST = OPT.get("q_fast", 0)
        for s_ in range(16):
            if nxtc < 8 and (FAST or nxtc <= s_ // 2 + 3) and (nxtc < NS or s_ >= 2*(nxtc - NS) + 2): sched[s_] = nxtc; nxtc += 1
        sync = {1: 1, 3: 2, 5: 4, 9: 7} if FAST == 1 else ({1: 1, 3: 2, 5: 3, 7: 5, 11: 7} if FAST == 2 else {2*c+1: c+1 for c in range(7)})
        k.wait("x0"); a("s_barrier")
        k.stamp(f"q{L}_x0", 2)
        for t in reads(0): a(t)
        for s_ in range(16):
            b = s_ % 2; c = s_ // 2; first = s_ == 0
            nxt = reads(s_+1) if s_ < 15 else [f"ds_read_b128 v[{CS+4*i}:{CS+4*i+3}], v187 offset:{16*i}" for i in range(12)]
            M = []
            for t in range(4):
                x = f"v[{FX[b]+4*t}:{FX[b]+4*t+3}]"
                if t < 2: M.append(f"v_mfma_f32_16x16x32_bf16 v[{AS2+4*t}:{AS2+4*t+3}], {x}, {x}, " + ("0" if first else f"v[{AS2+4*t}:{AS2+4*t+3}]"))
                for j in range(3):
                    d = ACC[j] + 4*t
                    M.append(f"v_mfma_f32_16x16x32_bf16 v[{d}:{d+3}], a[{(3*s_+j)*4}:{(3*s_+j)*4+3}], {x}, " + ("0" if first else f"v[{d}:{d+3}]"))
            if not first: a("s_waitcnt lgkmcnt(0)")
            rd0 = 1 if s_ in sync else 0
            for i, m in enumerate(M):
                if first and i in (0, 4, 8, 11): a(f"s_waitcnt lgkmcnt({ {0: 6, 4: 4+4, 8: 2+8, 11: 8}[i] })")
                a(m)
                if rd0 and i == rd0:
                    k.wait(f"x{sync[s_]}"); a("s_barrier")
                if 0 <= i - rd0 < len(nxt): a(nxt[i - rd0])
                if s_ in sched and i in (2, 5, 8, 11): dma1(sched[s_], (i - 2) // 3)
                if s_ >= OPT.get("wo_from", 9) and i in (5, 12): wo_load()
        k.stamp(f"q{L}_mm")
        for u in range(2):
            r = AS2 + 4*u
            a(f"v_cndmask_b32 v{r}, v{r}, v{r+2}, s[56:57]"); a(f"v_cndmask_b32 v{r+1}, v{r+1}, v{r+3}, s[56:57]"); a(f"v_cndmask_b32 v{r}, v{r}, v{r+1}, s[58:59]")
        a("s_mov_b32 exec_lo, 0x00f0000f"); a("s_mov_b32 exec_hi, 0xf0000f00")
        a(f"ds_write_b32 v184, v{AS2}"); a(f"ds_write_b32 v184, v{AS2+4} offset:64")
        a("s_mov_b64 exec, -1")
        transpose4(a, ACC[0]); wo_load(2)
        a("s_waitcnt lgkmcnt(0)"); a("s_barrier")
        MU, S2, R, C, TK, TQ = 64, 66, 66, 76, 68, 72
        a(f"ds_read_b32 v{S2}, v186")
        a(f"v_mul_f32 v{MU}, {f32(1/512)}, v{ACC[0]}")
        transpose4(a, ACC[1]); wo_load(2)
        def centre(j):
            for i in range(0, 16, 2): a(f"v_pk_fma_f32 v[{ACC[j]+i}:{ACC[j]+i+1}], v[{CS+16*j+i}:{CS+16*j+i+1}], v[{MU}:{MU+1}], v[{ACC[j]+i}:{ACC[j]+i+1}] op_sel_hi:[1,0,1] neg_lo:[0,1,0] neg_hi:[0,1,0]")
        centre(1)
        a("s_waitcnt lgkmcnt(0)")
        a(f"v_mov_b32 v{C}, {f32(1e-5)}"); a(f"v_fmac_f32 v{C}, {f32(1/512)}, v{S2}"); a(f"v_fma_f32 v{S2}, -v{MU}, v{MU}, v{C}"); a(f"v_max_f32 v{S2}, {f32(1e-5)}, v{S2}")
        a(f"v_rsq_f32 v{R}, v{S2}")
        sm_minmax(a, ACC[1], TK)
        a(f"v_mul_f32 v{C}, {hex(LOG2E)}, v{R}")
        P, M_ = 80, 96; O = 112; FV, FP = 136, 152
        EPI = OPT.get("epi", 0)
        def k_part():
            sm_exp(a, ACC[1], P, M_, C, TK, lambda: wo_load())
            sm_norm(a, P, M_, TK); wo_load(2)
            a(f"v_mul_u32_u24 v5, {RS}, v185"); a("s_lshl_b32 s27, s20, 6"); a(f"s_add_u32 s27, s27, {IMG}"); a("v_add_u32 v8, s27, v5")
            a("s_lshl_b32 s27, s20, 5"); a(f"s_add_u32 s27, s27, {IMG + 128}"); a("v_add_u32 v9, s27, v5")
            for h in range(4):
                src = P if h < 2 else M_ - 16
                for i in range(4): a(f"v_cvt_pk_bf16_f32 v{ACC[1]+4*h+i}, v{src+8*h+2*i}, v{src+8*h+2*i+1}")
                a(f"ds_write_b128 v8, v[{ACC[1]+4*h}:{ACC[1]+4*h+3}] offset:{16*h}")
            wo_load(2); transpose4(a, ACC[2]); centre(2)
            for i in range(8): a(f"v_pk_mul_f32 v[{ACC[2]+2*i}:{ACC[2]+2*i+1}], v[{ACC[2]+2*i}:{ACC[2]+2*i+1}], v[{R}:{R+1}] op_sel_hi:[1,0]")
            for h in range(2):
                for i in range(4): a(f"v_cvt_pk_bf16_f32 v{128+4*h+i}, v{ACC[2]+8*h+2*i}, v{ACC[2]+8*h+2*i+1}")
                a(f"ds_write_b128 v9, v[{128+4*h}:{131+4*h}] offset:{16*h}")
            wo_load(32)
            a("v_lshrrev_b32 v5, 2, v1"); a(f"v_mul_u32_u24 v5, {RS}, v5"); a("v_and_b32 v10, 3, v0"); a("v_lshl_add_u32 v5, v10, 3, v5")
            a("v_add_u32 v8, s27, v5")
            a("s_lshl_b32 s27, s20, 6"); a("s_lshl_b32 s28, s21, 5"); a("s_add_u32 s27, s27, s28"); a(f"s_add_u32 s27, s27, {IMG}"); a("v_add_u32 v9, s27, v5")
            for r in range(12, 16): a(f"v_mov_b32 v{r}, 0x3f803f80")
            a("s_lshl_b32 s30, s26, 1"); a("s_add_u32 s30, s30, s20"); a("s_lshl_b32 s30, s30, 1"); a("s_add_u32 s30, s30, s21")
            a("s_lshl_b32 s31, s30, 7"); a(f"s_add_u32 s31, s31, {kv + 65536}"); a("s_lshl_b32 s30, s30, 10"); a(f"s_add_u32 s30, s30, {kv}")
            a("v_lshlrev_b32 v10, 2, v3"); a("v_lshl_add_u32 v11, v4, 8, v10")
        def kv_reads():
            k.stamp(f"q{L}_img", 2)
            a("s_waitcnt lgkmcnt(0)"); a("s_barrier")
            for ks in range(4):
                for hf in range(2):
                    a(f"ds_read_b64_tr_b16 v[{FV+4*ks+2*hf}:{FV+4*ks+2*hf+1}], v8 offset:{(32*ks+16*hf)*RS}")
                    a(f"ds_read_b64_tr_b16 v[{FP+4*ks+2*hf}:{FP+4*ks+2*hf+1}], v9 offset:{(32*ks+16*hf)*RS}")
        def kv_mfma():
            for ks in range(4):
                a(f"s_waitcnt lgkmcnt({12 - 4*ks})")
                a(f"v_mfma_f32_16x16x32_bf16 v[168:171], v[{FV+4*ks}:{FV+4*ks+3}], v[{FP+4*ks}:{FP+4*ks+3}], " + ("0" if ks == 0 else "v[168:171]"))
                a(f"v_mfma_f32_16x16x32_bf16 v[172:175], v[12:15], v[{FP+4*ks}:{FP+4*ks+3}], " + ("0" if ks == 0 else "v[172:175]"))
        def kv_out():
            for x_, y_ in ((168, 170), (169, 171)): a(f"v_mov_b32 v{x_+8}, v{x_}")
            for x_, y_ in ((168, 170), (169, 171)): a(f"v_mov_b32_dpp v{x_}, v{y_} row_ror:8 row_mask:0xf bank_mask:0xc")
            for x_, y_ in ((168, 170), (169, 171)): a(f"v_mov_b32_dpp v{y_}, v{x_+8} row_ror:8 row_mask:0xf bank_mask:0x3")
            for x_, y_ in ((168, 169), (170, 171)): a(f"v_mov_b32 v{x_+8}, v{x_}")
            for x_, y_ in ((168, 169), (170, 171)): a(f"v_mov_b32_dpp v{x_}, v{y_} row_ror:4 row_mask:0xf bank_mask:0xa")
            for x_, y_ in ((168, 169), (170, 171)): a(f"v_mov_b32_dpp v{y_}, v{x_+8} row_ror:12 row_mask:0xf bank_mask:0x5")
            for i in range(4): k.v(f"buffer_atomic_add_f32 v{168+i}, v11, s[4:7], s30 offen offset:{64*i}")
            a("s_mov_b64 exec, 0xffff")
            k.v("buffer_atomic_add_f32 v172, v10, s[4:7], s31 offen")
            a("s_mov_b64 exec, -1")
            k.stamp(f"q{L}_kv", 2)
        def q_exp():
            sm_minmax(a, ACC[0], TQ); sm_exp(a, ACC[0], P, M_, C, TQ)
        def q_out():
            a("v_lshrrev_b32 v2, 5, v185"); a("v_lshlrev_b32 v2, 16, v2"); a("v_and_b32 v6, 31, v185"); a("v_lshl_add_u32 v2, v6, 4, v2")
            a("s_lshl_b32 s29, s26, 1"); a("s_add_u32 s29, s29, s20"); a("s_lshl_b32 s29, s29, 11"); a("s_lshl_b32 s22, s25, 18"); a("s_add_u32 s29, s29, s22"); a(f"s_add_u32 s29, s29, {phiq}")
            for g in range(4):
                a(f"v_cvt_pk_bf16_f32 v{O+4*g}, v{P+4*g}, v{P+4*g+1}"); a(f"v_cvt_pk_bf16_f32 v{O+4*g+1}, v{P+4*g+2}, v{P+4*g+3}")
                a(f"v_cvt_pk_bf16_f32 v{O+4*g+2}, v{M_+4*g}, v{M_+4*g+1}"); a(f"v_cvt_pk_bf16_f32 v{O+4*g+3}, v{M_+4*g+2}, v{M_+4*g+3}")
                k.v(f"buffer_store_dwordx4 v[{O+4*g}:{O+4*g+3}], v2, s[4:7], s29 offen offset:{512*g} sc1")
        if EPI == 0:
            k_part(); centre(0); kv_reads(); kv_mfma(); kv_out(); q_exp(); sm_norm(a, P, M_, TQ); q_out()
        elif EPI == 1:
            centre(0); q_exp(); sm_norm(a, P, M_, TQ); q_out(); k_part(); kv_reads(); kv_mfma(); kv_out()
        elif EPI == 2:
            k_part(); centre(0); q_exp(); kv_reads(); sm_norm(a, P, M_, TQ); kv_mfma(); q_out(); kv_out()
        elif EPI == 3:
            k_part(); centre(0); sm_minmax(a, ACC[0], TQ); kv_reads(); sm_exp(a, ACC[0], P, M_, C, TQ); kv_mfma(); sm_norm(a, P, M_, TQ); kv_out(); q_out()

class Outp:
    ORS = 1040; OB = PA; RB = PA + 32 * 1040; TB = PA + 32 * 1040 + 4 * 2048; TRS = 72; ZB = PA + 32 * 1040 + 4 * 2048 + 10240; SB = PA + 32 * 1040 + 4 * 2048 + 10240 + 2048
    def __init__(self, k, L): self.k = k; self.L = L
    def pre(self):
        k = self.k; a = k.a; L = self.L; ORS = self.ORS
        xin = [XT1, XT3][L]; kv = KV[L]; phiq = PHIQ[L]
        a("s_and_b32 s25, s2, 7"); a("s_lshl_b32 s25, s25, 3"); a("s_lshr_b32 s26, s2, 5"); a("s_add_u32 s25, s25, s26")
        a("s_bfe_u32 s26, s2, 0x20003"); a("s_lshl_b32 s26, s26, 2"); a(f"s_add_u32 s26, s26, s{W}")
        a("v_lshrrev_b32 v9, 2, v1"); a("v_lshlrev_b32 v9, 8, v9"); a("v_and_b32 v10, 3, v0"); a("v_lshl_add_u32 v9, v10, 4, v9")
        a("s_lshr_b32 s30, s25, 2"); a("s_lshl_b32 s30, s30, 17"); a("s_and_b32 s31, s25, 3"); a("s_lshl_b32 s31, s31, 6"); a("s_add_u32 s30, s30, s31")
        a("s_lshl_b32 s31, s26, 13"); a("s_add_u32 s30, s30, s31"); a(f"s_add_u32 s30, s30, {xin}")
        a(f"s_add_u32 s31, s30, {16*256 - 1024}")
        a(f"s_lshl_b32 s34, s{W}, 11"); a(f"s_add_u32 s34, s34, {self.RB}"); a("s_mov_b32 m0, s34")
        k.v("buffer_load_dwordx4 v9, s[4:7], s30 offen sc1 lds", "res"); k.v("buffer_load_dwordx4 v9, s[4:7], s31 offen offset:1024 sc1 lds", "res")
        a("v_lshrrev_b32 v5, 2, v1"); a("v_lshlrev_b32 v5, 7, v5"); a("v_lshl_add_u32 v5, v10, 4, v5")
        a("s_lshr_b32 s27, s42, 10"); a("v_lshrrev_b32 v11, 3, v1"); a("v_xor_b32 v11, s27, v11")
        a("v_lshrrev_b32 v7, 2, v11"); a("v_lshlrev_b32 v7, 8, v7"); a("v_and_b32 v11, 3, v11"); a("v_lshl_add_u32 v11, v11, 4, v7"); a("v_lshl_add_u32 v11, v10, 6, v11")
        a("v_bfe_u32 v7, v0, 2, 1"); a("v_lshl_add_u32 v11, v7, 3, v11"); a(f"s_lshl_b32 s27, s{W}, 9"); a(f"s_add_u32 s27, s27, {self.ZB}"); a("v_add_u32 v11, s27, v11")
        a("v_lshlrev_b32 v187, 4, v10"); a("v_lshl_add_u32 v187, v4, 6, v187"); a("v_add_u32 v187, s27, v187")
        a("v_lshlrev_b32 v6, 4, v10"); a("v_lshl_add_u32 v6, v4, 6, v6"); a("v_lshrrev_b32 v7, 2, v3"); a("v_lshl_add_u32 v6, v7, 8, v6")
        a("v_lshlrev_b32 v7, 4, v3"); a("v_lshl_add_u32 v7, v4, 9, v7")
        a(f"s_lshl_b32 s27, s{W}, 11"); a(f"s_add_u32 s27, s27, {kv + 65536}")
        a(f"s_lshl_b32 s28, s{W}, 14"); a("s_lshl_b32 s29, s25, 16"); a("s_add_u32 s29, s29, s28"); a(f"s_add_u32 s29, s29, {phiq}"); a(f"s_add_u32 s28, s28, {kv}")
        a("s_lshl_b32 s43, s42, 1")
        for p in range(4):
            a(f"s_xor_b32 s35, s43, {p*4096}"); a(f"s_add_u32 s{52+p}, s29, s35"); a(f"s_add_u32 s{44+p}, s28, s35")
        a(f"v_mul_u32_u24 v10, {ORS}, v3"); a("v_lshl_add_u32 v10, v4, 4, v10"); a(f"s_lshl_b32 s35, s{W}, 6"); a(f"s_add_u32 s35, s35, {self.OB}"); a("v_add_u32 v10, s35, v10")
        a("v_and_b32 v184, 31, v0"); a(f"v_mul_u32_u24 v185, {ORS}, v184"); a("v_lshrrev_b32 v186, 5, v1"); a("v_lshl_add_u32 v185, v186, 4, v185"); a(f"v_add_u32 v185, {self.OB}, v185")
        a("v_bfe_u32 v8, v0, 2, 2"); a("v_lshlrev_b32 v8, 6, v8"); a("v_lshl_add_u32 v8, v186, 8, v8"); a("v_and_b32 v9, 1, v4"); a("v_lshl_add_u32 v8, v9, 5, v8")
        a("v_and_b32 v9, 3, v0"); a("v_lshl_add_u32 v8, v9, 3, v8"); a("v_add_u32 v8, s34, v8")
        a(f"s_mov_b32 s35, {f32(1e-6)}")
    def run(self):
        k = self.k; a = k.a; L = self.L; ORS, TRS, TB = self.ORS, self.TRS, self.TB; final = L == 1
        ACC = 16; KVR = 32; PQ = 96; ZF = 160; NUM = 168; TMP = [12, 14, 2, 188]
        k.v("buffer_load_dwordx4 v[16:19], v5, s[4:7], s27 offen sc1", "z")
        def pair_loads(p):
            for h in (2*p, 2*p+1):
                for j in range(2): k.v(f"buffer_load_dwordx4 v[{KVR+8*h+4*j}:{KVR+8*h+4*j+3}], v6, s[4:7], s{44+p} offen offset:{2048*(h%2)+1024*j} sc1", f"p{p}")
                for t in range(2): k.v(f"buffer_load_dwordx4 v[{PQ+8*h+4*t}:{PQ+8*h+4*t+3}], v7, s[4:7], s{52+p} offen offset:{2048*(h%2)+256*t} sc1", f"p{p}")
        PRE = OPT.get("o_pre", 2)
        for p in range(PRE):
            pair_loads(p)
            if p < PRE - 1 and OPT.get("o_bar", 1): a("s_barrier")
        k.wait("z")
        a("v_cvt_pk_bf16_f32 v16, v16, v17"); a("v_cvt_pk_bf16_f32 v17, v18, v19"); a("ds_write_b64 v11, v[16:17]")
        a("s_waitcnt lgkmcnt(0)")
        for grp in range(2): a(f"ds_read_b128 v[{ZF+4*grp}:{ZF+4*grp+3}], v187 offset:{256*grp}")
        k.stamp(f"o{L}_z", 2)
        fbr = lambda p, i: (KVR + 16*p + 4*i) if i < 4 else (PQ + 16*p + 4*(i-4))
        for p in range(4):
            k.wait(f"p{p}")
            for u in range(2):
                kr = KVR + 16*p + 8*u
                for i in range(4): a(f"v_cvt_pk_bf16_f32 v{kr+i}, v{kr+2*i}, v{kr+2*i+1}")
            if p + PRE < 4: pair_loads(p + PRE)
            if p == 0: a("s_waitcnt lgkmcnt(0)")
            for u in range(2):
                h = 2*p + u; kr = KVR + 8*h
                for t in range(2): a(f"v_mfma_f32_16x16x32_bf16 v[{NUM+8*u+4*t}:{NUM+8*u+4*t+3}], v[{kr}:{kr+3}], v[{PQ+8*h+4*t}:{PQ+8*h+4*t+3}], 0")
            for u in range(2):
                h = 2*p + u; kr = KVR + 8*h
                for t in range(2): a(f"v_mfma_f32_16x16x32_bf16 v[{kr+4-4*t}:{kr+7-4*t}], v[{ZF+4*(h//4)}:{ZF+4*(h//4)+3}], v[{PQ+8*h+4*t}:{PQ+8*h+4*t+3}], 0")
            V = []
            ut = [(u, t) for u in range(2) for t in range(2)]
            for n_, (u, t) in enumerate(ut): V.append(f"v_add_f32 v{TMP[n_]}, s35, v{KVR+16*p+8*u+4-4*t+((2*p+u)%4)}")
            for n_ in range(4): V.append(f"v_rcp_f32 v{TMP[n_]}, v{TMP[n_]}")
            oq = PQ + 16*p
            for t in range(2):
                for u in range(2):
                    n_ = 2*u + t; b = NUM + 8*u + 4*t
                    for i in range(4): V.append(f"v_mul_f32 v{b+i}, v{b+i}, v{TMP[n_]}")
                    for i in range(2): V.append(f"v_cvt_pk_bf16_f32 v{oq+4*t+2*u+i}, v{b+2*i}, v{b+2*i+1}")
                V.append(f"ds_write_b128 v10, v[{oq+4*t}:{oq+4*t+3}] offset:{16*ORS*t + 256*p}")
            rd = lambda q: [f"ds_read_b128 v[{fbr(q,i)}:{fbr(q,i)+3}], v185 offset:{256*q + 32*i}" for i in range(8)]
            big = lambda q, i: f"v_mfma_f32_32x32x16_bf16 v[{ACC}:{ACC+15}], {wo_reg(8*q+i)}, v[{fbr(q,i)}:{fbr(q,i)+3}], " + ("0" if 8*q+i == 0 else f"v[{ACC}:{ACC+15}]")
            if p >= 1: a("s_waitcnt lgkmcnt(0)"); a("s_barrier")
            per = [4, 3, 4, 5, 4, 5, 4, 5]; vi = 0
            for i in range(8):
                if p >= 2: a(big(p-2, i))
                if p >= 1: a(rd(p-1)[i])
                for t_ in V[vi:vi+per[i]]: a(t_)
                vi += per[i]
            assert vi == len(V)
        k.stamp(f"o{L}_o", 2)
        RR = 160; XR = 32
        a("s_waitcnt lgkmcnt(0)"); a("s_barrier")
        tail = rd(3) + [f"ds_read_b64_tr_b16 v[{RR+2*i}:{RR+2*i+1}], v8 offset:{512*i}" for i in range(4)]
        for i in range(8):
            a(big(2, i))
            for t_ in tail[2*i:2*i+2]: a(t_)
        a("s_waitcnt lgkmcnt(0)")
        for i in range(8):
            a(big(3, i)); unpack(a, XR+2*i, XR+2*i+1, RR+i)
        k.stamp(f"o{L}_mm", 2)
        T8 = list(range(48, 56))
        for i in range(8): a(f"v_pk_add_f32 v[{ACC+2*i}:{ACC+2*i+1}], v[{ACC+2*i}:{ACC+2*i+1}], v[{XR+2*i}:{XR+2*i+1}]")
        for i in range(8): a(f"v_cvt_pk_bf16_f32 v{T8[i]}, v{ACC+2*i}, v{ACC+2*i+1}")
        if final:
            a(f"s_mul_i32 s27, s{W}, {32*80}"); a(f"s_add_u32 s27, s27, {TB}")
            a(f"v_mul_u32_u24 v8, 80, v184"); a("v_lshl_add_u32 v8, v186, 3, v8"); a("v_add_u32 v8, s27, v8")
            for i in range(4): a(f"ds_write_b64 v8, v[{T8[2*i]}:{T8[2*i]+1}] offset:{16*i}")
            a("v_lshrrev_b32 v5, 2, v1"); a("v_mul_u32_u24 v8, 80, v5"); a("v_lshl_add_u32 v8, v9, 4, v8"); a("v_add_u32 v8, s27, v8")
            a("v_lshlrev_b32 v5, 10, v5"); a("v_lshl_add_u32 v5, v9, 4, v5")
            a("s_lshl_b32 s27, s25, 15"); a("s_lshl_b32 s28, s26, 6"); a("s_add_u32 s27, s27, s28"); a("s_add_u32 s28, s27, 16384")
            a("s_waitcnt lgkmcnt(0)")
            for p in range(2): a(f"ds_read_b128 v[{RR+4*p}:{RR+4*p+3}], v8 offset:{16*80*p}")
            for p in range(2):
                a(f"s_waitcnt lgkmcnt({1-p})"); k.v(f"buffer_store_dwordx4 v[{RR+4*p}:{RR+4*p+3}], v5, s[8:11], s{27+p} offen")
        else:
            a(f"s_mul_i32 s27, s{W}, {32*TRS}"); a(f"s_add_u32 s27, s27, {TB}")
            a(f"v_mul_u32_u24 v8, {TRS}, v184"); a("v_lshl_add_u32 v8, v186, 3, v8"); a("v_add_u32 v8, s27, v8")
            for i in range(4): a(f"ds_write_b64 v8, v[{T8[2*i]}:{T8[2*i]+1}] offset:{16*i}")
            a("v_bfe_u32 v8, v0, 2, 2"); a("v_lshl_add_u32 v8, v4, 3, v8"); a(f"v_mul_u32_u24 v8, {TRS}, v8"); a("v_lshl_add_u32 v8, v9, 3, v8"); a("v_add_u32 v8, s27, v8")
            for i in range(8): unpack(a, XR+2*i, XR+2*i+1, T8[i])
            a("s_waitcnt lgkmcnt(0)")
            for p in range(2):
                for hf in range(2): a(f"ds_read_b64_tr_b16 v[{RR+4*p+2*hf}:{RR+4*p+2*hf+1}], v8 offset:{32*p + 4*TRS*hf}")
            a("v_lshlrev_b32 v5, 6, v3"); a("v_lshl_add_u32 v5, v4, 4, v5")
            a("s_lshl_b32 s27, s25, 15"); a("s_lshl_b32 s28, s26, 11"); a("s_add_u32 s27, s27, s28"); a(f"s_add_u32 s27, s27, {X2B}")
            a(f"v_pk_add_f32 v[12:13], v[{XR}:{XR+1}], v[{XR+2}:{XR+3}]"); a(f"v_pk_mul_f32 v[14:15], v[{XR}:{XR+1}], v[{XR}:{XR+1}]")
            a(f"v_pk_fma_f32 v[14:15], v[{XR+2}:{XR+3}], v[{XR+2}:{XR+3}], v[14:15]")
            for i in range(2, 8):
                a(f"v_pk_add_f32 v[12:13], v[12:13], v[{XR+2*i}:{XR+2*i+1}]"); a(f"v_pk_fma_f32 v[14:15], v[{XR+2*i}:{XR+2*i+1}], v[{XR+2*i}:{XR+2*i+1}], v[14:15]")
                if i == 4:
                    a("s_waitcnt lgkmcnt(2)"); k.v(f"buffer_store_dwordx4 v[{RR}:{RR+3}], v5, s[4:7], s27 offen sc1")
                    a("s_waitcnt lgkmcnt(0)"); k.v(f"buffer_store_dwordx4 v[{RR+4}:{RR+7}], v5, s[4:7], s27 offen offset:1024 sc1")
            a("v_add_f32 v12, v12, v13"); a("v_add_f32 v14, v14, v15")
            a("v_lshlrev_b32 v13, 2, v9"); a("v_lshl_add_u32 v13, v186, 13, v13"); a("v_bfe_u32 v15, v0, 2, 1"); a("v_lshl_add_u32 v13, v15, 12, v13")
            a("v_bfe_u32 v15, v0, 3, 2"); a("v_lshl_add_u32 v13, v15, 4, v13"); a("s_lshl_b32 s28, s25, 6"); a(f"s_add_u32 s28, s28, {ST3}")
            a("v_permlane32_swap_b32 v12, v14"); a("v_add_f32 v12, v12, v14")
            a(f"s_lshl_b32 s27, s{W}, 2"); a(f"s_add_u32 s27, s27, {self.SB}"); a("v_lshl_add_u32 v14, v1, 4, s27"); a("ds_write_b32 v14, v12")
            a(f"v_lshlrev_b32 v14, 4, v1"); a(f"v_add_u32 v14, {self.SB}, v14")
            a("s_waitcnt lgkmcnt(0)"); a("s_barrier")
            a(f"s_cmp_eq_u32 s{W}, 3"); a("s_cbranch_scc0 L_ost")
            a("ds_read_b128 v[16:19], v14"); a("s_waitcnt lgkmcnt(0)")
            a("v_add_f32 v16, v16, v17"); a("v_add_f32 v18, v18, v19"); a("v_add_f32 v12, v16, v18")
            k.v("buffer_atomic_add_f32 v12, v13, s[4:7], s28 offen")
            a.label("L_ost")

def build():
    name = NAME + "_kernel"
    k = K(); a = k.a
    a.raw(kernel_header(name))
    a("s_cmp_ge_u32 s2, 256"); a("s_cbranch_scc1 L_end")
    if PROF: a("s_memrealtime s[96:97]"); a(f"v_mov_b32 v{PV}, 0"); k.stamp("start")
    elif OPT.get("hold"): a("s_memrealtime s[96:97]")
    ph = [Conv(k, 0), Qkv(k, 0), Outp(k, 0), Conv(k, 1), Qkv(k, 1), Outp(k, 1)]
    phase0(k, ph[0].pre)
    for i, p in enumerate(ph):
        a.walk_begin(f"wk{i}")
        if OPT.get("hold") and OPT.get("holdat", 0) == i:
            a.label("L_hold"); a("s_memrealtime s[98:99]"); a("s_waitcnt lgkmcnt(0)"); a("s_sub_u32 s98, s98, s96"); a(f"s_cmp_lt_u32 s98, {OPT['hold']}"); a("s_cbranch_scc1 L_hold")
        p.run()
        if i < 5: grid_barrier(k, i + 1, ph[i+1].pre)
    if OPT.get("xbar"):
        w_ = OPT.get("walk", 1); OPT["walk"] = 0
        for e in range(6, 6 + OPT["xbar"]): grid_barrier(k, e, lambda: None)
        OPT["walk"] = w_
    if OPT.get("xloop"):
        a("s_mov_b32 s27, 0"); a.label("L_xl")
        for i in range(50): a("v_add3_u32 v5, v5, v6, v7")
        a("s_add_u32 s27, s27, 1"); a(f"s_cmp_lt_u32 s27, {OPT['xloop']}"); a("s_cbranch_scc1 L_xl")
    if OPT.get("xlat"):
        a("s_lshl_b32 s27, s2, 12"); a(f"s_add_u32 s27, s27, {OPT.get('xoff', PHIQ[0])}"); a("s_xor_b32 s27, s27, 0x100000"); a("v_mov_b32 v5, 0")
        for i in range(OPT["xlat"]): a(f"buffer_load_dword v6, v5, s[4:7], s27 offen offset:{128*i} sc1"); a("s_waitcnt vmcnt(0)")
    if PROF:
        k.stamp("issued"); a("s_waitcnt vmcnt(0)"); k.stamp("end")
        a("s_memrealtime s[98:99]"); a("s_waitcnt lgkmcnt(0)"); a(f"v_writelane_b32 v{PV}, s96, 62"); a(f"v_writelane_b32 v{PV}, s98, 63")
        a("s_lshl_b32 s27, s2, 10"); a(f"s_add_u32 s27, s27, {STAMP}"); a("v_lshlrev_b32 v5, 2, v0")
        a(f"buffer_store_dword v{PV}, v5, s[4:7], s27 offen")
        if OPT.get("dbgout"):
            sel = ["karg", "pub", "b0_arr", "st3", "b0_rel", "b1_iss", "b1_rel", "b2_iss", "b2_rel", "b3_iss", "b3_rel", "b4_rel", "b5_rel", "end"]
            a("s_cmp_eq_u32 s2, 7"); a("s_cbranch_scc0 L_end"); a(f"s_cmp_eq_u32 s{W}, 0"); a("s_cbranch_scc0 L_end")
            a(f"v_readlane_b32 s28, v{PV}, 0")
            for i, nm in enumerate(sel):
                a(f"v_readlane_b32 s29, v{PV}, {k.names.index(nm)}"); a("s_nop 1"); a("s_sub_u32 s29, s29, s28"); a(f"v_writelane_b32 v6, s29, {i}")
            a("s_sub_u32 s29, s98, s96"); a("v_writelane_b32 v6, s29, 14"); a("v_writelane_b32 v6, s29, 15")
            a("s_mov_b64 exec, 0xffff"); a("buffer_store_dword v6, v5, s[12:15], 0 offen")
    a.label("L_end"); a("s_endpgm")
    s = "; S4D convolution / Hedgehog linear attention stack as one persistent kernel (256 workgroups, one per CU)\n"
    s += "; generated by a hand-written generator script\n"
    s += "; @launch grid=(256,1,1) block=(256,1,1) lds=163840\n"
    s += '.amdgcn_target "amdgcn-amd-amdhsa--gfx950"\n.text\n'
    body = a.render()
    if OPT.get("walk", 1):
        body, info, size = place_page_stubs(body, s); print("stubs", info, "bytes after L_main", size)
    s += body + kernel_desc(name, 256, 256) + "\n"
    return s, k.names

if __name__ == "__main__":
    out = f"cdna_kernels/{NAME}.s"
    for arg in sys.argv[1:]:
        if arg == "-p": PROF = True; out = "prof4.s"
        elif "=" in arg: kk, vv = arg.split("="); OPT[kk] = int(vv)
        else: out = arg
    s, names = build()
    open(out, "w").write(s)
    if PROF: json.dump(names, open(out.replace(".s", ".json"), "w"))
```
